```python
import torch

def _softmax(x, axis=-1):
    return torch.softmax(x, dim=axis)
def _gelu(x):
    return torch.nn.functional.gelu(x, approximate="tanh")
def _silu(x):
    return torch.nn.functional.silu(x)
def _sigmoid(x):
    return torch.sigmoid(x)
def _layernorm(x, axis=-1, eps=1e-5):
    m = x.mean(dim=axis, keepdim=True)
    v = x.var(dim=axis, keepdim=True, unbiased=False)
    return (x - m) / torch.sqrt(v + eps)
def _scatter_add(tgt, idx, src, axis=0):
    return tgt.clone().index_add_(axis, idx, src)
def _segment_sum(src, seg, n):
    out = torch.zeros((n,) + src.shape[1:], dtype=src.dtype)
    return out.index_add_(0, seg, src)
def _pad(x, pw):
    flat = tuple(v for pair in reversed(pw) for v in pair)
    return torch.nn.functional.pad(x, flat)

kernel_name = 'concat_heads__linear_attn_block__ssm_conv_s4d__prompt'

def setup_inputs():

    _w = (lambda a: (lambda t: t.to(torch.bfloat16) if t.is_floating_point() else t)(torch.as_tensor(a)))
    def _A_setup():
        B, S, D = 1, 2048, 640
        return {
            "x": _w((lambda *s: torch.randn(*s, dtype=torch.bfloat16) * 0.05)(B, S, D)),
            "wqkv": _w((lambda *s: torch.randn(*s, dtype=torch.bfloat16) * 0.4)(D, 3 * D)),
            "wo": _w((lambda *s: torch.randn(*s, dtype=torch.bfloat16) * 0.05)(D, D)),
        }
    _A_in = _A_setup()

    def _B_setup():
        Bsz, L, D, N = 1, 2048, 640, 192
        return {
            "u": _w((lambda *s: torch.randn(*s, dtype=torch.bfloat16) * 0.05)(Bsz, L, D)),
            "log_A_real": _w((lambda *s: torch.randn(*s, dtype=torch.bfloat16) * 6.4)(D, N) * 0.5),
            "A_imag": _w((lambda *s: torch.randn(*s, dtype=torch.bfloat16) * 0.05)(D, N) * 3.14),
            "C_real": _w((lambda *s: torch.randn(*s, dtype=torch.bfloat16) * 0.1)(D, N) / N ** 0.5),
            "C_imag": _w((lambda *s: torch.randn(*s, dtype=torch.bfloat16) * 0.1)(D, N) / N ** 0.5),
            "log_dt": _w((lambda *s: torch.randn(*s, dtype=torch.bfloat16) * 0.05)(D) * 0.5 - 4.0),
            "D_skip": _w((lambda *s: torch.randn(*s, dtype=torch.bfloat16) * 0.05)(D)),
        }
    _B_in = _B_setup()

    return {
        "A_x": _A_in["x"],
        "A_wqkv": _A_in["wqkv"],
        "A_wo": _A_in["wo"],
        "B_u": _B_in["u"],
        "B_log_A_real": _B_in["log_A_real"],
        "B_A_imag": _B_in["A_imag"],
        "B_C_real": _B_in["C_real"],
        "B_C_imag": _B_in["C_imag"],
        "B_log_dt": _B_in["log_dt"],
        "B_D_skip": _B_in["D_skip"],
    }

def reference(A_x, A_wqkv, A_wo, B_u, B_log_A_real, B_A_imag, B_C_real, B_C_imag, B_log_dt, B_D_skip):
    def _A_ref(x, wqkv, wo):
        B, S, D = x.shape
        H = 32; Dh = D // H
        qkv = (lambda x, *d: x.permute(*d))((x @ wqkv).reshape(B, S, 3, H, Dh), 2, 0, 3, 1, 4)
        q, k, v = qkv[0], qkv[1], qkv[2]
        phi = lambda t: torch.where(t > 0, t + 1, torch.exp(t)) + 1e-6
        pq, pk = phi(q), phi(k)
        kv = torch.einsum("bhsd,bhse->bhde", pk, v)
        z = torch.einsum("bhsd->bhd", pk)
        num = torch.einsum("bhqd,bhde->bhqe", pq, kv)
        den = torch.einsum("bhqd,bhd->bhq", pq, z)[..., None] + 1e-6
        o = num / den
        return (lambda x, *d: x.permute(*d))(o, 0, 2, 1, 3).reshape(B, S, D) @ wo

    def _B_ref(u, log_A_real, A_imag, C_real, C_imag, log_dt, D_skip):
        L = u.shape[1]
        dt = torch.exp(log_dt)
        A = -torch.exp(log_A_real) + 1j * A_imag
        C = (C_real + 1j * C_imag) * dt[:, None]
        pos = (lambda x, dt: x.to(dt))(torch.arange(L), log_dt.dtype)
        P = torch.exp((A * dt[:, None])[:, :, None] * pos[None, None, :])
        K = 2.0 * torch.einsum("dn,dnl->dl", C, P).real
        L2 = 2 * L
        u_t = (lambda x, *d: x.permute(*d))(u, 0, 2, 1)
        Kf = (lambda x, *a, **k: torch.fft.rfft(x.float(), *a, **k))(K, L2)
        Uf = (lambda x, *a, **k: torch.fft.rfft(x.float(), *a, **k))(u_t, L2)
        y = (lambda x, *a, **k: torch.fft.irfft(x, *a, **k).to(torch.bfloat16))(Uf * Kf[None, :, :], L2)[:, :, :L]
        y = (lambda x, *d: x.permute(*d))(y, 0, 2, 1)
        return y + u * D_skip[None, None, :]

    a = _A_ref(A_x, A_wqkv, A_wo)
    b = _B_ref(B_u, B_log_A_real, B_A_imag, B_C_real, B_C_imag, B_log_dt, B_D_skip)
    return torch.concatenate([a, b], axis=-1)
```

```python
import re

TRANS = ("v_exp_f32","v_log_f32","v_rcp_f32","v_rsq_f32","v_sqrt_f32","v_sin_f32","v_cos_f32","v_rcp_iflag_f32")

def parse_regs(op):
    op = op.strip()
    op = op.replace("abs(", "").replace(")", "").lstrip("-").strip()
    m = re.fullmatch(r"([vsa])\[(\d+):(\d+)\]", op)
    if m:
        return [(m.group(1), i) for i in range(int(m.group(2)), int(m.group(3)) + 1)]
    m = re.fullmatch(r"([vsa])(\d+)", op)
    if m:
        return [(m.group(1), int(m.group(2)))]
    if op == "vcc": return [("s", 106), ("s", 107)]
    if op == "vcc_lo": return [("s", 106)]
    if op == "exec": return [("s", 126), ("s", 127)]
    if op == "m0": return [("s", 124)]
    return []

def mfma_info(mn):
    if "f32_16x16x4_f32" in mn: return ("sgemm", 8)
    if "f32_32x32x2_f32" in mn: return ("sgemm", 16)
    if "32x32x16" in mn: return ("xdl", 8)
    if "16x16x32" in mn: return ("xdl", 4)
    raise ValueError(mn)

class Ins:
    def __init__(self, text):
        self.text = text
        t = text.split(";")[0].strip()
        parts = t.split(None, 1)
        self.mn = parts[0]
        ops = []
        if len(parts) > 1:
            ops = [o.strip() for o in parts[1].split(",")]
            new = []
            for o in ops:
                new.append(o.split()[0] if o else o)
            self.mods = parts[1]
            ops = new
        else:
            self.mods = ""
        self.ops = ops
        mn = self.mn
        mo = re.search(r"offset:(\d+)", self.mods)
        if mo:
            ov = int(mo.group(1))
            if mn.startswith("buffer_"): assert ov < 4096, text
            if mn.startswith("ds_"): assert ov < 65536, text
            if mn.startswith("global_"): assert ov < 4096, text
        self.cls = None
        self.dst = []; self.src = []
        self.srcC = []; self.srcAB = []
        if mn.startswith("v_mfma"):
            self.cls = "mfma"; self.kind, self.passes = mfma_info(mn)
            self.dst = parse_regs(ops[0]); self.srcAB = parse_regs(ops[1]) + parse_regs(ops[2]); self.srcC = parse_regs(ops[3])
            self.src = self.srcAB + self.srcC
        elif mn.startswith("v_"):
            self.cls = "trans" if mn.replace("_e32","").replace("_e64","") in TRANS else "valu"
            nd = 1
            if mn.startswith(("v_add_co", "v_sub_co", "v_addc_co", "v_subb_co", "v_mad_u64", "v_div_scale")): nd = 2
            for o in ops[:nd]: self.dst += parse_regs(o)
            for o in ops[nd:]: self.src += parse_regs(o)
            if mn.startswith(("v_fmac", "v_fmamk", "v_pk_fmac", "v_writelane")) or "_swap" in mn: self.src += self.dst
            if "_swap" in mn: self.dst += parse_regs(ops[1])
            if mn.startswith("v_cndmask") and len(ops) == 3: self.src += [("s",106),("s",107)]
            if mn.startswith("v_div_fmas"): self.src += [("s",106),("s",107)]
            if "d16" in mn: self.src += self.dst
        elif mn in ("buffer_inv", "buffer_wbl2"):
            self.cls = "vmem"
        elif mn.startswith(("buffer_", "global_", "flat_")):
            self.cls = "vmem"
            isstore = "store" in mn
            islds = " lds" in (" " + self.mods) and re.search(r"\blds\b", self.mods) is not None
            if isstore or islds or "atomic" in mn:
                for o in ops: self.src += parse_regs(o)
                if islds: self.src += [("s",124)]
                if isstore:
                    self.sdata = parse_regs(ops[0]) if mn.startswith("buffer_") else parse_regs(ops[1])
                    self.wide = mn.endswith(("x3","x4"))
            else:
                self.dst = parse_regs(ops[0])
                for o in ops[1:]: self.src += parse_regs(o)
                if "d16" in mn: self.src += self.dst
        elif mn.startswith("ds_"):
            self.cls = "ds"
            if mn.startswith(("ds_write", "ds_add", "ds_max", "ds_min")):
                for o in ops: self.src += parse_regs(o)
            else:
                self.dst = parse_regs(ops[0])
                for o in ops[1:]: self.src += parse_regs(o)
                if "d16" in mn: self.src += self.dst
        elif mn.startswith("s_"):
            self.cls = "salu"
            if mn in ("s_nop",):
                self.cls = "nop"; self.n = int(ops[0]) + 1
            elif mn.startswith(("s_waitcnt","s_barrier","s_branch","s_cbranch","s_endpgm","s_setprio","s_sleep","s_cmp")):
                for o in ops: self.src += parse_regs(o)
            else:
                if ops:
                    self.dst = parse_regs(ops[0])
                    for o in ops[1:]: self.src += parse_regs(o)
                if "saveexec" in mn: self.dst += [("s",126),("s",127)]
        else:
            raise ValueError("unknown instr " + text)

def need(prod, cons):
    n = 0
    pd = set(prod.dst)
    cs = set(cons.src); cd = set(cons.dst)
    pv = {r for r in pd if r[0] in "va"}; ps = {r for r in pd if r[0] == "s"}
    if prod.cls in ("valu", "trans"):
        if prod.cls == "trans" and cons.cls == "valu" and (pv & (cs | cd)): n = max(n, 1)
        if cons.cls == "mfma" and (pv & cs): n = max(n, 2)
        if ps:
            if cons.cls in ("valu","trans") and (ps & cs):
                n = max(n, 4 if cons.mn.startswith(("v_readlane","v_writelane","v_div_fmas")) else 2)
            if cons.cls == "vmem" and (ps & cs): n = max(n, 5)
            if cons.cls == "salu" and (ps & cs): n = max(n, 1)
        if cons.cls == "valu" and cons.mn.startswith(("v_readfirstlane","v_readlane")) and (pv & cs): n = max(n, 1)
        if cons.cls == "valu" and ("permlane" in cons.mn or "dpp" in cons.mods or "row_" in cons.mods or "quad_perm" in cons.mods) and (pv & cs): n = max(n, 2)
    if prod.cls == "mfma":
        x = prod.kind == "xdl"; p = prod.passes
        tbl_valu = {2:5,4:8,8:12,16:20} if x else {2:4,4:6,8:10,16:18}
        if cons.cls in ("valu","trans","vmem","ds") and (pv & (cs | cd)): n = max(n, tbl_valu[p])
        if cons.cls == "mfma":
            if pv & set(cons.srcAB): n = max(n, tbl_valu[p])
            if pv & set(cons.srcC):
                if cons.srcC == prod.dst and cons.kind == prod.kind and cons.passes == p:
                    n = max(n, 2 if p == 2 else 0)
                else:
                    n = max(n, {2:4,4:6,8:10,16:18}[p])
            elif pv & cd:
                n = max(n, {2:4,4:6,8:10,16:18}[p])
        if x and cons.cls in ("valu","trans","ds","vmem") and (set(prod.srcC) & cd): n = max(n, {2:1,4:3,8:7,16:15}[p])
    if prod.cls == "salu" and (("s",124) in pd) and cons.cls == "vmem" and (("s",124) in cs): n = max(n, 1)
    if prod.cls == "vmem" and getattr(prod, "wide", False) and (set(prod.sdata) & cd):
        n = max(n, 2)
    return n

class Asm:
    def __init__(self):
        self.lines = []
    def __call__(self, s):
        for l in s.split("\n"):
            l = l.strip()
            if l: self.lines.append(l)
    def label(self, name):
        self.lines.append(name + ":")
    def raw(self, s):
        self.lines.append("#RAW " + s)
    def finalize(self):
        out = []
        window = []
        for l in self.lines:
            if l.startswith("#RAW "):
                out.append(l[5:]); window = []; continue
            if l.startswith(";"):
                out.append("    " + l); continue
            if re.match(r"^[A-Za-z_.][\w.]*:$", l):
                out.append(l)
                continue
            ins = Ins(l)
            req = 0
            dist = 0
            for p in reversed(window):
                w = need(p, ins) if p.cls != "nop" else 0
                if w > dist: req = max(req, w - dist)
                dist += p.n if p.cls == "nop" else 1
                if dist > 24: break
            while req > 0:
                k = min(req, 16)
                nop = Ins(f"s_nop {k-1}")
                out.append(f"    s_nop {k-1}")
                window.append(nop)
                req -= k
            out.append("    " + l)
            window.append(ins)
            if len(window) > 40: window = window[-40:]
        return "\n".join(out) + "\n"
```

```python
from asmlib import *
from partb import srd, WS_PQ, WS_PART, WS_MT, WS_ZF, WS_SIZE, LOG2E

STG = 20480
NST = 4
A1_LDS = STG * NST
KVP = 352
L_CMP = 64 * KVP
PSZ = 4 * 420 * 4

def phi_pair(a, x0, x1, t, dst):
    a(f"v_cvt_pk_bf16_f32 v{t}, v{x0}, v{x1}")
    a(f"v_lshlrev_b32 v{t+1}, 16, v{t}")
    a(f"v_and_b32 v{t+2}, s61, v{t}")
    a(f"v_mul_f32 v{t+3}, s60, v{t+1}")
    a(f"v_mul_f32 v{t+4}, s60, v{t+2}")
    a(f"v_exp_f32 v{t+3}, v{t+3}")
    a(f"v_exp_f32 v{t+4}, v{t+4}")
    a(f"v_add_f32 v{t+5}, 1.0, v{t+1}")
    a(f"v_add_f32 v{t+6}, 1.0, v{t+2}")
    a(f"v_cmp_lt_f32 vcc, 0, v{t+1}")
    a(f"v_cmp_lt_f32 s[44:45], 0, v{t+2}")
    a(f"v_cndmask_b32 v{t+3}, v{t+3}, v{t+5}, vcc")
    a(f"v_cndmask_b32 v{t+4}, v{t+4}, v{t+6}, s[44:45]")
    a(f"v_cvt_pk_bf16_f32 v{t}, v{t+3}, v{t+4}")
    a(f"v_lshlrev_b32 v{t+1}, 16, v{t}")
    a(f"v_and_b32 v{t+2}, s61, v{t}")
    a(f"v_add_f32 v{t+1}, s62, v{t+1}")
    a(f"v_add_f32 v{t+2}, s62, v{t+2}")
    a(f"v_cvt_pk_bf16_f32 v{dst}, v{t+1}, v{t+2}")

def a1(a):
    a("s_load_dwordx4 s[8:11], s[0:1], 0")
    a("s_load_dwordx2 s[12:13], s[0:1], 96")
    a("s_lshr_b32 s5, s2, 3")
    a("s_and_b32 s6, s2, 7")
    a("v_and_b32 v1, 63, v0")
    a("v_lshrrev_b32 v4, 6, v0")
    a("v_readfirstlane_b32 s4, v4")
    a("; STAMP 0")
    a("s_mul_i32 s7, s6, 160")
    for jj in range(4):
        g = 16; r = 17; c = 18; sg = 19
        a(f"v_lshl_add_u32 v{g}, v4, 6, v1")
        a(f"v_add_u32 v{g}, {256*jj}, v{g}")
        a(f"v_min_u32 v{g}, 959, v{g}")
        a(f"v_mul_u32_u24 v{r}, 2185, v{g}")
        a(f"v_lshrrev_b32 v{r}, 16, v{r}")
        a(f"v_mul_u32_u24 v{c}, 30, v{r}")
        a(f"v_sub_u32 v{c}, v{g}, v{c}")
        a(f"v_mul_u32_u24 v{sg}, 6554, v{c}")
        a(f"v_lshrrev_b32 v{sg}, 16, v{sg}")
        a(f"v_mul_u32_u24 v20, 10, v{sg}")
        a(f"v_sub_u32 v{c}, v{c}, v20")
        a(f"v_mul_u32_u24 v{r}, 3840, v{r}")
        a(f"v_mul_u32_u24 v{sg}, 1280, v{sg}")
        a(f"v_lshl_add_u32 v{r}, v{c}, 4, v{r}")
        a(f"v_add3_u32 v{8+jj}, v{r}, v{sg}, s7")
    a("v_lshrrev_b32 v16, 2, v1")
    a("v_and_b32 v17, 3, v1")
    a("v_bfe_u32 v18, v1, 4, 2")
    a("v_xor_b32 v17, v17, v18")
    a("s_lshl_b32 s7, s5, 6")
    a("v_lshl_add_u32 v16, v4, 4, v16")
    a("v_add_u32 v16, s7, v16")
    a("v_mul_u32_u24 v12, 1280, v16")
    a("v_lshl_add_u32 v12, v17, 4, v12")
    a("v_lshrrev_b32 v16, 4, v1")
    a("v_bfe_u32 v17, v1, 2, 2")
    a("v_and_b32 v18, 3, v1")
    a("v_lshl_add_u32 v13, v16, 2, v17")
    a("v_mul_u32_u24 v13, 480, v13")
    a("v_lshl_add_u32 v13, v18, 3, v13")
    a("v_lshl_add_u32 v13, v4, 7, v13")
    a("v_and_b32 v19, 15, v1")
    a("v_lshrrev_b32 v20, 1, v16")
    a("v_lshrrev_b32 v21, 2, v19")
    a("v_xor_b32 v20, v20, v21")
    a("v_xor_b32 v21, 2, v20")
    a("v_and_b32 v22, 1, v16")
    a("v_lshlrev_b32 v22, 3, v22")
    a("v_lshl_add_u32 v22, v19, 6, v22")
    a("v_add_u32 v22, 16384, v22")
    a("v_lshl_add_u32 v14, v20, 4, v22")
    a("v_lshl_add_u32 v15, v21, 4, v22")
    a(f"v_add_u32 v2, {2*STG}, v13")
    a(f"v_add_u32 v3, {2*STG}, v14")
    a(f"v_add_u32 v5, {2*STG}, v15")
    a("s_waitcnt lgkmcnt(0)")
    srd(a, 16, 8, 2048*640*2); srd(a, 20, 10, 640*1920*2); srd(a, 24, 12, WS_SIZE)
    a("s_lshl_b32 s28, s4, 10")
    a("s_mov_b32 s29, 0")
    a("s_mov_b32 s30, 0")
    def issue(stage):
        for jj in range(4):
            a(f"s_add_u32 m0, s28, {stage*STG + jj*4096}")
            a(f"buffer_load_dwordx4 v{8+jj}, s[20:23], s29 offen lds")
        a(f"s_add_u32 m0, s28, {stage*STG + 16384}")
        a(f"buffer_load_dwordx4 v12, s[16:19], s30 offen lds")
        a("s_add_u32 s29, s29, 122880")
        a("s_add_u32 s30, s30, 64")
    for st in range(3):
        issue(st)
    for r in range(96, 160):
        a(f"v_mov_b32 v{r}, 0")
    a("s_mov_b32 s31, 0")
    a.label("L_a1_loop")
    for st in range(4):
        a("s_waitcnt vmcnt(10)")
        a("s_barrier")
        issue((st + 3) % 4)
        base = (st & 1) * STG
        vb, va, va2 = (13, 14, 15) if st < 2 else (2, 3, 5)
        for ct in range(4):
            a(f"ds_read_b64_tr_b16 v[{32+4*ct}:{33+4*ct}], v{vb} offset:{base + ct*32}")
            a(f"ds_read_b64_tr_b16 v[{34+4*ct}:{35+4*ct}], v{vb} offset:{base + ct*32 + 7680}")
            rt = ct
            a(f"ds_read_b64 v[{48+4*rt}:{49+4*rt}], v{va} offset:{base + rt*1024}")
            a(f"ds_read_b64 v[{50+4*rt}:{51+4*rt}], v{va2} offset:{base + rt*1024}")
        for lvl in range(4):
            a(f"s_waitcnt lgkmcnt({12 - 4*lvl})")
            pairs = [(lvl, j) for j in range(lvl+1)] + [(j, lvl) for j in range(lvl)]
            for (ct, rt) in pairs:
                acc = 96 + 16*ct + 4*rt
                a(f"v_mfma_f32_16x16x32_bf16 v[{acc}:{acc+3}], v[{32+4*ct}:{35+4*ct}], v[{48+4*rt}:{51+4*rt}], v[{acc}:{acc+3}]")
    a("s_add_u32 s31, s31, 1")
    a("s_cmp_lt_u32 s31, 5")
    a("s_cbranch_scc1 L_a1_loop")
    a("; STAMP 1")
    a(f"s_mov_b32 s60, {LOG2E}")
    a("s_mov_b32 s61, 0xffff0000")
    a("s_mov_b32 s62, 0x358637bd")
    a("v_lshlrev_b32 v21, 3, v1")
    a(f"v_mul_u32_u24 v22, {KVP}, v19")
    a("v_lshl_add_u32 v22, v16, 3, v22")
    for slot in range(4):
        a(f"s_lshl_b32 s32, s4, 2")
        a(f"s_add_u32 s32, s32, {slot}")
        a("s_cmp_ge_u32 s32, 10")
        a(f"s_cbranch_scc1 L_a1_ep{slot}_v")
        for rt in range(4):
            acc = 96 + 16*slot + 4*rt
            phi_pair(a, acc, acc+1, 24, 32+8*slot+2*rt)
            phi_pair(a, acc+2, acc+3, 64, 33+8*slot+2*rt)
        a(f"s_branch L_a1_ep{slot}_done")
        a.label(f"L_a1_ep{slot}_v")
        for rt in range(4):
            acc = 96 + 16*slot + 4*rt
            a(f"v_cvt_pk_bf16_f32 v{32+8*slot+2*rt}, v{acc}, v{acc+1}")
            a(f"v_cvt_pk_bf16_f32 v{33+8*slot+2*rt}, v{acc+2}, v{acc+3}")
        a.label(f"L_a1_ep{slot}_done")
    a("s_waitcnt vmcnt(0)")
    a("s_barrier")
    for slot in range(4):
        a(f"s_lshl_b32 s32, s4, 2")
        a(f"s_add_u32 s32, s32, {slot}")
        a("s_cmp_ge_u32 s32, 15")
        a(f"s_cbranch_scc1 L_a1_st{slot}_done")
        a("s_cmp_ge_u32 s32, 5")
        a(f"s_cbranch_scc1 L_a1_st{slot}_lds")
        a("s_mul_i32 s35, s6, 5")
        a("s_add_u32 s35, s35, s32")
        a("s_lshl_b32 s35, s35, 9")
        a(f"s_mul_i32 s36, s5, {4*40*512}")
        a("s_add_u32 s35, s35, s36")
        for rt in range(4):
            a(f"s_add_u32 s36, s35, {WS_PQ + rt*40*512}")
            a(f"buffer_store_dwordx2 v[{32+8*slot+2*rt}:{33+8*slot+2*rt}], v21, s[24:27], s36 offen")
        a(f"s_branch L_a1_st{slot}_done")
        a.label(f"L_a1_st{slot}_lds")
        a("s_sub_u32 s35, s32, 5")
        a("s_lshl_b32 s35, s35, 5")
        a("v_add_u32 v23, s35, v22")
        for rt in range(4):
            a(f"ds_write_b64 v23, v[{32+8*slot+2*rt}:{33+8*slot+2*rt}] offset:{rt*16*KVP}")
        a.label(f"L_a1_st{slot}_done")
    a("s_waitcnt lgkmcnt(0)")
    a("s_barrier")
    a("; STAMP 2")
    a("v_lshl_add_u32 v13, v16, 2, v17")
    a(f"v_mul_u32_u24 v13, {KVP}, v13")
    a("v_lshl_add_u32 v13, v18, 3, v13")
    a("s_mul_i32 s35, s4, 40")
    a("v_add_u32 v13, s35, v13")
    for ks in range(2):
        for tl in range(2):
            a(f"ds_read_b64_tr_b16 v[{32+8*ks+4*tl}:{33+8*ks+4*tl}], v13 offset:{ks*32*KVP + tl*32}")
            a(f"ds_read_b64_tr_b16 v[{34+8*ks+4*tl}:{35+8*ks+4*tl}], v13 offset:{(ks*32+16)*KVP + tl*32}")
            a(f"ds_read_b64_tr_b16 v[{48+8*ks+4*tl}:{49+8*ks+4*tl}], v13 offset:{ks*32*KVP + 160 + tl*32}")
            a(f"ds_read_b64_tr_b16 v[{50+8*ks+4*tl}:{51+8*ks+4*tl}], v13 offset:{(ks*32+16)*KVP + 160 + tl*32}")
    a("v_cmp_eq_u32 vcc, 4, v19")
    a("v_mov_b32 v24, 0x3f803f80")
    a("s_waitcnt lgkmcnt(0)")
    for ks in range(2):
        for k in range(4):
            a(f"v_cndmask_b32 v{52+8*ks+k}, v{52+8*ks+k}, v24, vcc")
    for dtl in range(2):
        for etl in range(2):
            acc = 64 + 8*dtl + 4*etl
            a(f"v_mfma_f32_16x16x32_bf16 v[{acc}:{acc+3}], v[{32+4*dtl}:{35+4*dtl}], v[{48+4*etl}:{51+4*etl}], 0")
            a(f"v_mfma_f32_16x16x32_bf16 v[{acc}:{acc+3}], v[{40+4*dtl}:{43+4*dtl}], v[{56+4*etl}:{59+4*etl}], v[{acc}:{acc+3}]")
    a("v_mul_u32_u24 v24, 84, v16")
    a("v_add_u32 v24, v24, v19")
    a("s_mul_i32 s35, s4, 420")
    a("v_add_u32 v24, s35, v24")
    a("v_lshlrev_b32 v24, 2, v24")
    a(f"v_add_u32 v24, {L_CMP}, v24")
    a("v_cmp_gt_u32 s[36:37], 5, v19")
    a("v_cmp_gt_u32 s[38:39], 16, v1")
    a("s_and_b64 s[40:41], s[36:37], s[38:39]")
    for dtl in range(2):
        for etl in range(2):
            acc = 64 + 8*dtl + 4*etl
            m = {(0,0): None, (0,1): "s[36:37]", (1,0): "s[38:39]", (1,1): "s[40:41]"}[(dtl, etl)]
            if m: a(f"s_mov_b64 exec, {m}")
            for r in range(4):
                a(f"ds_write_b32 v24, v{acc+r} offset:{((16*dtl + r)*21 + 16*etl)*4}")
            if m: a("s_mov_b64 exec, -1")
    a("s_waitcnt lgkmcnt(0)")
    a("s_barrier")
    a("v_lshlrev_b32 v24, 4, v0")
    a(f"s_mul_i32 s35, s2, {PSZ}")
    a(f"s_add_u32 s35, s35, {WS_PART}")
    a(f"ds_read_b128 v[32:35], v24 offset:{L_CMP}")
    a(f"ds_read_b128 v[36:39], v24 offset:{L_CMP + 4096}")
    a("s_waitcnt lgkmcnt(0)")
    a("buffer_store_dwordx4 v[32:35], v24, s[24:27], s35 offen")
    a(f"v_cmp_gt_u32 vcc, {(PSZ - 4096)//16}, v0")
    a("s_and_saveexec_b64 s[36:37], vcc")
    a("s_add_u32 s35, s35, 4096")
    a("buffer_store_dwordx4 v[36:39], v24, s[24:27], s35 offen")
    a("s_endpgm")

WOP = 1312
L_KVT = 32 * WOP
A2R_LDS = L_KVT + 32 * 80

def a2r(a):
    a("s_load_dwordx2 s[8:9], s[0:1], 16")
    a("s_load_dwordx2 s[12:13], s[0:1], 96")
    a("v_and_b32 v1, 63, v0")
    a("v_lshrrev_b32 v4, 6, v0")
    a("v_readfirstlane_b32 s4, v4")
    a("s_lshr_b32 s5, s2, 2")
    a("s_and_b32 s6, s2, 3")
    a("s_waitcnt lgkmcnt(0)")
    srd(a, 16, 8, 640*640*2); srd(a, 24, 12, WS_SIZE)
    a(f"s_mul_i32 s29, s5, {PSZ}")
    a("s_mul_i32 s30, s6, 1680")
    a("s_add_u32 s29, s29, s30")
    a(f"s_add_u32 s29, s29, {WS_PART}")
    a("v_lshlrev_b32 v25, 2, v0")
    a("v_add_u32 v26, 1024, v25")
    a("v_min_u32 v26, 1676, v26")
    a("s_mov_b32 s34, s29")
    for rb in range(32):
        a(f"buffer_load_dword v{128+rb}, v25, s[24:27], s34 offen")
        a(f"buffer_load_dword v{160+rb}, v26, s[24:27], s34 offen")
        a(f"s_add_u32 s34, s34, {8*PSZ}")
    a("s_mul_i32 s28, s2, 25600")
    for i in range(10):
        a(f"v_add_u32 v16, {256*i}, v0")
        a("v_mul_u32_u24 v17, 52429, v16")
        a("v_lshrrev_b32 v17, 22, v17")
        a("v_mul_u32_u24 v18, 80, v17")
        a("v_sub_u32 v18, v16, v18")
        a("v_mul_u32_u24 v19, 1280, v17")
        a("v_lshl_add_u32 v19, v18, 4, v19")
        a("v_cmp_gt_u32 vcc, 20, v17")
        a("v_cndmask_b32 v19, -1, v19, vcc")
        a(f"v_mul_u32_u24 v{104+i}, {WOP}, v17")
        a(f"v_lshl_add_u32 v{104+i}, v18, 4, v{104+i}")
        a(f"buffer_load_dwordx4 v[{64+4*i}:{67+4*i}], v19, s[16:19], s28 offen")
    a("v_mov_b32 v20, 0"); a("v_mov_b32 v21, 0"); a("v_mov_b32 v22, 0"); a("v_mov_b32 v23, 0")
    a("v_lshlrev_b32 v24, 4, v0")
    a("v_cmp_gt_u32 vcc, 160, v0")
    a("s_and_saveexec_b64 s[30:31], vcc")
    a(f"ds_write_b128 v24, v[20:23] offset:{L_KVT}")
    a("s_mov_b64 exec, s[30:31]")
    a("s_waitcnt lgkmcnt(0)")
    a("s_barrier")
    a("s_waitcnt vmcnt(10)")
    for rnd in range(2):
        b = 128 + 32*rnd
        for st in (16, 8, 4, 2, 1):
            for k in range(st):
                a(f"v_add_f32 v{b+k}, v{b+k}, v{b+k+st}")
        if rnd == 1:
            a("v_cmp_gt_u32 vcc, 164, v0")
            a("s_and_saveexec_b64 s[30:31], vcc")
        a(f"v_add_u32 v16, {256*rnd}, v0")
        a("v_mul_u32_u24 v17, 49933, v16")
        a("v_lshrrev_b32 v17, 20, v17")
        a("v_mul_u32_u24 v18, 21, v17")
        a("v_sub_u32 v18, v16, v18")
        a("v_cmp_eq_u32 s[32:33], 20, v18")
        a(f"v_cvt_pk_bf16_f32 v28, v{b}, v{b}")
        a("v_mul_u32_u24 v26, 80, v17")
        a("v_lshl_add_u32 v26, v18, 1, v26")
        a("s_mov_b64 s[36:37], exec")
        a("s_andn2_b64 exec, exec, s[32:33]")
        a(f"ds_write_b16 v26, v28 offset:{L_KVT}")
        a("s_and_b64 exec, s[36:37], s[32:33]")
        a("v_lshlrev_b32 v28, 16, v28")
        a("s_mul_i32 s35, s2, 80")
        a(f"s_add_u32 s35, s35, {WS_ZF}")
        a("v_lshlrev_b32 v26, 2, v17")
        a("buffer_store_dword v28, v26, s[24:27], s35 offen")
        a("s_mov_b64 exec, -1")
    a("s_waitcnt vmcnt(0)")
    for i in range(10):
        a(f"ds_write_b128 v{104+i}, v[{64+4*i}:{67+4*i}]")
    a("s_waitcnt lgkmcnt(0)")
    a("s_barrier")
    a("v_lshrrev_b32 v16, 4, v1")
    a("v_bfe_u32 v17, v1, 2, 2")
    a("v_and_b32 v18, 3, v1")
    a("v_and_b32 v19, 15, v1")
    a("v_mul_u32_u24 v20, 80, v19")
    a("v_lshl_add_u32 v20, v16, 3, v20")
    for dtile in range(2):
        a(f"ds_read_b64 v[{32+4*dtile}:{33+4*dtile}], v20 offset:{L_KVT + dtile*16*80}")
        a(f"ds_read_b64 v[{34+4*dtile}:{35+4*dtile}], v20 offset:{L_KVT + dtile*16*80 + 32}")
    a("v_lshl_add_u32 v21, v16, 2, v17")
    a(f"v_mul_u32_u24 v21, {WOP}, v21")
    a("v_lshl_add_u32 v21, v18, 3, v21")
    a("s_mul_i32 s35, s4, 320")
    a("v_add_u32 v21, s35, v21")
    a("s_mul_i32 s35, s2, 5")
    for dtile in range(2):
        d = 22 + dtile
        a(f"v_add_u32 v24, s35, v16")
        if dtile: a("v_add_u32 v24, 4, v24")
        a("v_lshrrev_b32 v25, 3, v24")
        a("v_and_b32 v26, 3, v24")
        a("v_bfe_u32 v27, v24, 2, 1")
        a(f"v_lshlrev_b32 v{d}, 10, v25")
        a(f"v_lshl_add_u32 v{d}, v26, 8, v{d}")
        a(f"v_lshl_add_u32 v{d}, v19, 4, v{d}")
        a(f"v_lshl_add_u32 v{d}, v27, 3, v{d}")
    a(f"s_mul_i32 s36, s4, {10*20*1024}")
    a(f"s_add_u32 s36, s36, {WS_MT}")
    a("v_cmp_gt_u32 s[38:39], 16, v1")
    for ct in range(10):
        a(f"ds_read_b64_tr_b16 v[{40+4*ct}:{41+4*ct}], v21 offset:{ct*32}")
        a(f"ds_read_b64_tr_b16 v[{42+4*ct}:{43+4*ct}], v21 offset:{ct*32 + 16*WOP}")
    for ct in range(10):
        a(f"s_waitcnt lgkmcnt({min(15, 18 - 2*ct)})")
        r0 = 80 + 8*(ct & 1)
        a(f"v_mfma_f32_16x16x32_bf16 v[{r0}:{r0+3}], v[32:35], v[{40+4*ct}:{43+4*ct}], 0")
        a(f"v_mfma_f32_16x16x32_bf16 v[{r0+4}:{r0+7}], v[36:39], v[{40+4*ct}:{43+4*ct}], 0")
        p = 96 + 4*(ct & 1)
        a(f"v_cvt_pk_bf16_f32 v{p}, v{r0}, v{r0+1}")
        a(f"v_cvt_pk_bf16_f32 v{p+1}, v{r0+2}, v{r0+3}")
        a(f"v_cvt_pk_bf16_f32 v{p+2}, v{r0+4}, v{r0+5}")
        a(f"v_cvt_pk_bf16_f32 v{p+3}, v{r0+6}, v{r0+7}")
        a(f"s_add_u32 s37, s36, {ct*20*1024}")
        a(f"buffer_store_dwordx2 v[{p}:{p+1}], v22, s[24:27], s37 offen")
        a("s_mov_b64 exec, s[38:39]")
        a(f"buffer_store_dwordx2 v[{p+2}:{p+3}], v23, s[24:27], s37 offen")
        a("s_mov_b64 exec, -1")
    a("s_endpgm")

L_Z = 2 * 40 * 512
A3_LDS = L_Z + 2560

def a3(a):
    a("s_load_dwordx2 s[8:9], s[0:1], 80")
    a("s_load_dwordx2 s[12:13], s[0:1], 96")
    a("v_and_b32 v1, 63, v0")
    a("v_lshrrev_b32 v4, 6, v0")
    a("v_readfirstlane_b32 s4, v4")
    a("s_mul_i32 s5, s2, 52429")
    a("s_lshr_b32 s5, s5, 18")
    a("s_mul_i32 s6, s5, 5")
    a("s_sub_u32 s6, s2, s6")
    a("; STAMP 0")
    a("v_lshrrev_b32 v16, 4, v1")
    a("v_and_b32 v19, 15, v1")
    a("v_lshlrev_b32 v5, 4, v1")
    a("s_waitcnt lgkmcnt(0)")
    srd(a, 16, 8, 2048*1280*2); srd(a, 24, 12, WS_SIZE)
    a(f"s_mul_i32 s28, s5, {2*40*512}")
    a("s_mul_i32 s29, s4, 10240")
    a("s_add_u32 s28, s28, s29")
    for i in range(10):
        a(f"s_add_u32 m0, s29, {i*1024}")
        a(f"s_add_u32 s30, s28, {WS_PQ + i*1024}")
        a("buffer_load_dwordx4 v5, s[24:27], s30 offen lds")
    a("s_mul_i32 s30, s4, 640")
    a(f"s_add_u32 m0, s30, {L_Z}")
    a(f"s_add_u32 s30, s30, {WS_ZF}")
    a("v_cmp_gt_u32 vcc, 40, v1")
    a("s_and_saveexec_b64 s[32:33], vcc")
    a("buffer_load_dwordx4 v5, s[24:27], s30 offen lds")
    a("s_mov_b64 exec, s[32:33]")
    a("s_lshl_b32 s29, s6, 3")
    a("s_lshl_b32 s30, s4, 1")
    a("s_add_u32 s29, s29, s30")
    a("s_mul_i32 s30, s29, 20480")
    a(f"s_add_u32 s30, s30, {WS_MT}")
    for t in range(20):
        for ct in range(2):
            if (t % 4) == 0:
                a(f"s_add_u32 s{34+ct}, s30, {ct*20480 + t*1024}")
            a(f"buffer_load_dwordx4 v[{40+8*t+4*ct}:{43+8*t+4*ct}], v5, s[24:27], s{34+ct} offen offset:{(t%4)*1024}")
    a("; STAMP 1")
    a("s_waitcnt vmcnt(40)")
    a("s_barrier")
    a("; STAMP 2")
    a("; STAMP 3")
    a("s_mov_b32 s61, 0xffff0000")
    a("s_mov_b32 s62, 0x358637bd")
    a("v_and_b32 v6, 31, v0")
    a("v_lshrrev_b32 v7, 5, v0")
    a("v_lshrrev_b32 v8, 4, v6")
    a("v_mul_u32_u24 v8, 20480, v8")
    a("v_and_b32 v9, 15, v6")
    a("v_lshl_add_u32 v8, v9, 3, v8")
    a("v_mul_u32_u24 v9, 2560, v7")
    a("v_add_u32 v8, v8, v9")
    a("v_mul_u32_u24 v13, 320, v7")
    for hd in range(4):
        for i in range(5):
            qd = 5*hd + i
            a(f"ds_read_b64 v[{200+2*i}:{201+2*i}], v8 offset:{(qd>>2)*512 + (qd&3)*128}")
            a(f"ds_read_b128 v[{212+4*i}:{215+4*i}], v13 offset:{L_Z + hd*80 + 16*i}")
        a("v_mov_b32 v18, 0")
        a("s_waitcnt lgkmcnt(0)")
        for i in range(10):
            a(f"v_lshlrev_b32 v{20+2*i}, 16, v{200+i}")
            a(f"v_and_b32 v{21+2*i}, s61, v{200+i}")
            a(f"v_fmac_f32 v18, v{20+2*i}, v{212+2*i}")
            a(f"v_fmac_f32 v18, v{21+2*i}, v{213+2*i}")
        a("v_cvt_pk_bf16_f32 v18, v18, v18")
        a("v_lshlrev_b32 v18, 16, v18")
        a("v_add_f32 v18, s62, v18")
        a("v_cvt_pk_bf16_f32 v18, v18, v18")
        a("v_lshlrev_b32 v18, 16, v18")
        a("v_rcp_f32 v18, v18")
        for i in range(10):
            a(f"v_mul_f32 v{20+2*i}, v{20+2*i}, v18")
            a(f"v_mul_f32 v{21+2*i}, v{21+2*i}, v18")
            a(f"v_cvt_pk_bf16_f32 v{200+i}, v{20+2*i}, v{21+2*i}")
        for i in range(5):
            qd = 5*hd + i
            a(f"ds_write_b64 v8, v[{200+2*i}:{201+2*i}] offset:{(qd>>2)*512 + (qd&3)*128}")
    a("s_waitcnt lgkmcnt(0)")
    a("s_barrier")
    a("; STAMP 4")
    a("v_lshlrev_b32 v15, 3, v1")
    for r in range(24, 40):
        a(f"v_mov_b32 v{r}, 0")
    AF = [200, 208, 216, 224]
    def lda(t):
        f = AF[t % 4]
        for rt in range(2):
            a(f"ds_read_b64 v[{f+4*rt}:{f+4*rt+1}], v15 offset:{rt*20480 + t*1024}")
            a(f"ds_read_b64 v[{f+4*rt+2}:{f+4*rt+3}], v15 offset:{rt*20480 + t*1024 + 512}")
    lda(0); lda(1); lda(2)
    for t in range(20):
        if t + 3 < 20:
            lda(t+3)
        rem = min(3, 19 - t)
        a(f"s_waitcnt vmcnt({2*(19-t)}) lgkmcnt({4*rem})")
        f = AF[t % 4]
        for ct in range(2):
            for rt in range(2):
                acc = 24 + 8*ct + 4*rt
                a(f"v_mfma_f32_16x16x32_bf16 v[{acc}:{acc+3}], v[{40+8*t+4*ct}:{43+8*t+4*ct}], v[{f+4*rt}:{f+4*rt+3}], v[{acc}:{acc+3}]")
    a("; STAMP 5")
    a("s_lshl_b32 s7, s5, 5")
    a("v_add_u32 v12, s7, v19")
    a("v_mul_u32_u24 v12, 2560, v12")
    a("v_lshl_add_u32 v12, v16, 3, v12")
    a("s_lshl_b32 s29, s29, 5")
    for ct in range(2):
        for rt in range(2):
            acc = 24 + 8*ct + 4*rt
            a(f"v_cvt_pk_bf16_f32 v{acc}, v{acc}, v{acc+1}")
            a(f"v_cvt_pk_bf16_f32 v{acc+1}, v{acc+2}, v{acc+3}")
            a(f"s_add_u32 s30, s29, {rt*16*2560 + ct*32}")
            a(f"buffer_store_dwordx2 v[{acc}:{acc+1}], v12, s[16:19], s30 offen")
    a("s_endpgm")
```

```python
from asmlib import *

DEBUG_DUMP = False
WS_PQ = 0
WS_PART = 0x280000
PSZ = 18 * 1024
WS_KX = 0x700000
KXP = 4416
WS_MT = 0xA00000
WS_ZF = 0xB00000
WS_SIZE = 0x1000000
LOG2E = "0x3fb8aa3b"
NLOG2E = "0xbfb8aa3b"

def srd(a, d, base, nbytes):
    a(f"s_mov_b32 s{d}, s{base}")
    a(f"s_mov_b32 s{d+1}, s{base+1}")
    a(f"s_mov_b32 s{d+2}, {nbytes}")
    a(f"s_mov_b32 s{d+3}, 0x00020000")

def emit_p0(a, vi, d0, d1, d2, t0, t1):
    a(f"v_and_b32 v{d0}, 7, v{vi}")
    a(f"v_and_b32 v{t0}, 8, v{vi}")
    a(f"v_lshlrev_b32 v{t0}, 4, v{t0}")
    a(f"v_or_b32 v{d0}, v{d0}, v{t0}")
    a(f"v_and_b32 v{t0}, 4, v{vi}")
    a(f"v_lshlrev_b32 v{t0}, 5, v{t0}")
    a(f"v_and_b32 v{t1}, 3, v{vi}")
    a(f"v_lshlrev_b32 v{t1}, 1, v{t1}")
    a(f"v_add3_u32 v{d1}, v{t0}, v{t1}, 0")
    a(f"v_add_u32 v{d1}, 0x100, v{d1}")
    a(f"v_and_b32 v{t0}, 6, v{vi}")
    a(f"v_lshlrev_b32 v{t0}, 6, v{t0}")
    a(f"v_and_b32 v{t1}, 1, v{vi}")
    a(f"v_lshlrev_b32 v{t1}, 2, v{t1}")
    a(f"v_add_u32 v{t0}, v{t0}, v{t1}")
    a(f"v_add_u32 v{t0}, 0x200, v{t0}")
    a(f"v_cmp_gt_u32 vcc, 8, v{vi}")
    a(f"v_cndmask_b32 v{d1}, v{t0}, v{d1}, vcc")
    a(f"v_lshlrev_b32 v{t0}, 7, v{vi}")
    a(f"v_add_u32 v{t0}, 0x400, v{t0}")
    a(f"v_mov_b32 v{t1}, 0x800")
    a(f"v_cndmask_b32 v{d2}, v{t1}, v{t0}, vcc")

def kgen(a, wg_base):
    a(f"s_sub_u32 s3, s2, {wg_base}")
    a("s_load_dwordx8 s[8:15], s[0:1], 32")
    a("s_load_dwordx2 s[16:17], s[0:1], 64")
    a("s_load_dwordx2 s[18:19], s[0:1], 96")
    a("v_and_b32 v1, 63, v0")
    a("v_and_b32 v2, 15, v0")
    a("v_bfe_u32 v3, v0, 4, 2")
    a("v_lshrrev_b32 v4, 6, v0")
    a("v_lshrrev_b32 v5, 4, v0")
    a("v_mul_u32_u24 v5, 24, v5")
    a("s_mul_i32 s44, s3, 384")
    a("s_lshl_b32 s45, s3, 1")
    a("s_waitcnt lgkmcnt(0)")
    srd(a, 20, 8, 640*192*2); srd(a, 24, 10, 640*192*2); srd(a, 28, 12, 640*192*2); srd(a, 32, 14, 640*192*2)
    srd(a, 36, 16, 1280); srd(a, 40, 18, WS_SIZE)
    a("buffer_load_ushort v32, off, s[36:39], s45")
    for k, (sr, vb) in enumerate(((20, 8), (24, 14), (28, 20), (32, 26))):
        a(f"buffer_load_dwordx4 v[{vb}:{vb+3}], v5, s[{sr}:{sr+3}], s44 offen")
        a(f"buffer_load_dwordx2 v[{vb+4}:{vb+5}], v5, s[{sr}:{sr+3}], s44 offen offset:16")
    emit_p0(a, 2, 35, 36, 37, 52, 53)
    a("v_lshlrev_b32 v34, 3, v2")
    for r in (34, 35, 36, 37):
        a(f"v_cvt_f32_u32 v{r}, v{r}")
    for r in range(40, 52):
        a(f"v_mov_b32 v{r}, 0")
    a("v_mov_b32 v52, 0")
    a("v_mov_b32 v53, 4400")
    a("ds_write_b16 v53, v52")
    a(f"s_mov_b32 s46, {LOG2E}")
    a(f"s_mov_b32 s47, {NLOG2E}")
    a("s_mov_b32 s48, 0xffff0000")
    a("s_waitcnt vmcnt(0)")
    a("v_lshlrev_b32 v32, 16, v32")
    a("v_mul_f32 v32, s46, v32")
    a("v_exp_f32 v32, v32")
    a("v_cvt_pk_bf16_f32 v32, v32, v32")
    a("v_lshlrev_b32 v32, 16, v32")
    a("v_add_f32 v33, v32, v32")
    for t in range(12):
        dw = t >> 1
        def unpack(dst, base):
            if t & 1: a(f"v_and_b32 v{dst}, s48, v{base+dw}")
            else: a(f"v_lshlrev_b32 v{dst}, 16, v{base+dw}")
        unpack(52, 8); unpack(53, 14); unpack(54, 20); unpack(55, 26)
        a("v_mul_f32 v52, s46, v52")
        a("v_exp_f32 v52, v52")
        a("v_mul_f32 v53, v53, v32")
        a("v_mul_f32 v54, v54, v33")
        a("v_cvt_pk_bf16_f32 v52, v52, v52")
        a("v_mul_f32 v55, v55, v33")
        a("v_lshlrev_b32 v52, 16, v52")
        a("v_mul_f32 v53, 0.15915494, v53")
        a("v_mul_f32 v52, v52, v32")
        a("v_mul_f32 v52, s47, v52")
        for k in range(4):
            p = 34 + k
            e, th, c, s = 56 + 4*k, 57 + 4*k, 58 + 4*k, 59 + 4*k
            a(f"v_mul_f32 v{e}, v52, v{p}")
            a(f"v_mul_f32 v{th}, v53, v{p}")
            a(f"v_exp_f32 v{e}, v{e}")
            a(f"v_fract_f32 v{th}, v{th}")
            a(f"v_cos_f32 v{c}, v{th}")
            a(f"v_sin_f32 v{s}, v{th}")
        a("v_mul_f32 v72, v56, v58")
        a("v_mul_f32 v73, v56, v59")
        for g in range(3):
            e, c, s = 60 + 4*g, 62 + 4*g, 63 + 4*g
            t1, t2 = 74, 75
            rr, ri = 76 + 2*g, 77 + 2*g
            a(f"v_mul_f32 v{t1}, v54, v{e}")
            a(f"v_mul_f32 v{t2}, v55, v{e}")
            a(f"v_mul_f32 v{rr}, v{t1}, v{c}")
            a(f"v_mul_f32 v{ri}, v{t1}, v{s}")
            a(f"v_fma_f32 v{rr}, -v{t2}, v{s}, v{rr}")
            a(f"v_fma_f32 v{ri}, -v{t2}, v{c}, -v{ri}")
        for g in range(3):
            a(f"v_mfma_f32_16x16x4_f32 v[{40+4*g}:{43+4*g}], v{76+2*g}, v72, v[{40+4*g}:{43+4*g}]")
        for g in range(3):
            a(f"v_mfma_f32_16x16x4_f32 v[{40+4*g}:{43+4*g}], v{77+2*g}, v73, v[{40+4*g}:{43+4*g}]")
    a("v_mul_u32_u24 v52, 3, v4")
    a("v_lshlrev_b32 v52, 6, v52")
    a("v_add_u32 v52, v52, v1")
    a("v_lshlrev_b32 v52, 4, v52")
    for g in range(3):
        a(f"ds_write_b128 v52, v[{40+4*g}:{43+4*g}] offset:{8192 + g*1024}")
    a("s_waitcnt lgkmcnt(0)")
    a("s_barrier")
    a("v_lshlrev_b32 v52, 4, v1")
    a("v_lshl_add_u32 v52, v4, 2, v52")
    for w in range(4):
        for g in range(3):
            a(f"ds_read_b32 v{56 + w*3 + g}, v52 offset:{8192 + (w*3+g)*1024}")
    a("v_lshl_add_u32 v53, v3, 2, v4")
    emit_p0(a, 53, 68, 69, 70, 54, 55)
    a("v_lshlrev_b32 v54, 3, v2")
    for g in range(3):
        a(f"v_add_lshl_u32 v{68+g}, v{68+g}, v54, 1")
    a("s_waitcnt lgkmcnt(0)")
    for g in range(3):
        a(f"v_add_f32 v{56+g}, v{56+g}, v{59+g}")
        a(f"v_add_f32 v{62+g}, v{62+g}, v{65+g}")
        a(f"v_add_f32 v{56+g}, v{56+g}, v{62+g}")
        a(f"v_cvt_pk_bf16_f32 v{56+g}, v{56+g}, v{56+g}")
        a(f"ds_write_b16 v{68+g}, v{56+g}")
    a("s_waitcnt lgkmcnt(0)")
    a("s_barrier")
    a(f"s_mul_i32 s44, s3, {KXP}")
    a(f"s_add_u32 s44, s44, {WS_KX}")
    a("s_movk_i32 s45, 0x800")
    a("v_mov_b32 v79, 4400")
    for it in range(2):
        if it == 1:
            a("v_cmp_gt_u32 vcc, 20, v0")
            a("s_and_saveexec_b64 s[50:51], vcc")
            a("s_cbranch_execz L_kgen_done")
            a("v_add_u32 v52, 0x100, v0")
        else:
            a("v_mov_b32 v52, v0")
        a("v_lshlrev_b32 v53, 3, v52")
        for i in range(8):
            a(f"v_add_u32 v{54+i}, {i}, v53")
            a(f"v_sub_u32 v{62+i}, s45, v{54+i}")
            a(f"v_cvt_f32_i32 v{62+i}, v{62+i}")
        for i in range(0, 8, 2):
            a(f"v_cvt_pk_bf16_f32 v{70}, v{62+i}, v{63+i}")
            a(f"v_lshlrev_b32 v{62+i}, 16, v70")
            a(f"v_and_b32 v{63+i}, s48, v70")
        for i in range(8):
            a(f"v_cvt_u32_f32 v{62+i}, v{62+i}")
            a(f"v_lshlrev_b32 v{62+i}, 1, v{62+i}")
            a(f"v_add_u32 v{54+i}, -1, v{54+i}")
            a(f"v_cmp_gt_u32 vcc, s45, v{54+i}")
            a(f"v_cndmask_b32 v{62+i}, v79, v{62+i}, vcc")
        for i in range(8):
            a(f"ds_read_u16 v{54+i}, v{62+i}")
        a("v_lshlrev_b32 v53, 4, v52")
        a("s_waitcnt lgkmcnt(0)")
        for i in range(0, 8, 2):
            a(f"v_lshl_or_b32 v{72+i//2}, v{55+i}, 16, v{54+i}")
        a("buffer_store_dwordx4 v[72:75], v53, s[40:43], s44 offen")
    a.label("L_kgen_done")
    a("s_endpgm")

KCP = 4416
L_KC = 0
L_UD = 16 * KCP
UDP = 96 * 80
L_UL = L_UD + 4 * UDP
CONV_LDS = L_UL + 16384
YTP = 4096 + 64

def conv(a, wg_base):
    a(f"s_sub_u32 s3, s2, {wg_base}")
    a("s_lshl_b32 s3, s3, 2")
    a("; STAMP 0")
    a("s_load_dwordx2 s[8:9], s[0:1], 24")
    a("s_load_dwordx2 s[10:11], s[0:1], 72")
    a("s_load_dwordx2 s[12:13], s[0:1], 80")
    a("s_load_dwordx2 s[14:15], s[0:1], 96")
    a("v_and_b32 v1, 63, v0")
    a("v_lshrrev_b32 v4, 6, v0")
    a("v_readfirstlane_b32 s4, v4")
    a("s_waitcnt lgkmcnt(0)")
    srd(a, 16, 8, 2048*640*2); srd(a, 20, 10, 1280); srd(a, 24, 12, 2048*1280*2); srd(a, 28, 14, WS_SIZE)
    a("s_lshl_b32 s32, s3, 1")
    a("v_mul_u32_u24 v5, 1280, v0")
    for i in range(8):
        a(f"s_add_u32 s33, s32, {i*256*1280}")
        a(f"buffer_load_dwordx2 v[{8+2*i}:{9+2*i}], v5, s[16:19], s33 offen")
    a("s_add_u32 s34, s3, s4")
    a(f"s_mul_i32 s34, s34, {KXP}")
    a(f"s_add_u32 s34, s34, {WS_KX - 8}")
    a("v_lshlrev_b32 v6, 4, v1")
    a("s_add_u32 s40, s34, 4096")
    for i in range(5):
        so, oo = ("s34", i*1024) if i < 4 else ("s40", 0)
        a(f"buffer_load_dwordx2 v[{24+6*i}:{25+6*i}], v6, s[28:31], {so} offen offset:{oo}")
        a(f"buffer_load_dwordx4 v[{26+6*i}:{29+6*i}], v6, s[28:31], {so} offen offset:{oo+8}")
    a("buffer_load_dwordx2 v[56:57], off, s[20:23], s32")
    a("v_mov_b32 v60, 0"); a("v_mov_b32 v61, 0"); a("v_mov_b32 v62, 0"); a("v_mov_b32 v63, 0")
    a(f"v_mul_u32_u24 v7, {UDP}, v4")
    a("v_lshl_add_u32 v7, v1, 4, v7")
    a(f"v_add_u32 v7, {L_UD}, v7")
    a(f"ds_write_b128 v7, v[60:63]")
    a(f"ds_write_b128 v7, v[60:63] offset:1024")
    a("v_cmp_gt_u32 vcc, 32, v1")
    a("s_and_saveexec_b64 s[36:37], vcc")
    a(f"ds_write_b128 v7, v[60:63] offset:2048")
    a("s_mov_b64 exec, s[36:37]")
    a("v_lshlrev_b32 v7, 3, v0")
    a(f"v_add_u32 v7, {L_UL}, v7")
    for i in range(8):
        a(f"s_waitcnt vmcnt({18 - i})")
        a(f"ds_write_b64 v7, v[{8+2*i}:{9+2*i}] offset:{i*2048}")
    a("; STAMP 1")
    a(f"s_mul_i32 s35, s4, {4*KCP}")
    a("v_add_u32 v7, s35, v6")
    for i in range(5):
        a(f"s_waitcnt vmcnt({9 - 2*i})")
        d = 24 + 6*i
        if i == 4:
            a("v_cmp_gt_u32 vcc, 20, v1")
            a("s_and_saveexec_b64 s[36:37], vcc")
        if i == 0:
            a("v_cmp_eq_u32 vcc, 0, v1")
            a(f"v_cndmask_b32 v{d}, v{d}, 0, vcc")
            a(f"v_cndmask_b32 v{d+1}, v{d+1}, 0, vcc")
        a(f"ds_write_b128 v7, v[{d+2}:{d+5}] offset:{i*1024}")
        for j in range(4):
            a(f"v_alignbit_b32 v{64+j}, v{d+2+j}, v{d+1+j}, 16")
        a(f"ds_write_b128 v7, v[64:67] offset:{i*1024 + KCP}")
        for j in range(4):
            a(f"v_mov_b32 v{68+j}, v{d+1+j}")
        a(f"ds_write_b128 v7, v[68:71] offset:{i*1024 + 2*KCP}")
        for j in range(4):
            a(f"v_alignbit_b32 v{72+j}, v{d+1+j}, v{d+j}, 16")
        a(f"ds_write_b128 v7, v[72:75] offset:{i*1024 + 3*KCP}")
        if i == 4:
            a("s_mov_b64 exec, s[36:37]")
    a("s_waitcnt lgkmcnt(0)")
    a("s_barrier")
    a("; STAMP 2")
    a("v_lshrrev_b32 v8, 4, v1")
    a("v_bfe_u32 v9, v1, 2, 2")
    a("v_and_b32 v10, 3, v1")
    a("v_lshlrev_b32 v11, 4, v8")
    a("v_lshl_add_u32 v11, v10, 2, v11")
    a("v_add_u32 v11, v11, v9")
    a("v_lshl_add_u32 v11, v4, 9, v11")
    a("v_lshlrev_b32 v11, 3, v11")
    a(f"v_add_u32 v11, {L_UL}, v11")
    a("v_lshlrev_b32 v12, 4, v8")
    a("v_lshl_add_u32 v12, v9, 2, v12")
    a("v_lshl_add_u32 v12, v4, 9, v12")
    a("v_lshrrev_b32 v13, 5, v12")
    a("v_and_b32 v14, 31, v12")
    a("v_mul_u32_u24 v13, 80, v13")
    a("v_lshl_add_u32 v13, v14, 1, v13")
    a(f"v_mul_u32_u24 v14, {UDP}, v10")
    a("v_add_u32 v13, v13, v14")
    a(f"v_add_u32 v13, {L_UD + 32*80}, v13")
    for s in range(8):
        a(f"ds_read_b64_tr_b16 v[{16+2*s}:{17+2*s}], v11 offset:{s*512}")
    for s in range(8):
        a(f"s_waitcnt lgkmcnt({7-s})")
        a(f"ds_write_b64 v13, v[{16+2*s}:{17+2*s}] offset:{s*160}")
    a("s_waitcnt lgkmcnt(0)")
    a("s_barrier")
    if DEBUG_DUMP:
        a("s_cmp_lg_u32 s3, 0")
        a("s_cbranch_scc1 L_nodump")
        a("v_lshlrev_b32 v8, 4, v0")
        for i in range(CONV_LDS // 4096 + 1):
            a(f"v_add_u32 v9, {i*4096}, v8")
            a("ds_read_b128 v[12:15], v9")
            a("s_waitcnt lgkmcnt(0)")
            a("buffer_store_dwordx4 v[12:15], v9, s[28:31], 0 offen")
            a("s_waitcnt vmcnt(0)")
        a.label("L_nodump")
    a("; STAMP 3")
    a("v_and_b32 v8, 31, v1")
    a("v_lshrrev_b32 v9, 5, v1")
    a("v_and_b32 v10, 3, v8")
    a(f"v_mul_u32_u24 v10, {KCP}, v10")
    a("v_and_b32 v11, 28, v8")
    a("v_sub_u32 v11, 32, v11")
    a("v_lshl_add_u32 v11, v9, 3, v11")
    a("v_lshl_add_u32 v10, v11, 1, v10")
    a("v_add_u32 v10, s35, v10")
    a("v_mul_u32_u24 v11, 80, v8")
    a("v_lshl_add_u32 v11, v9, 4, v11")
    a(f"v_mul_u32_u24 v12, {UDP}, v4")
    a("v_add_u32 v11, v11, v12")
    a(f"v_add_u32 v11, {L_UD + 80}, v11")
    ACC0, ACC1 = 64, 80
    for r in range(32):
        a(f"v_mov_b32 v{64+r}, 0")
    steps = [(d, e0) for d in range(32) for e0 in (0, 16)]
    FR = [96, 112, 128]
    def loads(si):
        d, e0 = steps[si]; f = FR[si % 3]
        oa = 64*(63-d) + 2*e0; oa2 = 64*(63-(d+32)) + 2*e0
        a(f"ds_read_b64 v[{f}:{f+1}], v10 offset:{oa}")
        a(f"ds_read_b64 v[{f+2}:{f+3}], v10 offset:{oa+8}")
        a(f"ds_read_b128 v[{f+8}:{f+11}], v11 offset:{(31-d)*80 + 2*e0}")
        a(f"ds_read_b128 v[{f+12}:{f+15}], v11 offset:{(63-d)*80 + 2*e0}")
        a(f"ds_read_b64 v[{f+4}:{f+5}], v10 offset:{oa2}")
        a(f"ds_read_b64 v[{f+6}:{f+7}], v10 offset:{oa2+8}")
    loads(0); loads(1)
    n = len(steps)
    for si in range(n):
        if si + 2 < n:
            loads(si + 2)
            a("s_waitcnt lgkmcnt(12)")
        elif si + 1 < n:
            a("s_waitcnt lgkmcnt(6)")
        else:
            a("s_waitcnt lgkmcnt(0)")
        f = FR[si % 3]
        a(f"v_mfma_f32_32x32x16_bf16 v[{ACC0}:{ACC0+15}], v[{f}:{f+3}], v[{f+8}:{f+11}], v[{ACC0}:{ACC0+15}]")
        a(f"v_mfma_f32_32x32x16_bf16 v[{ACC1}:{ACC1+15}], v[{f}:{f+3}], v[{f+12}:{f+15}], v[{ACC1}:{ACC1+15}]")
        a(f"v_mfma_f32_32x32x16_bf16 v[{ACC1}:{ACC1+15}], v[{f+4}:{f+7}], v[{f+8}:{f+11}], v[{ACC1}:{ACC1+15}]")
    a("; STAMP 4")
    a("s_barrier")
    a("v_lshlrev_b32 v12, 6, v8")
    a("v_lshl_add_u32 v12, v9, 3, v12")
    a(f"v_mul_u32_u24 v13, {YTP}, v4")
    a("v_add_u32 v12, v12, v13")
    for t in range(2):
        for qd in range(4):
            r = 64 + 16*t + 4*qd
            a(f"v_cvt_pk_bf16_f32 v{96+2*(qd&1)}, v{r}, v{r+1}")
            a(f"v_cvt_pk_bf16_f32 v{97+2*(qd&1)}, v{r+2}, v{r+3}")
            a(f"ds_write_b64 v12, v[{96+2*(qd&1)}:{97+2*(qd&1)}] offset:{t*2048 + qd*16}")
    a("s_waitcnt lgkmcnt(0)")
    a("s_barrier")
    a("; STAMP 5")
    a("v_lshrrev_b32 v8, 4, v1")
    a("v_bfe_u32 v9, v1, 2, 2")
    a("v_and_b32 v10, 3, v1")
    a("v_lshlrev_b32 v11, 4, v8")
    a("v_lshl_add_u32 v11, v10, 2, v11")
    a("v_lshl_add_u32 v11, v4, 9, v11")
    a("v_lshlrev_b32 v11, 1, v11")
    a(f"v_mul_u32_u24 v12, {YTP}, v9")
    a("v_add_u32 v11, v11, v12")
    a("v_lshl_add_u32 v12, v4, 9, v1")
    a("v_lshlrev_b32 v13, 3, v12")
    a(f"v_add_u32 v13, {L_UL}, v13")
    a("v_mul_u32_u24 v14, 2560, v12")
    a("s_add_u32 s33, s32, 1280")
    a("s_mov_b32 s38, 0xffff0000")
    a("v_lshlrev_b32 v58, 16, v56")
    a("v_and_b32 v59, s38, v56")
    a("v_lshlrev_b32 v60, 16, v57")
    a("v_and_b32 v61, s38, v57")
    for s in range(8):
        a(f"ds_read_b64_tr_b16 v[{16+2*s}:{17+2*s}], v11 offset:{s*128}")
        a(f"ds_read_b64 v[{32+2*s}:{33+2*s}], v13 offset:{s*512}")
    for s in range(8):
        a(f"s_waitcnt lgkmcnt({14-2*s})")
        y, u = 16+2*s, 32+2*s
        a(f"v_lshlrev_b32 v64, 16, v{u}")
        a(f"v_and_b32 v65, s38, v{u}")
        a(f"v_lshlrev_b32 v66, 16, v{u+1}")
        a(f"v_and_b32 v67, s38, v{u+1}")
        for k in range(4):
            a(f"v_mul_f32 v{64+k}, v{64+k}, v{58+k}")
        a("v_cvt_pk_bf16_f32 v64, v64, v65")
        a("v_cvt_pk_bf16_f32 v66, v66, v67")
        a("v_and_b32 v65, s38, v64")
        a("v_lshlrev_b32 v64, 16, v64")
        a("v_and_b32 v67, s38, v66")
        a("v_lshlrev_b32 v66, 16, v66")
        a(f"v_lshlrev_b32 v68, 16, v{y}")
        a(f"v_and_b32 v69, s38, v{y}")
        a(f"v_lshlrev_b32 v70, 16, v{y+1}")
        a(f"v_and_b32 v71, s38, v{y+1}")
        for k in range(4):
            a(f"v_add_f32 v{64+k}, v{64+k}, v{68+k}")
        a(f"v_cvt_pk_bf16_f32 v{y}, v64, v65")
        a(f"v_cvt_pk_bf16_f32 v{y+1}, v66, v67")
        a(f"s_add_u32 s39, s33, {s*64*2560}")
        a(f"buffer_store_dwordx2 v[{y}:{y+1}], v14, s[24:27], s39 offen")
    a("s_endpgm")
```

```python
from asmlib import *
def add_stamps(lines, nst, endlabel_idx_fn=None):
    out = []
    cnt = [0]
    for l in lines:
        if l.startswith("; STAMP"):
            n = cnt[0]; cnt[0] += 1
            if n < nst: out.append(f"s_memtime s[{64+2*n}:{65+2*n}]")
        else:
            out.append(l)
    return out
def emit_dump(a, nst, wgsel_shift=4):
    a("s_mov_b64 exec, -1")
    a("s_waitcnt vmcnt(0) lgkmcnt(0)")
    a(f"s_memtime s[{64+2*nst}:{65+2*nst}]")
    a("s_load_dwordx2 s[56:57], s[0:1], 88")
    a("s_waitcnt lgkmcnt(0)")
    a("s_mov_b32 s58, 256"); a("s_mov_b32 s59, 0x00020000")
    a(f"s_and_b32 s4, s2, {(1<<wgsel_shift)-1}")
    a("s_cmp_lg_u32 s4, 0")
    a("s_cbranch_scc1 L_stamp_done")
    a(f"s_lshr_b32 s3, s2, {wgsel_shift}")
    a(f"s_mul_i32 s3, s3, {4*8}")
    a("v_cmp_eq_u32 vcc, 0, v0")
    a("s_and_saveexec_b64 s[50:51], vcc")
    for n in range(nst):
        a(f"s_sub_u32 s4, s{64+2*(n+1)}, s{64+2*n}")
        a("v_mov_b32 v2, s4")
        a(f"buffer_store_dword v2, off, s[56:59], s3 offset:{4*n}")
    a.label("L_stamp_done")
```

```python
import sys
import partb
from partb import *
from parta import *
from stamp import *

def kd(name, vgpr, sgpr=102):
    acc = (vgpr + 3)//4*4
    return f""".amdhsa_kernel {name}
  .amdhsa_next_free_vgpr {vgpr}
  .amdhsa_next_free_sgpr {sgpr}
  .amdhsa_accum_offset {acc}
  .amdhsa_group_segment_fixed_size 0
  .amdhsa_kernarg_size 104
  .amdhsa_user_sgpr_count 2
  .amdhsa_user_sgpr_kernarg_segment_ptr 1
  .amdhsa_system_sgpr_workgroup_id_x 1
.end_amdhsa_kernel
"""
def khead(a, name):
    a.raw(f".globl {name}\n.p2align 8\n.type {name},@function\n{name}:")

HEADER = open("concat_heads__linear_attn_block__ssm_conv_s4d__prompt.s.ref").read().split("; Override launch")[0]

def build(path):
    a = Asm()
    a.raw(HEADER.rstrip())
    a.raw(f"; @launch kernel=k1_kernel grid=(896,1,1) block=(256,1,1) lds={A1_LDS}")
    a.raw(f"; @launch kernel=k2_kernel grid=(192,1,1) block=(256,1,1) lds={CONV_LDS}")
    a.raw(f"; @launch kernel=k3_kernel grid=(320,1,1) block=(256,1,1) lds={A3_LDS}")
    a.raw('.amdgcn_target "amdgcn-amd-amdhsa--gfx950"\n.text')
    khead(a, "k1_kernel")
    a("s_cmp_ge_u32 s2, 896"); a("s_cbranch_scc1 L_k1_exit")
    a("s_cmp_ge_u32 s2, 256"); a("s_cbranch_scc1 L_k1_b")
    a1(a)
    a.label("L_k1_b")
    kgen(a, 256)
    a.label("L_k1_exit"); a("s_endpgm")
    khead(a, "k2_kernel")
    a("s_cmp_ge_u32 s2, 192"); a("s_cbranch_scc1 L_k2_exit")
    a("s_cmp_ge_u32 s2, 32"); a("s_cbranch_scc1 L_k2_b")
    a2r(a)
    a.label("L_k2_b")
    conv(a, 32)
    a.label("L_k2_exit"); a("s_endpgm")
    khead(a, "k3_kernel")
    a("s_cmp_ge_u32 s2, 320"); a("s_cbranch_scc1 L_k3_exit")
    a3(a)
    a.label("L_k3_exit"); a("s_endpgm")
    a.raw('.section .rodata,"a"\n.p2align 6')
    a.raw(kd("k1_kernel", 160)); a.raw(".p2align 6"); a.raw(kd("k2_kernel", 192)); a.raw(".p2align 6"); a.raw(kd("k3_kernel", 240))
    open(path, "w").write(a.finalize())
if __name__ == "__main__":
    build(sys.argv[1] if len(sys.argv) > 1 else "concat_heads__linear_attn_block__ssm_conv_s4d__prompt.s")
```

```python
from asmlib import *
from partb import srd, WS_PQ, WS_PART, WS_MT, WS_ZF, WS_SIZE, LOG2E

STG = 20480
NST = 4
A1_LDS = STG * NST
KVP = 352
L_CMP = 64 * KVP
PSZ = 4 * 420 * 4

def phi_pair(a, x0, x1, t, dst):
    a(f"v_cvt_pk_bf16_f32 v{t}, v{x0}, v{x1}")
    a(f"v_lshlrev_b32 v{t+1}, 16, v{t}")
    a(f"v_and_b32 v{t+2}, s61, v{t}")
    a(f"v_mul_f32 v{t+3}, s60, v{t+1}")
    a(f"v_mul_f32 v{t+4}, s60, v{t+2}")
    a(f"v_exp_f32 v{t+3}, v{t+3}")
    a(f"v_exp_f32 v{t+4}, v{t+4}")
    a(f"v_add_f32 v{t+5}, 1.0, v{t+1}")
    a(f"v_add_f32 v{t+6}, 1.0, v{t+2}")
    a(f"v_cmp_lt_f32 vcc, 0, v{t+1}")
    a(f"v_cmp_lt_f32 s[44:45], 0, v{t+2}")
    a(f"v_cndmask_b32 v{t+3}, v{t+3}, v{t+5}, vcc")
    a(f"v_cndmask_b32 v{t+4}, v{t+4}, v{t+6}, s[44:45]")
    a(f"v_cvt_pk_bf16_f32 v{t}, v{t+3}, v{t+4}")
    a(f"v_lshlrev_b32 v{t+1}, 16, v{t}")
    a(f"v_and_b32 v{t+2}, s61, v{t}")
    a(f"v_add_f32 v{t+1}, s62, v{t+1}")
    a(f"v_add_f32 v{t+2}, s62, v{t+2}")
    a(f"v_cvt_pk_bf16_f32 v{dst}, v{t+1}, v{t+2}")

EXPF = set()
def a1(a):
    a("s_load_dwordx4 s[8:11], s[0:1], 0")
    a("s_load_dwordx2 s[12:13], s[0:1], 96")
    a("s_and_b32 s5, s2, 1")
    a("s_lshl_b32 s5, s5, 4")
    a("s_lshr_b32 s46, s2, 4")
    a("s_add_u32 s5, s5, s46")
    a("s_and_b32 s6, s2, 6")
    a("s_bfe_u32 s47, s2, 0x10003")
    a("s_add_u32 s6, s6, s47")
    a("v_and_b32 v1, 63, v0")
    a("v_lshrrev_b32 v4, 6, v0")
    a("v_readfirstlane_b32 s4, v4")
    a("; STAMP 0")
    a("s_cmp_lt_u32 s4, 4")
    a("s_cbranch_scc1 L_a1_cons")
    a("v_and_b32 v4, 3, v4")
    a("s_and_b32 s4, s4, 3")
    a("s_mul_i32 s7, s6, 160")
    for jj in range(4):
        g = 16; r = 17; c = 18; sg = 19
        a(f"v_lshl_add_u32 v{g}, v4, 6, v1")
        a(f"v_add_u32 v{g}, {256*jj}, v{g}")
        a(f"v_min_u32 v{g}, 959, v{g}")
        a(f"v_mul_u32_u24 v{r}, 2185, v{g}")
        a(f"v_lshrrev_b32 v{r}, 16, v{r}")
        a(f"v_mul_u32_u24 v{c}, 30, v{r}")
        a(f"v_sub_u32 v{c}, v{g}, v{c}")
        a(f"v_mul_u32_u24 v{sg}, 6554, v{c}")
        a(f"v_lshrrev_b32 v{sg}, 16, v{sg}")
        a(f"v_mul_u32_u24 v20, 10, v{sg}")
        a(f"v_sub_u32 v{c}, v{c}, v20")
        a(f"v_mul_u32_u24 v{r}, 3840, v{r}")
        a(f"v_mul_u32_u24 v{sg}, 1280, v{sg}")
        a(f"v_lshl_add_u32 v{r}, v{c}, 4, v{r}")
        a(f"v_add3_u32 v{8+jj}, v{r}, v{sg}, s7")
    a("v_lshrrev_b32 v16, 2, v1")
    a("v_and_b32 v17, 3, v1")
    a("v_bfe_u32 v18, v1, 4, 2")
    a("v_xor_b32 v17, v17, v18")
    a("s_lshl_b32 s7, s5, 6")
    a("v_lshl_add_u32 v16, v4, 4, v16")
    a("v_add_u32 v16, s7, v16")
    a("v_mul_u32_u24 v12, 1280, v16")
    a("v_lshl_add_u32 v12, v17, 4, v12")
    a("s_waitcnt lgkmcnt(0)")
    srd(a, 16, 8, 2048*640*2); srd(a, 20, 10, 640*1920*2)
    a("s_lshl_b32 s28, s4, 10")
    a("s_mov_b32 s29, 0")
    a("s_mov_b32 s30, 0")
    def issue(slot):
        for jj in range(4):
            a(f"s_add_u32 m0, s28, {slot*STG + jj*4096}")
            a(f"buffer_load_dwordx4 v{8+jj}, s[20:23], s29 offen lds")
        a(f"s_add_u32 m0, s28, {slot*STG + 16384}")
        a(f"buffer_load_dwordx4 v12, s[16:19], s30 offen lds")
        a("s_add_u32 s29, s29, 122880")
        a("s_add_u32 s30, s30, 64")
    for stg in range(3):
        issue(stg)
    for t in range(20):
        a(f"s_waitcnt vmcnt({5*min(2, 19-t)})")
        a("s_barrier")
        if t + 3 < 20:
            issue((t+3) % 4)
    a("s_endpgm")
    a.label("L_a1_cons")
    a("v_lshrrev_b32 v16, 4, v1")
    a("v_bfe_u32 v17, v1, 2, 2")
    a("v_and_b32 v18, 3, v1")
    a("v_lshl_add_u32 v13, v16, 2, v17")
    a("v_mul_u32_u24 v13, 480, v13")
    a("v_lshl_add_u32 v13, v18, 3, v13")
    a("v_lshl_add_u32 v13, v4, 5, v13")
    a("v_and_b32 v19, 15, v1")
    a("v_lshrrev_b32 v20, 1, v16")
    a("v_lshrrev_b32 v21, 2, v19")
    a("v_xor_b32 v20, v20, v21")
    a("v_xor_b32 v21, 2, v20")
    a("v_and_b32 v22, 1, v16")
    a("v_lshlrev_b32 v22, 3, v22")
    a("v_lshl_add_u32 v22, v19, 6, v22")
    a("v_add_u32 v22, 16384, v22")
    a("v_lshl_add_u32 v14, v20, 4, v22")
    a("v_lshl_add_u32 v15, v21, 4, v22")
    a(f"v_add_u32 v2, {2*STG}, v13")
    a(f"v_add_u32 v3, {2*STG}, v14")
    a(f"v_add_u32 v5, {2*STG}, v15")
    a("s_waitcnt lgkmcnt(0)")
    srd(a, 24, 12, WS_SIZE)
    srd(a, 16, 8, 2048*640*2); srd(a, 20, 10, 640*1920*2)
    ACC = 52; F = 20
    if "nopf" not in EXPF:
        a("v_lshlrev_b32 v23, 4, v1")
        a("s_mul_i32 s32, s5, 81920")
        a("s_mul_i32 s33, s47, 40960")
        a("s_add_u32 s32, s32, s33")
        a("s_mul_i32 s33, s4, 10240")
        a("s_add_u32 s32, s32, s33")
        for i in range(10):
            if i % 4 == 0 and i: a("s_add_u32 s32, s32, 4096")
            a(f"buffer_load_dwordx4 v[{116+4*(i%3)}:{119+4*(i%3)}], v23, s[16:19], s32 offen offset:{(i%4)*1024}")
        a("s_mul_i32 s32, s46, 153600")
        a("s_mul_i32 s33, s6, 160")
        a("s_add_u32 s32, s32, s33")
        for i in range(5):
            a(f"v_add_u32 v24, {256*i}, v0")
            a("v_min_u32 v24, 1199, v24")
            a("v_mul_u32_u24 v25, 34953, v24")
            a("v_lshrrev_b32 v25, 20, v25")
            a("v_mul_u32_u24 v26, 30, v25")
            a("v_sub_u32 v26, v24, v26")
            a("v_mul_u32_u24 v27, 6554, v26")
            a("v_lshrrev_b32 v27, 16, v27")
            a("v_mul_u32_u24 v28, 10, v27")
            a("v_sub_u32 v26, v26, v28")
            a("v_mul_u32_u24 v25, 3840, v25")
            a("v_mul_u32_u24 v27, 1280, v27")
            a("v_lshl_add_u32 v25, v26, 4, v25")
            a("v_add_u32 v25, v25, v27")
            a(f"buffer_load_dwordx4 v[{116+4*(i%3)}:{119+4*(i%3)}], v25, s[20:23], s32 offen")
    for r in range(ACC, ACC+64):
        a(f"v_mov_b32 v{r}, 0")
    a("s_mov_b32 s31, 0")
    a.label("L_a1_loop")
    for stg in range(20 if "unroll" in EXPF else 4):
        if "unroll" in EXPF and stg % 2 == 0 and stg < 16: a(f"; STAMP {3 + stg//2}")
        a("s_barrier")
        stg = stg % 4
        base = (stg & 1) * STG
        vb, va, va2 = (13, 14, 15) if stg < 2 else (2, 3, 5)
        for ct in range(4):
            a(f"ds_read_b64_tr_b16 v[{F+4*ct}:{F+1+4*ct}], v{vb} offset:{base + ct*128}")
            a(f"ds_read_b64_tr_b16 v[{F+2+4*ct}:{F+3+4*ct}], v{vb} offset:{base + ct*128 + 7680}")
            rt = ct
            a(f"ds_read_b64 v[{F+16+4*rt}:{F+17+4*rt}], v{va} offset:{base + rt*1024}")
            a(f"ds_read_b64 v[{F+18+4*rt}:{F+19+4*rt}], v{va2} offset:{base + rt*1024}")
        for lvl in range(4):
            a(f"s_waitcnt lgkmcnt({12 - 4*lvl})")
            pairs = [(lvl, j) for j in range(lvl+1)] + [(j, lvl) for j in range(lvl)]
            for (ct, rt) in pairs:
                acc = ACC + 16*ct + 4*rt
                a(f"v_mfma_f32_16x16x32_bf16 v[{acc}:{acc+3}], v[{F+4*ct}:{F+3+4*ct}], v[{F+16+4*rt}:{F+19+4*rt}], v[{acc}:{acc+3}]")
    if "unroll" not in EXPF:
        a("s_add_u32 s31, s31, 1")
        a("s_cmp_lt_u32 s31, 5")
        a("s_cbranch_scc1 L_a1_loop")
    a("s_barrier")
    a("; STAMP 1")
    a("s_waitcnt vmcnt(0)")
    a(f"s_mov_b32 s60, {LOG2E}")
    a("s_mov_b32 s61, 0xffff0000")
    a("s_mov_b32 s62, 0x358637bd")
    a("v_lshlrev_b32 v5, 3, v1")
    a(f"v_mul_u32_u24 v6, {KVP}, v19")
    a("v_lshl_add_u32 v6, v16, 3, v6")
    for slot in range(4):
        a(f"s_add_u32 s32, s4, {4*slot}")
        a("s_cmp_ge_u32 s32, 10")
        a(f"s_cbranch_scc1 L_a1_ep{slot}_v")
        for rt in range(4):
            acc = ACC + 16*slot + 4*rt
            phi_pair(a, acc, acc+1, 116, 20+8*slot+2*rt)
            phi_pair(a, acc+2, acc+3, 8, 21+8*slot+2*rt)
        a(f"s_branch L_a1_ep{slot}_done")
        a.label(f"L_a1_ep{slot}_v")
        for rt in range(4):
            acc = ACC + 16*slot + 4*rt
            a(f"v_cvt_pk_bf16_f32 v{20+8*slot+2*rt}, v{acc}, v{acc+1}")
            a(f"v_cvt_pk_bf16_f32 v{21+8*slot+2*rt}, v{acc+2}, v{acc+3}")
        a.label(f"L_a1_ep{slot}_done")
    for slot in range(4):
        a(f"s_add_u32 s32, s4, {4*slot}")
        a("s_cmp_ge_u32 s32, 15")
        a(f"s_cbranch_scc1 L_a1_st{slot}_done")
        a("s_cmp_ge_u32 s32, 5")
        a(f"s_cbranch_scc1 L_a1_st{slot}_lds")
        a("s_mul_i32 s35, s6, 5")
        a("s_add_u32 s35, s35, s32")
        a("s_lshl_b32 s35, s35, 9")
        a(f"s_mul_i32 s36, s5, {4*40*512}")
        a("s_add_u32 s35, s35, s36")
        for rt in range(4):
            a(f"s_add_u32 s36, s35, {WS_PQ + rt*40*512}")
            a(f"buffer_store_dwordx2 v[{20+8*slot+2*rt}:{21+8*slot+2*rt}], v5, s[24:27], s36 offen")
        a(f"s_branch L_a1_st{slot}_done")
        a.label(f"L_a1_st{slot}_lds")
        a("s_sub_u32 s35, s32, 5")
        a("s_lshl_b32 s35, s35, 5")
        a("v_add_u32 v7, s35, v6")
        for rt in range(4):
            a(f"ds_write_b64 v7, v[{20+8*slot+2*rt}:{21+8*slot+2*rt}] offset:{rt*16*KVP}")
        a.label(f"L_a1_st{slot}_done")
    a("s_waitcnt lgkmcnt(0)")
    a("s_barrier")
    a("; STAMP 2")
    a("v_lshl_add_u32 v13, v16, 2, v17")
    a(f"v_mul_u32_u24 v13, {KVP}, v13")
    a("v_lshl_add_u32 v13, v18, 3, v13")
    a("s_mul_i32 s35, s4, 40")
    a("v_add_u32 v13, s35, v13")
    for ks in range(2):
        for tl in range(2):
            a(f"ds_read_b64_tr_b16 v[{32+8*ks+4*tl}:{33+8*ks+4*tl}], v13 offset:{ks*32*KVP + tl*32}")
            a(f"ds_read_b64_tr_b16 v[{34+8*ks+4*tl}:{35+8*ks+4*tl}], v13 offset:{(ks*32+16)*KVP + tl*32}")
            a(f"ds_read_b64_tr_b16 v[{48+8*ks+4*tl}:{49+8*ks+4*tl}], v13 offset:{ks*32*KVP + 160 + tl*32}")
            a(f"ds_read_b64_tr_b16 v[{50+8*ks+4*tl}:{51+8*ks+4*tl}], v13 offset:{(ks*32+16)*KVP + 160 + tl*32}")
    a("v_cmp_eq_u32 vcc, 4, v19")
    a("v_mov_b32 v24, 0x3f803f80")
    a("s_waitcnt lgkmcnt(0)")
    for ks in range(2):
        for k in range(4):
            a(f"v_cndmask_b32 v{52+8*ks+k}, v{52+8*ks+k}, v24, vcc")
    for dtl in range(2):
        for etl in range(2):
            acc = 64 + 8*dtl + 4*etl
            a(f"v_mfma_f32_16x16x32_bf16 v[{acc}:{acc+3}], v[{32+4*dtl}:{35+4*dtl}], v[{48+4*etl}:{51+4*etl}], 0")
            a(f"v_mfma_f32_16x16x32_bf16 v[{acc}:{acc+3}], v[{40+4*dtl}:{43+4*dtl}], v[{56+4*etl}:{59+4*etl}], v[{acc}:{acc+3}]")
    a("v_mul_u32_u24 v24, 84, v16")
    a("v_add_u32 v24, v24, v19")
    a("s_mul_i32 s35, s4, 420")
    a("v_add_u32 v24, s35, v24")
    a("v_lshlrev_b32 v24, 2, v24")
    a(f"v_add_u32 v24, {L_CMP}, v24")
    a("v_cmp_gt_u32 s[36:37], 5, v19")
    a("v_cmp_gt_u32 s[38:39], 16, v1")
    a("s_and_b64 s[40:41], s[36:37], s[38:39]")
    for dtl in range(2):
        for etl in range(2):
            acc = 64 + 8*dtl + 4*etl
            m = {(0,0): None, (0,1): "s[36:37]", (1,0): "s[38:39]", (1,1): "s[40:41]"}[(dtl, etl)]
            if m: a(f"s_mov_b64 exec, {m}")
            for r in range(4):
                a(f"ds_write_b32 v24, v{acc+r} offset:{((16*dtl + r)*21 + 16*etl)*4}")
            if m: a("s_mov_b64 exec, -1")
    a("s_waitcnt lgkmcnt(0)")
    a("s_barrier")
    a("v_lshlrev_b32 v24, 4, v0")
    a("s_lshl_b32 s35, s5, 3")
    a("s_add_u32 s35, s35, s6")
    a(f"s_mul_i32 s35, s35, {PSZ}")
    a(f"s_add_u32 s35, s35, {WS_PART}")
    a(f"ds_read_b128 v[32:35], v24 offset:{L_CMP}")
    a(f"ds_read_b128 v[36:39], v24 offset:{L_CMP + 4096}")
    a("s_waitcnt lgkmcnt(0)")
    a("buffer_store_dwordx4 v[32:35], v24, s[24:27], s35 offen")
    a(f"v_cmp_gt_u32 vcc, {(PSZ - 4096)//16}, v0")
    a("s_and_saveexec_b64 s[36:37], vcc")
    a("s_add_u32 s35, s35, 4096")
    a("buffer_store_dwordx4 v[36:39], v24, s[24:27], s35 offen")
    a("s_endpgm")

WOP = 1312
L_KVT = 32 * WOP
A2R_LDS = L_KVT + 32 * 80

def a2r(a):
    a("s_load_dwordx2 s[8:9], s[0:1], 16")
    a("s_load_dwordx2 s[12:13], s[0:1], 96")
    a("v_and_b32 v1, 63, v0")
    a("v_lshrrev_b32 v4, 6, v0")
    a("v_readfirstlane_b32 s4, v4")
    a("s_lshr_b32 s5, s2, 2")
    a("s_and_b32 s6, s2, 3")
    a("s_waitcnt lgkmcnt(0)")
    srd(a, 16, 8, 640*640*2); srd(a, 24, 12, WS_SIZE)
    a(f"s_mul_i32 s29, s5, {PSZ}")
    a("s_mul_i32 s30, s6, 1680")
    a("s_add_u32 s29, s29, s30")
    a(f"s_add_u32 s29, s29, {WS_PART}")
    a("v_lshlrev_b32 v25, 2, v0")
    a("v_add_u32 v26, 1024, v25")
    a("v_min_u32 v26, 1676, v26")
    a("s_mov_b32 s34, s29")
    for rb in range(32):
        a(f"buffer_load_dword v{128+rb}, v25, s[24:27], s34 offen")
        a(f"buffer_load_dword v{160+rb}, v26, s[24:27], s34 offen")
        a(f"s_add_u32 s34, s34, {8*PSZ}")
    a("s_mul_i32 s28, s2, 25600")
    for i in range(10):
        a(f"v_add_u32 v16, {256*i}, v0")
        a("v_mul_u32_u24 v17, 52429, v16")
        a("v_lshrrev_b32 v17, 22, v17")
        a("v_mul_u32_u24 v18, 80, v17")
        a("v_sub_u32 v18, v16, v18")
        a("v_mul_u32_u24 v19, 1280, v17")
        a("v_lshl_add_u32 v19, v18, 4, v19")
        a("v_cmp_gt_u32 vcc, 20, v17")
        a("v_cndmask_b32 v19, -1, v19, vcc")
        a(f"v_mul_u32_u24 v{104+i}, {WOP}, v17")
        a(f"v_lshl_add_u32 v{104+i}, v18, 4, v{104+i}")
        a(f"buffer_load_dwordx4 v[{64+4*i}:{67+4*i}], v19, s[16:19], s28 offen")
    a("v_mov_b32 v20, 0"); a("v_mov_b32 v21, 0"); a("v_mov_b32 v22, 0"); a("v_mov_b32 v23, 0")
    a("v_lshlrev_b32 v24, 4, v0")
    a("v_cmp_gt_u32 vcc, 160, v0")
    a("s_and_saveexec_b64 s[30:31], vcc")
    a(f"ds_write_b128 v24, v[20:23] offset:{L_KVT}")
    a("s_mov_b64 exec, s[30:31]")
    a("s_waitcnt lgkmcnt(0)")
    a("s_barrier")
    a("s_waitcnt vmcnt(10)")
    for rnd in range(2):
        b = 128 + 32*rnd
        for st in (16, 8, 4, 2, 1):
            for k in range(st):
                a(f"v_add_f32 v{b+k}, v{b+k}, v{b+k+st}")
        if rnd == 1:
            a("v_cmp_gt_u32 vcc, 164, v0")
            a("s_and_saveexec_b64 s[30:31], vcc")
        a(f"v_add_u32 v16, {256*rnd}, v0")
        a("v_mul_u32_u24 v17, 49933, v16")
        a("v_lshrrev_b32 v17, 20, v17")
        a("v_mul_u32_u24 v18, 21, v17")
        a("v_sub_u32 v18, v16, v18")
        a("v_cmp_eq_u32 s[32:33], 20, v18")
        a(f"v_cvt_pk_bf16_f32 v28, v{b}, v{b}")
        a("v_mul_u32_u24 v26, 80, v17")
        a("v_lshl_add_u32 v26, v18, 1, v26")
        a("s_mov_b64 s[36:37], exec")
        a("s_andn2_b64 exec, exec, s[32:33]")
        a(f"ds_write_b16 v26, v28 offset:{L_KVT}")
        a("s_and_b64 exec, s[36:37], s[32:33]")
        a("v_lshlrev_b32 v28, 16, v28")
        a("s_mul_i32 s35, s2, 80")
        a(f"s_add_u32 s35, s35, {WS_ZF}")
        a("v_lshlrev_b32 v26, 2, v17")
        a("buffer_store_dword v28, v26, s[24:27], s35 offen")
        a("s_mov_b64 exec, -1")
    a("s_waitcnt vmcnt(0)")
    for i in range(10):
        a(f"ds_write_b128 v{104+i}, v[{64+4*i}:{67+4*i}]")
    a("s_waitcnt lgkmcnt(0)")
    a("s_barrier")
    a("v_lshrrev_b32 v16, 4, v1")
    a("v_bfe_u32 v17, v1, 2, 2")
    a("v_and_b32 v18, 3, v1")
    a("v_and_b32 v19, 15, v1")
    a("v_mul_u32_u24 v20, 80, v19")
    a("v_lshl_add_u32 v20, v16, 3, v20")
    for dtile in range(2):
        a(f"ds_read_b64 v[{32+4*dtile}:{33+4*dtile}], v20 offset:{L_KVT + dtile*16*80}")
        a(f"ds_read_b64 v[{34+4*dtile}:{35+4*dtile}], v20 offset:{L_KVT + dtile*16*80 + 32}")
    a("v_lshl_add_u32 v21, v16, 2, v17")
    a(f"v_mul_u32_u24 v21, {WOP}, v21")
    a("v_lshl_add_u32 v21, v18, 3, v21")
    a("s_mul_i32 s35, s4, 320")
    a("v_add_u32 v21, s35, v21")
    a("s_mul_i32 s35, s2, 5")
    for dtile in range(2):
        d = 22 + dtile
        a(f"v_add_u32 v24, s35, v16")
        if dtile: a("v_add_u32 v24, 4, v24")
        a("v_lshrrev_b32 v25, 3, v24")
        a("v_and_b32 v26, 3, v24")
        a("v_bfe_u32 v27, v24, 2, 1")
        a(f"v_lshlrev_b32 v{d}, 10, v25")
        a(f"v_lshl_add_u32 v{d}, v26, 8, v{d}")
        a(f"v_lshl_add_u32 v{d}, v19, 4, v{d}")
        a(f"v_lshl_add_u32 v{d}, v27, 3, v{d}")
    a(f"s_mul_i32 s36, s4, {10*20*1024}")
    a(f"s_add_u32 s36, s36, {WS_MT}")
    a("v_cmp_gt_u32 s[38:39], 16, v1")
    for ct in range(10):
        a(f"ds_read_b64_tr_b16 v[{40+4*ct}:{41+4*ct}], v21 offset:{ct*32}")
        a(f"ds_read_b64_tr_b16 v[{42+4*ct}:{43+4*ct}], v21 offset:{ct*32 + 16*WOP}")
    for ct in range(10):
        a(f"s_waitcnt lgkmcnt({min(15, 18 - 2*ct)})")
        r0 = 80 + 8*(ct & 1)
        a(f"v_mfma_f32_16x16x32_bf16 v[{r0}:{r0+3}], v[32:35], v[{40+4*ct}:{43+4*ct}], 0")
        a(f"v_mfma_f32_16x16x32_bf16 v[{r0+4}:{r0+7}], v[36:39], v[{40+4*ct}:{43+4*ct}], 0")
        p = 96 + 4*(ct & 1)
        a(f"v_cvt_pk_bf16_f32 v{p}, v{r0}, v{r0+1}")
        a(f"v_cvt_pk_bf16_f32 v{p+1}, v{r0+2}, v{r0+3}")
        a(f"v_cvt_pk_bf16_f32 v{p+2}, v{r0+4}, v{r0+5}")
        a(f"v_cvt_pk_bf16_f32 v{p+3}, v{r0+6}, v{r0+7}")
        a(f"s_add_u32 s37, s36, {ct*20*1024}")
        a(f"buffer_store_dwordx2 v[{p}:{p+1}], v22, s[24:27], s37 offen")
        a("s_mov_b64 exec, s[38:39]")
        a(f"buffer_store_dwordx2 v[{p+2}:{p+3}], v23, s[24:27], s37 offen")
        a("s_mov_b64 exec, -1")
    a("s_endpgm")

L_Z = 2 * 40 * 512
A3_LDS = L_Z + 2560

def a3(a):
    a("s_load_dwordx2 s[8:9], s[0:1], 80")
    a("s_load_dwordx2 s[12:13], s[0:1], 96")
    a("v_and_b32 v1, 63, v0")
    a("v_lshrrev_b32 v4, 6, v0")
    a("v_readfirstlane_b32 s4, v4")
    a("s_mul_i32 s5, s2, 52429")
    a("s_lshr_b32 s5, s5, 18")
    a("s_mul_i32 s6, s5, 5")
    a("s_sub_u32 s6, s2, s6")
    a("; STAMP 0")
    a("v_lshrrev_b32 v16, 4, v1")
    a("v_and_b32 v19, 15, v1")
    a("v_lshlrev_b32 v5, 4, v1")
    a("s_waitcnt lgkmcnt(0)")
    srd(a, 16, 8, 2048*1280*2); srd(a, 24, 12, WS_SIZE)
    a(f"s_mul_i32 s28, s5, {2*40*512}")
    a("s_mul_i32 s29, s4, 10240")
    a("s_add_u32 s28, s28, s29")
    for i in range(10):
        a(f"s_add_u32 m0, s29, {i*1024}")
        a(f"s_add_u32 s30, s28, {WS_PQ + i*1024}")
        a("buffer_load_dwordx4 v5, s[24:27], s30 offen lds")
    a("s_mul_i32 s30, s4, 640")
    a(f"s_add_u32 m0, s30, {L_Z}")
    a(f"s_add_u32 s30, s30, {WS_ZF}")
    a("v_cmp_gt_u32 vcc, 40, v1")
    a("s_and_saveexec_b64 s[32:33], vcc")
    a("buffer_load_dwordx4 v5, s[24:27], s30 offen lds")
    a("s_mov_b64 exec, s[32:33]")
    a("s_lshl_b32 s29, s6, 3")
    a("s_lshl_b32 s30, s4, 1")
    a("s_add_u32 s29, s29, s30")
    a("s_mul_i32 s30, s29, 20480")
    a(f"s_add_u32 s30, s30, {WS_MT}")
    for t in range(20):
        for ct in range(2):
            if (t % 4) == 0:
                a(f"s_add_u32 s{34+ct}, s30, {ct*20480 + t*1024}")
            a(f"buffer_load_dwordx4 v[{40+8*t+4*ct}:{43+8*t+4*ct}], v5, s[24:27], s{34+ct} offen offset:{(t%4)*1024}")
    a("; STAMP 1")
    a("s_waitcnt vmcnt(40)")
    a("s_barrier")
    a("; STAMP 2")
    a("; STAMP 3")
    a("s_mov_b32 s61, 0xffff0000")
    a("s_mov_b32 s62, 0x358637bd")
    a("v_and_b32 v6, 31, v0")
    a("v_lshrrev_b32 v7, 5, v0")
    a("v_lshrrev_b32 v8, 4, v6")
    a("v_mul_u32_u24 v8, 20480, v8")
    a("v_and_b32 v9, 15, v6")
    a("v_lshl_add_u32 v8, v9, 3, v8")
    a("v_mul_u32_u24 v9, 2560, v7")
    a("v_add_u32 v8, v8, v9")
    a("v_mul_u32_u24 v13, 320, v7")
    for hd in range(4):
        for i in range(5):
            qd = 5*hd + i
            a(f"ds_read_b64 v[{200+2*i}:{201+2*i}], v8 offset:{(qd>>2)*512 + (qd&3)*128}")
            a(f"ds_read_b128 v[{212+4*i}:{215+4*i}], v13 offset:{L_Z + hd*80 + 16*i}")
        a("v_mov_b32 v18, 0")
        a("s_waitcnt lgkmcnt(0)")
        for i in range(10):
            a(f"v_lshlrev_b32 v{20+2*i}, 16, v{200+i}")
            a(f"v_and_b32 v{21+2*i}, s61, v{200+i}")
            a(f"v_fmac_f32 v18, v{20+2*i}, v{212+2*i}")
            a(f"v_fmac_f32 v18, v{21+2*i}, v{213+2*i}")
        a("v_cvt_pk_bf16_f32 v18, v18, v18")
        a("v_lshlrev_b32 v18, 16, v18")
        a("v_add_f32 v18, s62, v18")
        a("v_cvt_pk_bf16_f32 v18, v18, v18")
        a("v_lshlrev_b32 v18, 16, v18")
        a("v_rcp_f32 v18, v18")
        for i in range(10):
            a(f"v_mul_f32 v{20+2*i}, v{20+2*i}, v18")
            a(f"v_mul_f32 v{21+2*i}, v{21+2*i}, v18")
            a(f"v_cvt_pk_bf16_f32 v{200+i}, v{20+2*i}, v{21+2*i}")
        for i in range(5):
            qd = 5*hd + i
            a(f"ds_write_b64 v8, v[{200+2*i}:{201+2*i}] offset:{(qd>>2)*512 + (qd&3)*128}")
    a("s_waitcnt lgkmcnt(0)")
    a("s_barrier")
    a("; STAMP 4")
    a("v_lshlrev_b32 v15, 3, v1")
    for r in range(24, 40):
        a(f"v_mov_b32 v{r}, 0")
    AF = [200, 208, 216, 224]
    def lda(t):
        f = AF[t % 4]
        for rt in range(2):
            a(f"ds_read_b64 v[{f+4*rt}:{f+4*rt+1}], v15 offset:{rt*20480 + t*1024}")
            a(f"ds_read_b64 v[{f+4*rt+2}:{f+4*rt+3}], v15 offset:{rt*20480 + t*1024 + 512}")
    lda(0); lda(1); lda(2)
    for t in range(20):
        if t + 3 < 20:
            lda(t+3)
        rem = min(3, 19 - t)
        a(f"s_waitcnt vmcnt({2*(19-t)}) lgkmcnt({4*rem})")
        f = AF[t % 4]
        for ct in range(2):
            for rt in range(2):
                acc = 24 + 8*ct + 4*rt
                a(f"v_mfma_f32_16x16x32_bf16 v[{acc}:{acc+3}], v[{40+8*t+4*ct}:{43+8*t+4*ct}], v[{f+4*rt}:{f+4*rt+3}], v[{acc}:{acc+3}]")
    a("; STAMP 5")
    a("s_lshl_b32 s7, s5, 5")
    a("v_add_u32 v12, s7, v19")
    a("v_mul_u32_u24 v12, 2560, v12")
    a("v_lshl_add_u32 v12, v16, 3, v12")
    a("s_lshl_b32 s29, s29, 5")
    for ct in range(2):
        for rt in range(2):
            acc = 24 + 8*ct + 4*rt
            a(f"v_cvt_pk_bf16_f32 v{acc}, v{acc}, v{acc+1}")
            a(f"v_cvt_pk_bf16_f32 v{acc+1}, v{acc+2}, v{acc+3}")
            a(f"s_add_u32 s30, s29, {rt*16*2560 + ct*32}")
            a(f"buffer_store_dwordx2 v[{acc}:{acc+1}], v12, s[16:19], s30 offen")
    a("s_endpgm")
```

```python
from asmlib import *

DEBUG_DUMP = False
WS_PQ = 0
WS_PART = 0x280000
PSZ = 18 * 1024
WS_KX = 0x700000
KXP = 4416
WS_MT = 0xA00000
WS_ZF = 0xB00000
WS_SIZE = 0x1000000
WS_SIZE2 = 0x2000000
LOG2E = "0x3fb8aa3b"
NLOG2E = "0xbfb8aa3b"

def srd(a, d, base, nbytes):
    a(f"s_mov_b32 s{d}, s{base}")
    a(f"s_mov_b32 s{d+1}, s{base+1}")
    a(f"s_mov_b32 s{d+2}, {nbytes}")
    a(f"s_mov_b32 s{d+3}, 0x00020000")

def emit_p0(a, vi, d0, d1, d2, t0, t1):
    a(f"v_and_b32 v{d0}, 7, v{vi}")
    a(f"v_and_b32 v{t0}, 8, v{vi}")
    a(f"v_lshlrev_b32 v{t0}, 4, v{t0}")
    a(f"v_or_b32 v{d0}, v{d0}, v{t0}")
    a(f"v_and_b32 v{t0}, 4, v{vi}")
    a(f"v_lshlrev_b32 v{t0}, 5, v{t0}")
    a(f"v_and_b32 v{t1}, 3, v{vi}")
    a(f"v_lshlrev_b32 v{t1}, 1, v{t1}")
    a(f"v_add3_u32 v{d1}, v{t0}, v{t1}, 0")
    a(f"v_add_u32 v{d1}, 0x100, v{d1}")
    a(f"v_and_b32 v{t0}, 6, v{vi}")
    a(f"v_lshlrev_b32 v{t0}, 6, v{t0}")
    a(f"v_and_b32 v{t1}, 1, v{vi}")
    a(f"v_lshlrev_b32 v{t1}, 2, v{t1}")
    a(f"v_add_u32 v{t0}, v{t0}, v{t1}")
    a(f"v_add_u32 v{t0}, 0x200, v{t0}")
    a(f"v_cmp_gt_u32 vcc, 8, v{vi}")
    a(f"v_cndmask_b32 v{d1}, v{t0}, v{d1}, vcc")
    a(f"v_lshlrev_b32 v{t0}, 7, v{vi}")
    a(f"v_add_u32 v{t0}, 0x400, v{t0}")
    a(f"v_mov_b32 v{t1}, 0x800")
    a(f"v_cndmask_b32 v{d2}, v{t1}, v{t0}, vcc")

KG_LDS = 20480
def kgen(a, wg_base):
    a(f"s_sub_u32 s3, s2, {wg_base}")
    a("s_load_dwordx8 s[8:15], s[0:1], 32")
    a("s_load_dwordx2 s[16:17], s[0:1], 64")
    a("s_load_dwordx2 s[18:19], s[0:1], 96")
    a("v_lshrrev_b32 v4, 8, v0")
    a("v_readfirstlane_b32 s4, v4")
    a("v_and_b32 v0, 255, v0")
    a("v_and_b32 v1, 63, v0")
    a("v_and_b32 v2, 15, v0")
    a("v_bfe_u32 v3, v0, 4, 2")
    a("v_lshrrev_b32 v4, 6, v0")
    a("s_lshl_b32 s3, s3, 1")
    a("s_add_u32 s3, s3, s4")
    a(f"s_mul_i32 s5, s4, {KG_LDS}")
    a("v_lshlrev_b32 v5, 1, v0")
    a("s_mul_i32 s44, s3, 384")
    a("s_lshl_b32 s45, s3, 1")
    a("s_waitcnt lgkmcnt(0)")
    srd(a, 20, 8, 640*192*2); srd(a, 24, 10, 640*192*2); srd(a, 28, 12, 640*192*2); srd(a, 32, 14, 640*192*2)
    srd(a, 36, 16, 1280); srd(a, 40, 18, WS_SIZE)
    a("buffer_load_ushort v32, off, s[36:39], s45")
    for k, sr in enumerate((20, 24, 28, 32)):
        a(f"buffer_load_ushort v{8+k}, v5, s[{sr}:{sr+3}], s44 offen")
    emit_p0(a, 2, 35, 36, 37, 52, 53)
    a("v_lshlrev_b32 v34, 3, v2")
    for r in (34, 35, 36, 37):
        a(f"v_cvt_f32_u32 v{r}, v{r}")
    for r in range(40, 52):
        a(f"v_mov_b32 v{r}, 0")
    a("v_mov_b32 v52, 0")
    a("v_mov_b32 v53, s5")
    a("ds_write_b16 v53, v52 offset:4400")
    a(f"s_mov_b32 s46, {LOG2E}")
    a(f"s_mov_b32 s47, {NLOG2E}")
    a("s_mov_b32 s48, 0xffff0000")
    a("s_waitcnt vmcnt(0)")
    a("v_lshlrev_b32 v32, 16, v32")
    a("v_mul_f32 v32, s46, v32")
    a("v_exp_f32 v32, v32")
    a("v_cvt_pk_bf16_f32 v32, v32, v32")
    a("v_lshlrev_b32 v32, 16, v32")
    a("v_add_f32 v33, v32, v32")
    for k in range(4):
        a(f"v_lshlrev_b32 v{8+k}, 16, v{8+k}")
    a("v_mul_f32 v8, s46, v8")
    a("v_exp_f32 v8, v8")
    a("v_mul_f32 v9, v9, v32")
    a("v_mul_f32 v10, v10, v33")
    a("v_cvt_pk_bf16_f32 v8, v8, v8")
    a("v_mul_f32 v11, v11, v33")
    a("v_lshlrev_b32 v8, 16, v8")
    a("v_mul_f32 v9, 0.15915494, v9")
    a("v_mul_f32 v8, v8, v32")
    a("v_mul_f32 v8, s47, v8")
    a("v_lshlrev_b32 v12, 4, v0")
    a("v_add_u32 v12, s5, v12")
    a("v_cmp_gt_u32 vcc, 192, v0")
    a("s_and_saveexec_b64 s[50:51], vcc")
    a("ds_write_b128 v12, v[8:11] offset:4608")
    a("s_mov_b64 exec, s[50:51]")
    a("s_waitcnt lgkmcnt(0)")
    a("s_barrier")
    a("v_mul_u32_u24 v12, 48, v4")
    a("v_lshl_add_u32 v12, v3, 2, v12")
    a("v_lshlrev_b32 v12, 4, v12")
    a("v_add_u32 v12, s5, v12")
    PB = [52, 84]
    a(f"ds_read_b128 v[52:55], v12 offset:4608")
    for T in range(3):
        for m in range(4):
            n = 4*T + m
            P = PB[n & 1]
            if n + 1 < 12:
                Tn, mn = divmod(n+1, 4)
                a(f"ds_read_b128 v[{PB[(n+1)&1]}:{PB[(n+1)&1]+3}], v12 offset:{4608 + (16*Tn + mn)*16}")
                a("s_waitcnt lgkmcnt(1)")
            else:
                a("s_waitcnt lgkmcnt(0)")
            for k in range(4):
                p = 34 + k
                e, th = 56 + 4*k, 57 + 4*k
                a(f"v_mul_f32 v{e}, v{P}, v{p}")
                a(f"v_mul_f32 v{th}, v{P+1}, v{p}")
            for k in range(4):
                e, th = 56 + 4*k, 57 + 4*k
                a(f"v_exp_f32 v{e}, v{e}")
                a(f"v_fract_f32 v{th}, v{th}")
            for k in range(4):
                th, c, s_ = 57 + 4*k, 58 + 4*k, 59 + 4*k
                a(f"v_cos_f32 v{c}, v{th}")
                a(f"v_sin_f32 v{s_}, v{th}")
            a("v_mul_f32 v72, v56, v58")
            a("v_mul_f32 v73, v56, v59")
            for g in range(3):
                e = 60 + 4*g
                a(f"v_mul_f32 v{74+2*g}, v{P+2}, v{e}")
                a(f"v_mul_f32 v{75+2*g}, v{P+3}, v{e}")
            a(f"v_cvt_pk_bf16_f32 v{100+m}, v72, -v73")
            for g in range(3):
                c, s_ = 62 + 4*g, 63 + 4*g
                t1, t2 = 74+2*g, 75+2*g
                a(f"v_mul_f32 v{104+2*g}, v{t1}, v{c}")
                a(f"v_mul_f32 v{105+2*g}, v{t1}, v{s_}")
                a(f"v_fma_f32 v{104+2*g}, -v{t2}, v{s_}, v{104+2*g}")
                a(f"v_fma_f32 v{105+2*g}, v{t2}, v{c}, v{105+2*g}")
                a(f"v_cvt_pk_bf16_f32 v{88+4*g+m}, v{104+2*g}, v{105+2*g}")
        for g in range(3):
            a(f"v_mfma_f32_16x16x32_bf16 v[{40+4*g}:{43+4*g}], v[{88+4*g}:{91+4*g}], v[100:103], v[{40+4*g}:{43+4*g}]")
    a("v_mul_u32_u24 v52, 3, v4")
    a("v_lshlrev_b32 v52, 6, v52")
    a("v_add_u32 v52, v52, v1")
    a("v_lshlrev_b32 v52, 4, v52")
    a("v_add_u32 v52, s5, v52")
    for g in range(3):
        a(f"ds_write_b128 v52, v[{40+4*g}:{43+4*g}] offset:{8192 + g*1024}")
    a("s_waitcnt lgkmcnt(0)")
    a("s_barrier")
    a("v_lshlrev_b32 v52, 4, v1")
    a("v_lshl_add_u32 v52, v4, 2, v52")
    a("v_add_u32 v52, s5, v52")
    for w in range(4):
        for g in range(3):
            a(f"ds_read_b32 v{56 + w*3 + g}, v52 offset:{8192 + (w*3+g)*1024}")
    a("v_lshl_add_u32 v53, v3, 2, v4")
    emit_p0(a, 53, 68, 69, 70, 54, 55)
    a("v_lshlrev_b32 v54, 3, v2")
    for g in range(3):
        a(f"v_add_lshl_u32 v{68+g}, v{68+g}, v54, 1")
        a(f"v_add_u32 v{68+g}, s5, v{68+g}")
    a("s_waitcnt lgkmcnt(0)")
    for g in range(3):
        a(f"v_add_f32 v{56+g}, v{56+g}, v{59+g}")
        a(f"v_add_f32 v{62+g}, v{62+g}, v{65+g}")
        a(f"v_add_f32 v{56+g}, v{56+g}, v{62+g}")
        a(f"v_cvt_pk_bf16_f32 v{56+g}, v{56+g}, v{56+g}")
        a(f"ds_write_b16 v{68+g}, v{56+g}")
    a("s_waitcnt lgkmcnt(0)")
    a("s_barrier")
    a(f"s_mul_i32 s44, s3, {KXP}")
    a(f"s_add_u32 s44, s44, {WS_KX}")
    a("s_movk_i32 s45, 0x800")
    a("v_mov_b32 v79, 4400")
    for it in range(2):
        if it == 1:
            a("v_cmp_gt_u32 vcc, 20, v0")
            a("s_and_saveexec_b64 s[50:51], vcc")
            a("s_cbranch_execz L_kgen_done")
            a("v_add_u32 v52, 0x100, v0")
        else:
            a("v_mov_b32 v52, v0")
        a("v_lshlrev_b32 v53, 3, v52")
        for i in range(8):
            a(f"v_add_u32 v{54+i}, {i}, v53")
            a(f"v_sub_u32 v{62+i}, s45, v{54+i}")
            a(f"v_cvt_f32_i32 v{62+i}, v{62+i}")
        for i in range(0, 8, 2):
            a(f"v_cvt_pk_bf16_f32 v{70}, v{62+i}, v{63+i}")
            a(f"v_lshlrev_b32 v{62+i}, 16, v70")
            a(f"v_and_b32 v{63+i}, s48, v70")
        for i in range(8):
            a(f"v_cvt_u32_f32 v{62+i}, v{62+i}")
            a(f"v_lshlrev_b32 v{62+i}, 1, v{62+i}")
            a(f"v_add_u32 v{54+i}, -1, v{54+i}")
            a(f"v_cmp_gt_u32 vcc, s45, v{54+i}")
            a(f"v_cndmask_b32 v{62+i}, v79, v{62+i}, vcc")
            a(f"v_add_u32 v{62+i}, s5, v{62+i}")
        for i in range(8):
            a(f"ds_read_u16 v{54+i}, v{62+i}")
        a("v_lshlrev_b32 v53, 4, v52")
        a("s_waitcnt lgkmcnt(0)")
        for i in range(0, 8, 2):
            a(f"v_lshl_or_b32 v{72+i//2}, v{55+i}, 16, v{54+i}")
        a("buffer_store_dwordx4 v[72:75], v53, s[40:43], s44 offen")
    a.label("L_kgen_done")
    a("s_endpgm")

WS_UT = 0xC00000
WS_YT = 0xF00000

def transp(a, wg_base, nthreads, direction):
    nh = nthreads // 256
    tag = direction
    a(f"s_sub_u32 s3, s2, {wg_base}")
    a("s_load_dwordx2 s[8:9], s[0:1], 24")
    a("s_load_dwordx2 s[10:11], s[0:1], 72")
    a("s_load_dwordx2 s[12:13], s[0:1], 80")
    a("s_load_dwordx2 s[14:15], s[0:1], 96")
    a("v_lshrrev_b32 v4, 8, v0")
    a("v_readfirstlane_b32 s4, v4")
    a("v_and_b32 v0, 255, v0")
    a("v_and_b32 v1, 63, v0")
    a("v_lshrrev_b32 v4, 6, v0")
    a(f"s_mul_i32 s3, s3, {nh}")
    a("s_add_u32 s3, s3, s4")
    a("s_mul_i32 s5, s4, 9216")
    a("s_mul_i32 s6, s3, 6554")
    a("s_lshr_b32 s6, s6, 16")
    a("s_mul_i32 s7, s6, 10")
    a("s_sub_u32 s7, s3, s7")
    a("s_waitcnt lgkmcnt(0)")
    srd(a, 16, 8, 2048*640*2); srd(a, 20, 10, 1280); srd(a, 24, 12, 2048*1280*2); srd(a, 28, 14, WS_SIZE2)
    a("v_lshrrev_b32 v5, 3, v0")
    a("v_and_b32 v6, 7, v0")
    if direction == 'u':
        a("v_mul_u32_u24 v7, 1280, v5")
        a("v_lshl_add_u32 v7, v6, 4, v7")
        a("s_mul_i32 s32, s6, 81920")
        a("s_lshl_b32 s33, s7, 7")
        a("s_add_u32 s32, s32, s33")
        a("s_add_u32 s33, s32, 40960")
        a("buffer_load_dwordx4 v[8:11], v7, s[16:19], s32 offen")
        a("buffer_load_dwordx4 v[12:15], v7, s[16:19], s33 offen")
    else:
        a("v_lshlrev_b32 v7, 12, v5")
        a("v_lshl_add_u32 v7, v6, 4, v7")
        a("s_lshl_b32 s32, s7, 18")
        a("s_lshl_b32 s33, s6, 7")
        a("s_add_u32 s32, s32, s33")
        a(f"s_add_u32 s32, s32, {WS_YT}")
        a("s_add_u32 s33, s32, 131072")
        a("buffer_load_dwordx4 v[8:11], v7, s[28:31], s32 offen")
        a("buffer_load_dwordx4 v[12:15], v7, s[28:31], s33 offen")
    a("v_mul_u32_u24 v16, 144, v5")
    a("v_lshl_add_u32 v16, v6, 4, v16")
    a("v_add_u32 v16, s5, v16")
    a("v_lshrrev_b32 v17, 4, v1")
    a("v_bfe_u32 v18, v1, 2, 2")
    a("v_and_b32 v19, 3, v1")
    a("v_and_b32 v20, 15, v1")
    a("v_lshl_add_u32 v21, v17, 3, v18")
    a("v_mul_u32_u24 v21, 144, v21")
    a("v_lshl_add_u32 v21, v19, 3, v21")
    a("v_lshl_add_u32 v21, v4, 5, v21")
    a("v_add_u32 v21, s5, v21")
    a("v_lshl_add_u32 v22, v4, 4, v20")
    if direction == 'u':
        a("v_lshlrev_b32 v23, 12, v22")
        a("v_lshl_add_u32 v23, v17, 4, v23")
        a("s_lshl_b32 s34, s7, 18")
        a("s_lshl_b32 s35, s6, 7")
        a("s_add_u32 s34, s34, s35")
        a(f"s_add_u32 s34, s34, {WS_UT}")
    else:
        a("v_mul_u32_u24 v23, 2560, v22")
        a("v_lshl_add_u32 v23, v17, 4, v23")
        a("s_mul_i32 s34, s6, 163840")
        a("s_lshl_b32 s35, s7, 7")
        a("s_add_u32 s34, s34, s35")
        a("s_add_u32 s34, s34, 1280")
        a("v_mul_u32_u24 v24, 1280, v22")
        a("v_lshl_add_u32 v24, v17, 4, v24")
        a("s_mul_i32 s36, s6, 81920")
        a("s_add_u32 s36, s36, s35")
        a("buffer_load_dwordx4 v[32:35], v24, s[16:19], s36 offen")
        a("buffer_load_dwordx4 v[36:39], v24, s[16:19], s36 offen offset:64")
        a("v_lshlrev_b32 v24, 4, v17")
        a("buffer_load_dwordx4 v[40:43], v24, s[20:23], s35 offen")
        a("buffer_load_dwordx4 v[44:47], v24, s[20:23], s35 offen offset:64")
        a("s_waitcnt vmcnt(4)")
    if direction == 'u': a("s_waitcnt vmcnt(0)")
    a("ds_write_b128 v16, v[8:11]")
    a(f"ds_write_b128 v16, v[12:15] offset:{32*144}")
    a("s_waitcnt lgkmcnt(0)")
    a("s_barrier")
    for i in range(2):
        a(f"ds_read_b64_tr_b16 v[{8+4*i}:{9+4*i}], v21 offset:{i*32*144}")
        a(f"ds_read_b64_tr_b16 v[{10+4*i}:{11+4*i}], v21 offset:{i*32*144 + 4*144}")
    a("s_waitcnt lgkmcnt(0)")
    if direction == 'u':
        a("buffer_store_dwordx4 v[8:11], v23, s[28:31], s34 offen")
        a("buffer_store_dwordx4 v[12:15], v23, s[28:31], s34 offen offset:64")
    else:
        a("s_mov_b32 s38, 0xffff0000")
        a("s_waitcnt vmcnt(0)")
        for i in range(2):
            for k in range(4):
                y, u, d = 8+4*i+k, 32+4*i+k, 40+4*i+k
                a(f"v_lshlrev_b32 v48, 16, v{u}")
                a(f"v_and_b32 v49, s38, v{u}")
                a(f"v_lshlrev_b32 v50, 16, v{d}")
                a(f"v_and_b32 v51, s38, v{d}")
                a("v_mul_f32 v48, v48, v50")
                a("v_mul_f32 v49, v49, v51")
                a("v_cvt_pk_bf16_f32 v48, v48, v49")
                a("v_and_b32 v49, s38, v48")
                a("v_lshlrev_b32 v48, 16, v48")
                a(f"v_lshlrev_b32 v50, 16, v{y}")
                a(f"v_and_b32 v51, s38, v{y}")
                a("v_add_f32 v48, v48, v50")
                a("v_add_f32 v49, v49, v51")
                a(f"v_cvt_pk_bf16_f32 v{y}, v48, v49")
            a(f"buffer_store_dwordx4 v[{8+4*i}:{11+4*i}], v23, s[24:27], s34 offen offset:{64*i}")
    a("s_endpgm")

KCP = 4416
L_UD = 4 * KCP
CONV_LDS = L_UD + 96 * 80 + 256
L_Y = 24576
CONV_LDS = L_Y + 4096

def conv(a, wg_base):
    a(f"s_sub_u32 s3, s2, {wg_base}")
    a("; STAMP 0")
    a("s_load_dwordx2 s[14:15], s[0:1], 96")
    a("v_and_b32 v1, 63, v0")
    a("v_lshrrev_b32 v4, 6, v0")
    a("v_readfirstlane_b32 s4, v4")
    a("v_lshlrev_b32 v6, 4, v0")
    a(f"s_mul_i32 s34, s3, {KXP}")
    a(f"s_add_u32 s34, s34, {WS_KX - 8}")
    a("s_add_u32 s40, s34, 4096")
    a("s_lshl_b32 s32, s3, 12")
    a(f"s_add_u32 s33, s32, {WS_UT}")
    a("s_waitcnt lgkmcnt(0)")
    srd(a, 28, 14, WS_SIZE2)
    a("buffer_load_dwordx4 v[8:11], v6, s[28:31], s33 offen")
    for i in range(2):
        so = "s34" if i == 0 else "s40"
        a(f"buffer_load_dwordx2 v[{24+6*i}:{25+6*i}], v6, s[28:31], {so} offen")
        a(f"buffer_load_dwordx4 v[{26+6*i}:{29+6*i}], v6, s[28:31], {so} offen offset:8")
    a("v_mov_b32 v60, 0"); a("v_mov_b32 v61, 0"); a("v_mov_b32 v62, 0"); a("v_mov_b32 v63, 0")
    a("v_cmp_gt_u32 vcc, 160, v0")
    a("s_and_saveexec_b64 s[36:37], vcc")
    a(f"ds_write_b128 v6, v[60:63] offset:{L_UD}")
    a("s_mov_b64 exec, s[36:37]")
    a("v_lshrrev_b32 v7, 2, v0")
    a("v_mul_u32_u24 v7, 80, v7")
    a("v_and_b32 v12, 3, v0")
    a("v_lshl_add_u32 v7, v12, 4, v7")
    a("s_waitcnt vmcnt(4)")
    a(f"ds_write_b128 v7, v[8:11] offset:{L_UD + 32*80}")
    for i in range(2):
        a(f"s_waitcnt vmcnt({2 - 2*i})")
        d = 24 + 6*i
        if i == 1:
            a("v_cmp_gt_u32 vcc, 20, v0")
            a("s_and_saveexec_b64 s[36:37], vcc")
        if i == 0:
            a("v_cmp_eq_u32 vcc, 0, v0")
            a(f"v_cndmask_b32 v{d}, v{d}, 0, vcc")
            a(f"v_cndmask_b32 v{d+1}, v{d+1}, 0, vcc")
        a(f"ds_write_b128 v6, v[{d+2}:{d+5}] offset:{i*4096}")
        for j in range(4):
            a(f"v_alignbit_b32 v{64+j}, v{d+2+j}, v{d+1+j}, 16")
        a(f"ds_write_b128 v6, v[64:67] offset:{i*4096 + KCP}")
        for j in range(4):
            a(f"v_mov_b32 v{68+j}, v{d+1+j}")
        a(f"ds_write_b128 v6, v[68:71] offset:{i*4096 + 2*KCP}")
        for j in range(4):
            a(f"v_alignbit_b32 v{72+j}, v{d+1+j}, v{d+j}, 16")
        a(f"ds_write_b128 v6, v[72:75] offset:{i*4096 + 3*KCP}")
        if i == 1:
            a("s_mov_b64 exec, s[36:37]")
    a("v_and_b32 v8, 31, v1")
    a("v_lshrrev_b32 v9, 5, v1")
    a("v_and_b32 v10, 3, v8")
    a(f"v_mul_u32_u24 v10, {KCP}, v10")
    a("v_and_b32 v11, 28, v8")
    a("v_sub_u32 v11, 32, v11")
    a("v_lshl_add_u32 v11, v9, 3, v11")
    a("v_lshl_add_u32 v10, v11, 1, v10")
    a("s_and_b32 s5, s4, 1")
    a("s_lshr_b32 s6, s4, 1")
    a("s_lshl_b32 s6, s6, 5")
    a("s_xor_b32 s5, s5, 1")
    a("s_lshl_b32 s7, s5, 6")
    a("s_add_u32 s7, s7, s6")
    a("v_add_u32 v10, s7, v10")
    a("v_mul_u32_u24 v11, 80, v8")
    a("v_lshl_add_u32 v11, v9, 4, v11")
    a("s_mul_i32 s7, s5, 80")
    a("s_add_u32 s7, s7, s6")
    a(f"s_add_u32 s7, s7, {L_UD + 80}")
    a("v_add_u32 v11, s7, v11")
    ACC0, ACC1 = 64, 80
    for r in range(32):
        a(f"v_mov_b32 v{64+r}, 0")
    a("s_waitcnt lgkmcnt(0)")
    a("s_barrier")
    a("; STAMP 1")
    steps = list(range(1, 32, 2))
    FR = [96, 112, 128]
    def loads(si):
        d = steps[si]; f = FR[si % 3]
        oa = 64*(63-d); oa2 = 64*(63-(d+32))
        a(f"ds_read_b64 v[{f}:{f+1}], v10 offset:{oa}")
        a(f"ds_read_b64 v[{f+2}:{f+3}], v10 offset:{oa+8}")
        a(f"ds_read_b128 v[{f+8}:{f+11}], v11 offset:{(31-d)*80}")
        a(f"ds_read_b128 v[{f+12}:{f+15}], v11 offset:{(63-d)*80}")
        a(f"ds_read_b64 v[{f+4}:{f+5}], v10 offset:{oa2}")
        a(f"ds_read_b64 v[{f+6}:{f+7}], v10 offset:{oa2+8}")
    loads(0); loads(1)
    n = len(steps)
    for si in range(n):
        if si + 2 < n:
            loads(si + 2)
            a("s_waitcnt lgkmcnt(12)")
        elif si + 1 < n:
            a("s_waitcnt lgkmcnt(6)")
        else:
            a("s_waitcnt lgkmcnt(0)")
        f = FR[si % 3]
        a(f"v_mfma_f32_32x32x16_bf16 v[{ACC0}:{ACC0+15}], v[{f}:{f+3}], v[{f+8}:{f+11}], v[{ACC0}:{ACC0+15}]")
        a(f"v_mfma_f32_32x32x16_bf16 v[{ACC1}:{ACC1+15}], v[{f}:{f+3}], v[{f+12}:{f+15}], v[{ACC1}:{ACC1+15}]")
        a(f"v_mfma_f32_32x32x16_bf16 v[{ACC1}:{ACC1+15}], v[{f+4}:{f+7}], v[{f+8}:{f+11}], v[{ACC1}:{ACC1+15}]")
    a("; STAMP 2")
    a("s_barrier")
    a("v_lshlrev_b32 v12, 4, v1")
    for w in range(4):
        a(f"s_cmp_eq_u32 s4, {w}")
        a(f"s_cbranch_scc0 L_cv_w{w}")
        for dw in range(4):
            if dw == w: continue
            slot = w if w < dw else w - 1
            for q in range(2):
                r = 64 + 4*(2*dw + q)
                a(f"ds_write_b128 v12, v[{r}:{r+3}] offset:{(dw*3 + slot)*2048 + q*1024}")
        for q in range(2):
            for k in range(4):
                a(f"v_mov_b32 v{96+4*q+k}, v{64+4*(2*w+q)+k}")
        a.label(f"L_cv_w{w}")
    a("s_waitcnt lgkmcnt(0)")
    a("s_barrier")
    a("s_mul_i32 s5, s4, 6144")
    a("v_add_u32 v13, s5, v12")
    for sl in range(3):
        for q in range(2):
            a(f"ds_read_b128 v[{104+8*sl+4*q}:{107+8*sl+4*q}], v13 offset:{sl*2048 + q*1024}")
    a("s_waitcnt lgkmcnt(0)")
    for k in range(8):
        a(f"v_add_f32 v{104+k}, v{104+k}, v{112+k}")
        a(f"v_add_f32 v{96+k}, v{96+k}, v{120+k}")
        a(f"v_add_f32 v{96+k}, v{96+k}, v{104+k}")
    a("v_lshlrev_b32 v12, 6, v8")
    a("v_lshl_add_u32 v12, v9, 3, v12")
    a("s_lshr_b32 s5, s4, 1")
    a("s_lshl_b32 s5, s5, 11")
    a("s_and_b32 s6, s4, 1")
    a("s_lshl_b32 s6, s6, 5")
    a("s_add_u32 s5, s5, s6")
    a("v_add_u32 v12, s5, v12")
    for q in range(2):
        a(f"v_cvt_pk_bf16_f32 v{104+2*q}, v{96+4*q}, v{97+4*q}")
        a(f"v_cvt_pk_bf16_f32 v{105+2*q}, v{98+4*q}, v{99+4*q}")
        a(f"ds_write_b64 v12, v[{104+2*q}:{105+2*q}] offset:{L_Y + q*16}")
    a("s_waitcnt lgkmcnt(0)")
    a("s_barrier")
    a(f"ds_read_b128 v[96:99], v6 offset:{L_Y}")
    a(f"s_add_u32 s33, s32, {WS_YT}")
    a("s_waitcnt lgkmcnt(0)")
    a("buffer_store_dwordx4 v[96:99], v6, s[28:31], s33 offen")
    a("s_endpgm")
```

```python
import sys
import partb
from partb import *
from parta import *
from stamp import *

def kd(name, vgpr, sgpr=102):
    acc = (vgpr + 3)//4*4
    return f""".amdhsa_kernel {name}
  .amdhsa_next_free_vgpr {vgpr}
  .amdhsa_next_free_sgpr {sgpr}
  .amdhsa_accum_offset {acc}
  .amdhsa_group_segment_fixed_size 0
  .amdhsa_kernarg_size 104
  .amdhsa_user_sgpr_count 2
  .amdhsa_user_sgpr_kernarg_segment_ptr 1
  .amdhsa_system_sgpr_workgroup_id_x 1
.end_amdhsa_kernel
"""
def khead(a, name):
    a.raw(f".globl {name}\n.p2align 8\n.type {name},@function\n{name}:")

HEADER = open("concat_heads__linear_attn_block__ssm_conv_s4d__prompt.s.ref").read().split("; Override launch")[0]

def build(path):
    a = Asm()
    a.raw(HEADER.rstrip())
    a.raw(f"; @launch kernel=k1_kernel grid=(736,1,1) block=(512,1,1) lds={A1_LDS}")
    a.raw(f"; @launch kernel=k2_kernel grid=(672,1,1) block=(256,1,1) lds={max(CONV_LDS, A2R_LDS)}")
    a.raw(f"; @launch kernel=k3_kernel grid=(640,1,1) block=(256,1,1) lds={A3_LDS}")
    a.raw('.amdgcn_target "amdgcn-amd-amdhsa--gfx950"\n.text')
    khead(a, "k1_kernel")
    a("s_cmp_ge_u32 s2, 736"); a("s_cbranch_scc1 L_k1_exit")
    a("s_cmp_ge_u32 s2, 576"); a("s_cbranch_scc1 L_k1_c")
    a("s_cmp_ge_u32 s2, 256"); a("s_cbranch_scc1 L_k1_b")
    a1(a)
    a.label("L_k1_b")
    kgen(a, 256)
    a.label("L_k1_c")
    transp(a, 576, 512, 'u')
    a.label("L_k1_exit"); a("s_endpgm")
    khead(a, "k2_kernel")
    a("s_cmp_ge_u32 s2, 672"); a("s_cbranch_scc1 L_k2_exit")
    a("s_cmp_ge_u32 s2, 32"); a("s_cbranch_scc1 L_k2_b")
    a2r(a)
    a.label("L_k2_b")
    conv(a, 32)
    a.label("L_k2_exit"); a("s_endpgm")
    khead(a, "k3_kernel")
    a("s_cmp_ge_u32 s2, 640"); a("s_cbranch_scc1 L_k3_exit")
    a("s_cmp_ge_u32 s2, 320"); a("s_cbranch_scc1 L_k3_b")
    a3(a)
    a.label("L_k3_b")
    transp(a, 320, 256, 'y')
    a.label("L_k3_exit"); a("s_endpgm")
    a.raw('.section .rodata,"a"\n.p2align 6')
    a.raw(kd("k1_kernel", 128)); a.raw(".p2align 6"); a.raw(kd("k2_kernel", 192)); a.raw(".p2align 6"); a.raw(kd("k3_kernel", 240))
    open(path, "w").write(a.finalize())
if __name__ == "__main__":
    build(sys.argv[1] if len(sys.argv) > 1 else "concat_heads__linear_attn_block__ssm_conv_s4d__prompt.s")
```

```python
from asmlib import *
from partb import srd, WS_PQ, WS_PART, WS_MT, WS_ZF, WS_SIZE, LOG2E

STG = 19456
XOFF = 15360
NST = 4
A1_LDS = STG * NST
KVP = 352
L_CMP = 64 * KVP
PSZ = 4 * 420 * 4

def phi_pair(a, x0, x1, t, dst):
    a(f"v_cvt_pk_bf16_f32 v{t}, v{x0}, v{x1}")
    a(f"v_lshlrev_b32 v{t+1}, 16, v{t}")
    a(f"v_and_b32 v{t+2}, s61, v{t}")
    a(f"v_mul_f32 v{t+3}, s60, v{t+1}")
    a(f"v_mul_f32 v{t+4}, s60, v{t+2}")
    a(f"v_exp_f32 v{t+3}, v{t+3}")
    a(f"v_exp_f32 v{t+4}, v{t+4}")
    a(f"v_add_f32 v{t+5}, 1.0, v{t+1}")
    a(f"v_add_f32 v{t+6}, 1.0, v{t+2}")
    a(f"v_cmp_lt_f32 vcc, 0, v{t+1}")
    a(f"v_cmp_lt_f32 s[44:45], 0, v{t+2}")
    a(f"v_cndmask_b32 v{t+3}, v{t+3}, v{t+5}, vcc")
    a(f"v_cndmask_b32 v{t+4}, v{t+4}, v{t+6}, s[44:45]")
    a(f"v_cvt_pk_bf16_f32 v{t}, v{t+3}, v{t+4}")
    a(f"v_lshlrev_b32 v{t+1}, 16, v{t}")
    a(f"v_and_b32 v{t+2}, s61, v{t}")
    a(f"v_add_f32 v{t+1}, s62, v{t+1}")
    a(f"v_add_f32 v{t+2}, s62, v{t+2}")
    a(f"v_cvt_pk_bf16_f32 v{dst}, v{t+1}, v{t+2}")

EXPF = set()
def a1(a):
    a("s_load_dwordx4 s[8:11], s[0:1], 0")
    a("s_load_dwordx2 s[12:13], s[0:1], 96")
    a("s_and_b32 s5, s2, 1")
    a("s_lshl_b32 s5, s5, 4")
    a("s_lshr_b32 s46, s2, 4")
    a("s_add_u32 s5, s5, s46")
    a("s_and_b32 s6, s2, 6")
    a("s_bfe_u32 s47, s2, 0x10003")
    a("s_add_u32 s6, s6, s47")
    a("v_and_b32 v1, 63, v0")
    a("v_lshrrev_b32 v4, 6, v0")
    a("v_readfirstlane_b32 s4, v4")
    a("; STAMP 0")
    if "prio" in EXPF: a("s_setprio 3")
    a("s_cmp_lt_u32 s4, 4")
    a("s_cbranch_scc1 L_a1_cons")
    a("v_and_b32 v4, 3, v4")
    a("s_and_b32 s4, s4, 3")
    a("s_mul_i32 s7, s6, 160")
    for jj in range(4):
        g = 16; r = 17; c = 18; sg = 19
        a(f"v_lshl_add_u32 v{g}, v4, 6, v1")
        a(f"v_add_u32 v{g}, {256*jj}, v{g}")
        a(f"v_min_u32 v{g}, 959, v{g}")
        a(f"v_mul_u32_u24 v{r}, 2185, v{g}")
        a(f"v_lshrrev_b32 v{r}, 16, v{r}")
        a(f"v_mul_u32_u24 v{c}, 30, v{r}")
        a(f"v_sub_u32 v{c}, v{g}, v{c}")
        a(f"v_mul_u32_u24 v{sg}, 6554, v{c}")
        a(f"v_lshrrev_b32 v{sg}, 16, v{sg}")
        a(f"v_mul_u32_u24 v20, 10, v{sg}")
        a(f"v_sub_u32 v{c}, v{c}, v20")
        a(f"v_mul_u32_u24 v{r}, 3840, v{r}")
        a(f"v_mul_u32_u24 v{sg}, 1280, v{sg}")
        a(f"v_lshl_add_u32 v{r}, v{c}, 4, v{r}")
        a(f"v_add3_u32 v{8+jj}, v{r}, v{sg}, s7")
    a("v_lshrrev_b32 v16, 2, v1")
    a("v_and_b32 v17, 3, v1")
    a("v_bfe_u32 v18, v1, 4, 2")
    a("v_xor_b32 v17, v17, v18")
    a("s_lshl_b32 s7, s5, 6")
    a("v_lshl_add_u32 v16, v4, 4, v16")
    a("v_add_u32 v16, s7, v16")
    a("v_mul_u32_u24 v12, 1280, v16")
    a("v_lshl_add_u32 v12, v17, 4, v12")
    a("s_waitcnt lgkmcnt(0)")
    srd(a, 16, 8, 2048*640*2); srd(a, 20, 10, 640*1920*2)
    a("s_lshl_b32 s28, s4, 10")
    a("s_mov_b32 s29, 0")
    a("s_mov_b32 s30, 0")
    def issue(slot, nw):
        for jj in range(nw):
            a(f"s_add_u32 m0, s28, {slot*STG + jj*4096}")
            a(f"buffer_load_dwordx4 v{8+jj}, s[20:23], s29 offen lds")
        a(f"s_add_u32 m0, s28, {slot*STG + XOFF}")
        a(f"buffer_load_dwordx4 v12, s[16:19], s30 offen lds")
        a("s_add_u32 s29, s29, 122880")
        a("s_add_u32 s30, s30, 64")
    a("s_cmp_eq_u32 s4, 3")
    a("s_cbranch_scc1 L_a1_prod3")
    for nw in (4, 3):
        if nw == 3: a.label("L_a1_prod3")
        for stg in range(3):
            issue(stg, nw)
        for t in range(20):
            a(f"s_waitcnt vmcnt({(nw+1)*min(2, 19-t)})")
            a("s_barrier")
            if t + 3 < 20:
                issue((t+3) % 4, nw)
        a("s_endpgm")
    a.label("L_a1_cons")
    a("v_lshrrev_b32 v16, 4, v1")
    a("v_bfe_u32 v17, v1, 2, 2")
    a("v_and_b32 v18, 3, v1")
    a("v_lshl_add_u32 v13, v16, 2, v17")
    a("v_mul_u32_u24 v13, 480, v13")
    a("v_lshl_add_u32 v13, v18, 3, v13")
    a("v_lshl_add_u32 v13, v4, 5, v13")
    a("v_and_b32 v19, 15, v1")
    a("v_lshrrev_b32 v20, 1, v16")
    a("v_lshrrev_b32 v21, 2, v19")
    a("v_xor_b32 v20, v20, v21")
    a("v_xor_b32 v21, 2, v20")
    a("v_and_b32 v22, 1, v16")
    a("v_lshlrev_b32 v22, 3, v22")
    a("v_lshl_add_u32 v22, v19, 6, v22")
    a(f"v_add_u32 v22, {XOFF}, v22")
    a("v_lshl_add_u32 v14, v20, 4, v22")
    a("v_lshl_add_u32 v15, v21, 4, v22")
    a(f"v_add_u32 v2, {2*STG}, v13")
    a(f"v_add_u32 v3, {2*STG}, v14")
    a(f"v_add_u32 v5, {2*STG}, v15")
    a("s_waitcnt lgkmcnt(0)")
    srd(a, 24, 12, WS_SIZE)
    srd(a, 16, 8, 2048*640*2); srd(a, 20, 10, 640*1920*2)
    ACC = 52; F = 20
    if "nopf" not in EXPF:
        a("v_lshlrev_b32 v23, 4, v1")
        a("s_mul_i32 s32, s5, 81920")
        a("s_mul_i32 s33, s47, 40960")
        a("s_add_u32 s32, s32, s33")
        a("s_mul_i32 s33, s4, 10240")
        a("s_add_u32 s32, s32, s33")
        for i in range(10):
            if i % 4 == 0 and i: a("s_add_u32 s32, s32, 4096")
            a(f"buffer_load_dwordx4 v[{116+4*(i%3)}:{119+4*(i%3)}], v23, s[16:19], s32 offen offset:{(i%4)*1024}")
        a("s_mul_i32 s32, s46, 153600")
        a("s_mul_i32 s33, s6, 160")
        a("s_add_u32 s32, s32, s33")
        for i in range(5):
            a(f"v_add_u32 v24, {256*i}, v0")
            a("v_min_u32 v24, 1199, v24")
            a("v_mul_u32_u24 v25, 34953, v24")
            a("v_lshrrev_b32 v25, 20, v25")
            a("v_mul_u32_u24 v26, 30, v25")
            a("v_sub_u32 v26, v24, v26")
            a("v_mul_u32_u24 v27, 6554, v26")
            a("v_lshrrev_b32 v27, 16, v27")
            a("v_mul_u32_u24 v28, 10, v27")
            a("v_sub_u32 v26, v26, v28")
            a("v_mul_u32_u24 v25, 3840, v25")
            a("v_mul_u32_u24 v27, 1280, v27")
            a("v_lshl_add_u32 v25, v26, 4, v25")
            a("v_add_u32 v25, v25, v27")
            a(f"buffer_load_dwordx4 v[{116+4*(i%3)}:{119+4*(i%3)}], v25, s[20:23], s32 offen")
    for r in range(ACC, ACC+64):
        a(f"v_mov_b32 v{r}, 0")
    a("s_mov_b32 s31, 0")
    a.label("L_a1_loop")
    for stg in range(20 if "unroll" in EXPF else 4):
        if "unroll" in EXPF and stg % 2 == 0 and stg < 16: a(f"; STAMP {3 + stg//2}")
        a("s_barrier")
        stg = stg % 4
        base = (stg & 1) * STG
        vb, va, va2 = (13, 14, 15) if stg < 2 else (2, 3, 5)
        for ct in range(4):
            a(f"ds_read_b64_tr_b16 v[{F+4*ct}:{F+1+4*ct}], v{vb} offset:{base + ct*128}")
            a(f"ds_read_b64_tr_b16 v[{F+2+4*ct}:{F+3+4*ct}], v{vb} offset:{base + ct*128 + 7680}")
            rt = ct
            a(f"ds_read_b64 v[{F+16+4*rt}:{F+17+4*rt}], v{va} offset:{base + rt*1024}")
            a(f"ds_read_b64 v[{F+18+4*rt}:{F+19+4*rt}], v{va2} offset:{base + rt*1024}")
        for lvl in range(4):
            a(f"s_waitcnt lgkmcnt({12 - 4*lvl})")
            pairs = [(lvl, j) for j in range(lvl+1)] + [(j, lvl) for j in range(lvl)]
            for (ct, rt) in pairs:
                acc = ACC + 16*ct + 4*rt
                a(f"v_mfma_f32_16x16x32_bf16 v[{acc}:{acc+3}], v[{F+4*ct}:{F+3+4*ct}], v[{F+16+4*rt}:{F+19+4*rt}], v[{acc}:{acc+3}]")
    if "unroll" not in EXPF:
        a("s_add_u32 s31, s31, 1")
        a("s_cmp_lt_u32 s31, 5")
        a("s_cbranch_scc1 L_a1_loop")
    a("s_barrier")
    a("; STAMP 1")
    a("s_waitcnt vmcnt(0)")
    a(f"s_mov_b32 s60, {LOG2E}")
    a("s_mov_b32 s61, 0xffff0000")
    a("s_mov_b32 s62, 0x358637bd")
    a("v_lshlrev_b32 v5, 3, v1")
    a(f"v_mul_u32_u24 v6, {KVP}, v19")
    a("v_lshl_add_u32 v6, v16, 3, v6")
    for slot in range(4):
        a(f"s_add_u32 s32, s4, {4*slot}")
        a("s_cmp_ge_u32 s32, 10")
        a(f"s_cbranch_scc1 L_a1_ep{slot}_v")
        for rt in range(4):
            acc = ACC + 16*slot + 4*rt
            phi_pair(a, acc, acc+1, 116, 20+8*slot+2*rt)
            phi_pair(a, acc+2, acc+3, 8, 21+8*slot+2*rt)
        a(f"s_branch L_a1_ep{slot}_done")
        a.label(f"L_a1_ep{slot}_v")
        for rt in range(4):
            acc = ACC + 16*slot + 4*rt
            a(f"v_cvt_pk_bf16_f32 v{20+8*slot+2*rt}, v{acc}, v{acc+1}")
            a(f"v_cvt_pk_bf16_f32 v{21+8*slot+2*rt}, v{acc+2}, v{acc+3}")
        a.label(f"L_a1_ep{slot}_done")
    for slot in range(4):
        a(f"s_add_u32 s32, s4, {4*slot}")
        a("s_cmp_ge_u32 s32, 15")
        a(f"s_cbranch_scc1 L_a1_st{slot}_done")
        a("s_cmp_ge_u32 s32, 5")
        a(f"s_cbranch_scc1 L_a1_st{slot}_lds")
        a("s_mul_i32 s35, s6, 5")
        a("s_add_u32 s35, s35, s32")
        a("s_lshl_b32 s35, s35, 9")
        a(f"s_mul_i32 s36, s5, {4*40*512}")
        a("s_add_u32 s35, s35, s36")
        for rt in range(4):
            a(f"s_add_u32 s36, s35, {WS_PQ + rt*40*512}")
            a(f"buffer_store_dwordx2 v[{20+8*slot+2*rt}:{21+8*slot+2*rt}], v5, s[24:27], s36 offen")
        a(f"s_branch L_a1_st{slot}_done")
        a.label(f"L_a1_st{slot}_lds")
        a("s_sub_u32 s35, s32, 5")
        a("s_lshl_b32 s35, s35, 5")
        a("v_add_u32 v7, s35, v6")
        for rt in range(4):
            a(f"ds_write_b64 v7, v[{20+8*slot+2*rt}:{21+8*slot+2*rt}] offset:{rt*16*KVP}")
        a.label(f"L_a1_st{slot}_done")
    a("s_waitcnt lgkmcnt(0)")
    a("s_barrier")
    a("; STAMP 2")
    a("v_lshl_add_u32 v13, v16, 2, v17")
    a(f"v_mul_u32_u24 v13, {KVP}, v13")
    a("v_lshl_add_u32 v13, v18, 3, v13")
    a("s_mul_i32 s35, s4, 40")
    a("v_add_u32 v13, s35, v13")
    for ks in range(2):
        for tl in range(2):
            a(f"ds_read_b64_tr_b16 v[{32+8*ks+4*tl}:{33+8*ks+4*tl}], v13 offset:{ks*32*KVP + tl*32}")
            a(f"ds_read_b64_tr_b16 v[{34+8*ks+4*tl}:{35+8*ks+4*tl}], v13 offset:{(ks*32+16)*KVP + tl*32}")
            a(f"ds_read_b64_tr_b16 v[{48+8*ks+4*tl}:{49+8*ks+4*tl}], v13 offset:{ks*32*KVP + 160 + tl*32}")
            a(f"ds_read_b64_tr_b16 v[{50+8*ks+4*tl}:{51+8*ks+4*tl}], v13 offset:{(ks*32+16)*KVP + 160 + tl*32}")
    a("v_cmp_eq_u32 vcc, 4, v19")
    a("v_mov_b32 v24, 0x3f803f80")
    a("s_waitcnt lgkmcnt(0)")
    for ks in range(2):
        for k in range(4):
            a(f"v_cndmask_b32 v{52+8*ks+k}, v{52+8*ks+k}, v24, vcc")
    for dtl in range(2):
        for etl in range(2):
            acc = 64 + 8*dtl + 4*etl
            a(f"v_mfma_f32_16x16x32_bf16 v[{acc}:{acc+3}], v[{32+4*dtl}:{35+4*dtl}], v[{48+4*etl}:{51+4*etl}], 0")
            a(f"v_mfma_f32_16x16x32_bf16 v[{acc}:{acc+3}], v[{40+4*dtl}:{43+4*dtl}], v[{56+4*etl}:{59+4*etl}], v[{acc}:{acc+3}]")
    a("v_mul_u32_u24 v24, 84, v16")
    a("v_add_u32 v24, v24, v19")
    a("s_mul_i32 s35, s4, 420")
    a("v_add_u32 v24, s35, v24")
    a("v_lshlrev_b32 v24, 2, v24")
    a(f"v_add_u32 v24, {L_CMP}, v24")
    a("v_cmp_gt_u32 s[36:37], 5, v19")
    a("v_cmp_gt_u32 s[38:39], 16, v1")
    a("s_and_b64 s[40:41], s[36:37], s[38:39]")
    for dtl in range(2):
        for etl in range(2):
            acc = 64 + 8*dtl + 4*etl
            m = {(0,0): None, (0,1): "s[36:37]", (1,0): "s[38:39]", (1,1): "s[40:41]"}[(dtl, etl)]
            if m: a(f"s_mov_b64 exec, {m}")
            for r in range(4):
                a(f"ds_write_b32 v24, v{acc+r} offset:{((16*dtl + r)*21 + 16*etl)*4}")
            if m: a("s_mov_b64 exec, -1")
    a("s_waitcnt lgkmcnt(0)")
    a("s_barrier")
    a("v_lshlrev_b32 v24, 4, v0")
    a("s_lshl_b32 s35, s5, 3")
    a("s_add_u32 s35, s35, s6")
    a(f"s_mul_i32 s35, s35, {PSZ}")
    a(f"s_add_u32 s35, s35, {WS_PART}")
    a(f"ds_read_b128 v[32:35], v24 offset:{L_CMP}")
    a(f"ds_read_b128 v[36:39], v24 offset:{L_CMP + 4096}")
    a("s_waitcnt lgkmcnt(0)")
    a("buffer_store_dwordx4 v[32:35], v24, s[24:27], s35 offen")
    a(f"v_cmp_gt_u32 vcc, {(PSZ - 4096)//16}, v0")
    a("s_and_saveexec_b64 s[36:37], vcc")
    a("s_add_u32 s35, s35, 4096")
    a("buffer_store_dwordx4 v[36:39], v24, s[24:27], s35 offen")
    a("s_endpgm")

WOP = 1312
L_KVT = 32 * WOP
A2R_LDS = L_KVT + 32 * 80

WOA = [8,9,10,11,12,13,14,15,60,61]
def a2r(a):
    a("s_load_dwordx2 s[8:9], s[0:1], 16")
    a("s_load_dwordx2 s[12:13], s[0:1], 96")
    a("v_and_b32 v1, 63, v0")
    a("v_lshrrev_b32 v4, 6, v0")
    a("v_readfirstlane_b32 s4, v4")
    a("s_lshr_b32 s5, s2, 2")
    a("s_and_b32 s6, s2, 3")
    a("s_waitcnt lgkmcnt(0)")
    srd(a, 16, 8, 640*640*2); srd(a, 24, 12, WS_SIZE)
    a(f"s_mul_i32 s29, s5, {PSZ}")
    a("s_mul_i32 s30, s6, 1680")
    a("s_add_u32 s29, s29, s30")
    a(f"s_add_u32 s29, s29, {WS_PART}")
    a("v_lshlrev_b32 v25, 2, v0")
    a("v_add_u32 v26, 1024, v25")
    a("v_min_u32 v26, 1676, v26")
    a("s_mov_b32 s34, s29")
    for rb in range(32):
        a(f"buffer_load_dword v{28+rb}, v25, s[24:27], s34 offen")
        a(f"buffer_load_dword v{112+rb}, v26, s[24:27], s34 offen")
        a(f"s_add_u32 s34, s34, {8*PSZ}")
    a("s_mul_i32 s28, s2, 25600")
    for i in range(10):
        a(f"v_add_u32 v16, {256*i}, v0")
        a("v_mul_u32_u24 v17, 52429, v16")
        a("v_lshrrev_b32 v17, 22, v17")
        a("v_mul_u32_u24 v18, 80, v17")
        a("v_sub_u32 v18, v16, v18")
        a("v_mul_u32_u24 v19, 1280, v17")
        a("v_lshl_add_u32 v19, v18, 4, v19")
        a("v_cmp_gt_u32 vcc, 20, v17")
        a("v_cndmask_b32 v19, -1, v19, vcc")
        a(f"v_mul_u32_u24 v{WOA[i]}, {WOP}, v17")
        a(f"v_lshl_add_u32 v{WOA[i]}, v18, 4, v{WOA[i]}")
        a(f"buffer_load_dwordx4 v[{64+4*i}:{67+4*i}], v19, s[16:19], s28 offen")
    a("v_mov_b32 v20, 0"); a("v_mov_b32 v21, 0"); a("v_mov_b32 v22, 0"); a("v_mov_b32 v23, 0")
    a("v_lshlrev_b32 v24, 4, v0")
    a("v_cmp_gt_u32 vcc, 160, v0")
    a("s_and_saveexec_b64 s[30:31], vcc")
    a(f"ds_write_b128 v24, v[20:23] offset:{L_KVT}")
    a("s_mov_b64 exec, s[30:31]")
    a("s_waitcnt lgkmcnt(0)")
    a("s_barrier")
    a("s_waitcnt vmcnt(10)")
    for rnd in range(2):
        b = 28 if rnd == 0 else 112
        for st in (16, 8, 4, 2, 1):
            for k in range(st):
                a(f"v_add_f32 v{b+k}, v{b+k}, v{b+k+st}")
        if rnd == 1:
            a("v_cmp_gt_u32 vcc, 164, v0")
            a("s_and_saveexec_b64 s[30:31], vcc")
        a(f"v_add_u32 v16, {256*rnd}, v0")
        a("v_mul_u32_u24 v17, 49933, v16")
        a("v_lshrrev_b32 v17, 20, v17")
        a("v_mul_u32_u24 v18, 21, v17")
        a("v_sub_u32 v18, v16, v18")
        a("v_cmp_eq_u32 s[32:33], 20, v18")
        a(f"v_cvt_pk_bf16_f32 v27, v{b}, v{b}")
        a("v_mul_u32_u24 v26, 80, v17")
        a("v_lshl_add_u32 v26, v18, 1, v26")
        a("s_mov_b64 s[36:37], exec")
        a("s_andn2_b64 exec, exec, s[32:33]")
        a(f"ds_write_b16 v26, v27 offset:{L_KVT}")
        a("s_and_b64 exec, s[36:37], s[32:33]")
        a("s_mul_i32 s35, s2, 40")
        a(f"s_add_u32 s35, s35, {WS_ZF}")
        a("v_lshlrev_b32 v26, 1, v17")
        a("buffer_store_short v27, v26, s[24:27], s35 offen")
        a("s_mov_b64 exec, -1")
    a("s_waitcnt vmcnt(0)")
    for i in range(10):
        a(f"ds_write_b128 v{WOA[i]}, v[{64+4*i}:{67+4*i}]")
    a("s_waitcnt lgkmcnt(0)")
    a("s_barrier")
    a("v_lshrrev_b32 v16, 4, v1")
    a("v_bfe_u32 v17, v1, 2, 2")
    a("v_and_b32 v18, 3, v1")
    a("v_and_b32 v19, 15, v1")
    a("v_mul_u32_u24 v20, 80, v19")
    a("v_lshl_add_u32 v20, v16, 3, v20")
    for dtile in range(2):
        a(f"ds_read_b64 v[{32+4*dtile}:{33+4*dtile}], v20 offset:{L_KVT + dtile*16*80}")
        a(f"ds_read_b64 v[{34+4*dtile}:{35+4*dtile}], v20 offset:{L_KVT + dtile*16*80 + 32}")
    a("v_lshl_add_u32 v21, v16, 2, v17")
    a(f"v_mul_u32_u24 v21, {WOP}, v21")
    a("v_lshl_add_u32 v21, v18, 3, v21")
    a("s_mul_i32 s35, s4, 320")
    a("v_add_u32 v21, s35, v21")
    a("s_mul_i32 s35, s2, 5")
    for dtile in range(2):
        d = 22 + dtile
        a(f"v_add_u32 v24, s35, v16")
        if dtile: a("v_add_u32 v24, 4, v24")
        a("v_lshrrev_b32 v25, 3, v24")
        a("v_and_b32 v26, 3, v24")
        a("v_bfe_u32 v27, v24, 2, 1")
        a(f"v_lshlrev_b32 v{d}, 10, v25")
        a(f"v_lshl_add_u32 v{d}, v26, 8, v{d}")
        a(f"v_lshl_add_u32 v{d}, v19, 4, v{d}")
        a(f"v_lshl_add_u32 v{d}, v27, 3, v{d}")
    a(f"s_mul_i32 s36, s4, {10*20*1024}")
    a(f"s_add_u32 s36, s36, {WS_MT}")
    a("v_cmp_gt_u32 s[38:39], 16, v1")
    for ct in range(10):
        a(f"ds_read_b64_tr_b16 v[{40+4*ct}:{41+4*ct}], v21 offset:{ct*32}")
        a(f"ds_read_b64_tr_b16 v[{42+4*ct}:{43+4*ct}], v21 offset:{ct*32 + 16*WOP}")
    for ct in range(10):
        a(f"s_waitcnt lgkmcnt({min(15, 18 - 2*ct)})")
        r0 = 80 + 8*(ct & 1)
        a(f"v_mfma_f32_16x16x32_bf16 v[{r0}:{r0+3}], v[32:35], v[{40+4*ct}:{43+4*ct}], 0")
        a(f"v_mfma_f32_16x16x32_bf16 v[{r0+4}:{r0+7}], v[36:39], v[{40+4*ct}:{43+4*ct}], 0")
        p = 96 + 4*(ct & 1)
        a(f"v_cvt_pk_bf16_f32 v{p}, v{r0}, v{r0+1}")
        a(f"v_cvt_pk_bf16_f32 v{p+1}, v{r0+2}, v{r0+3}")
        a(f"v_cvt_pk_bf16_f32 v{p+2}, v{r0+4}, v{r0+5}")
        a(f"v_cvt_pk_bf16_f32 v{p+3}, v{r0+6}, v{r0+7}")
        a(f"s_add_u32 s37, s36, {ct*20*1024}")
        a(f"buffer_store_dwordx2 v[{p}:{p+1}], v22, s[24:27], s37 offen")
        a("s_mov_b64 exec, s[38:39]")
        a(f"buffer_store_dwordx2 v[{p+2}:{p+3}], v23, s[24:27], s37 offen")
        a("s_mov_b64 exec, -1")
    a("s_endpgm")

L_Z = 4 * 40 * 512
A3_LDS = L_Z + 1280
OP = 272

def a3(a):
    a("s_load_dwordx2 s[8:9], s[0:1], 80")
    a("s_load_dwordx2 s[12:13], s[0:1], 96")
    a("v_and_b32 v1, 63, v0")
    a("v_lshrrev_b32 v4, 6, v0")
    a("v_readfirstlane_b32 s4, v4")
    a("s_lshr_b32 s7, s2, 3")
    a("s_mul_i32 s5, s7, 52429")
    a("s_lshr_b32 s5, s5, 18")
    a("s_mul_i32 s6, s5, 5")
    a("s_sub_u32 s6, s7, s6")
    a("s_and_b32 s7, s2, 7")
    a("s_lshl_b32 s7, s7, 2")
    a("s_add_u32 s5, s5, s7")
    a("; STAMP 0")
    a("v_lshlrev_b32 v5, 4, v1")
    a("s_waitcnt lgkmcnt(0)")
    srd(a, 16, 8, 2048*1280*2); srd(a, 24, 12, WS_SIZE)
    a("s_mul_i32 s30, s4, 160")
    a(f"s_add_u32 m0, s30, {L_Z}")
    a(f"s_add_u32 s30, s30, {WS_ZF}")
    a("v_cmp_gt_u32 vcc, 10, v1")
    a("s_and_saveexec_b64 s[32:33], vcc")
    a("buffer_load_dwordx4 v5, s[24:27], s30 offen lds")
    a("s_mov_b64 exec, s[32:33]")
    a(f"s_mul_i32 s28, s5, {4*40*512}")
    a("s_mul_i32 s29, s4, 10240")
    a("s_add_u32 s28, s28, s29")
    for i in range(10):
        a(f"s_add_u32 m0, s29, {i*1024}")
        a(f"s_add_u32 s30, s28, {WS_PQ + i*1024}")
        a("buffer_load_dwordx4 v5, s[24:27], s30 offen lds")
    a("s_lshl_b32 s29, s6, 3")
    a("s_add_u32 s29, s29, s4")
    a("s_mul_i32 s34, s29, 20480")
    a(f"s_add_u32 s34, s34, {WS_MT}")
    MT = 40
    def mtload(t):
        if t % 4 == 0 and t: a("s_add_u32 s34, s34, 4096")
        a(f"buffer_load_dwordx4 v[{MT+4*t}:{MT+4*t+3}], v5, s[24:27], s34 offen offset:{(t%4)*1024}")
    a("; STAMP 1")
    a("s_mov_b32 s61, 0xffff0000")
    a("s_mov_b32 s62, 0x358637bd")
    a("v_lshrrev_b32 v6, 4, v1")
    a("v_mul_u32_u24 v6, 20480, v6")
    a("v_and_b32 v7, 15, v1")
    a("v_lshl_add_u32 v6, v7, 3, v6")
    a("s_mul_i32 s30, s4, 2560")
    a("v_add_u32 v6, s30, v6")
    a("s_mul_i32 s30, s4, 160")
    a(f"s_add_u32 s30, s30, {L_Z}")
    a("v_mov_b32 v7, s30")
    a("s_waitcnt vmcnt(0)")
    a("s_barrier")
    a("; STAMP 2")
    a("; STAMP 3")
    PB, ZB = 120, 140
    def rd(hd):
        P = PB + 10*(hd & 1); Z = ZB + 10*(hd & 1)
        for i in range(5):
            qd = 5*hd + i
            a(f"ds_read_b64 v[{P+2*i}:{P+2*i+1}], v6 offset:{(qd>>2)*512 + (qd&3)*128}")
            a(f"ds_read_b64 v[{Z+2*i}:{Z+2*i+1}], v7 offset:{hd*40 + 8*i}")
    rd(0)
    for hd in range(4):
        P = PB + 10*(hd & 1); Z = ZB + 10*(hd & 1)
        if hd + 1 < 4:
            rd(hd+1)
            a(f"s_waitcnt lgkmcnt({10 if hd == 0 else 15})")
        else:
            a("s_waitcnt lgkmcnt(0)")
        a(f"v_dot2_f32_bf16 v32, v{P}, v{Z}, 0")
        a(f"v_dot2_f32_bf16 v33, v{P+1}, v{Z+1}, 0")
        for i in range(2, 10, 2):
            a(f"v_dot2_f32_bf16 v32, v{P+i}, v{Z+i}, v32")
            a(f"v_dot2_f32_bf16 v33, v{P+i+1}, v{Z+i+1}, v33")
        mtload(5*hd)
        for i in range(10):
            if i == 5: mtload(5*hd+1)
            a(f"v_lshlrev_b32 v{8+2*i}, 16, v{P+i}")
            a(f"v_and_b32 v{9+2*i}, s61, v{P+i}")
        a("v_add_f32 v32, v32, v33")
        a("v_cvt_pk_bf16_f32 v32, v32, v32")
        a("v_lshlrev_b32 v32, 16, v32")
        a("v_add_f32 v32, s62, v32")
        a("v_cvt_pk_bf16_f32 v32, v32, v32")
        a("v_lshlrev_b32 v32, 16, v32")
        a("v_rcp_f32 v32, v32")
        mtload(5*hd+2)
        for i in range(10):
            if i in (4, 9): mtload(5*hd+3+(i==9))
            a(f"v_mul_f32 v{8+2*i}, v{8+2*i}, v32")
            a(f"v_mul_f32 v{9+2*i}, v{9+2*i}, v32")
            a(f"v_cvt_pk_bf16_f32 v{P+i}, v{8+2*i}, v{9+2*i}")
        for i in range(5):
            qd = 5*hd + i
            a(f"ds_write_b64 v6, v[{P+2*i}:{P+2*i+1}] offset:{(qd>>2)*512 + (qd&3)*128}")
    a("s_waitcnt lgkmcnt(0)")
    a("s_barrier")
    a("; STAMP 4")
    a("v_lshlrev_b32 v6, 3, v1")
    a("v_add_u32 v7, 40960, v6")
    for r in range(8, 24):
        a(f"v_mov_b32 v{r}, 0")
    AF = [120, 136, 152]
    def lda(t):
        f = AF[t % 3]
        for rt in range(4):
            va = 6 if rt < 2 else 7
            a(f"ds_read_b64 v[{f+4*rt}:{f+4*rt+1}], v{va} offset:{(rt&1)*20480 + t*1024}")
            a(f"ds_read_b64 v[{f+4*rt+2}:{f+4*rt+3}], v{va} offset:{(rt&1)*20480 + t*1024 + 512}")
    lda(0)
    for t in range(20):
        if t + 1 < 20:
            lda(t+1)
        a(f"s_waitcnt vmcnt({19-t}) lgkmcnt({8 if t + 1 < 20 else 0})")
        f = AF[t % 3]
        for rt in range(4):
            acc = 8 + 4*rt
            a(f"v_mfma_f32_16x16x32_bf16 v[{acc}:{acc+3}], v[{MT+4*t}:{MT+4*t+3}], v[{f+4*rt}:{f+4*rt+3}], v[{acc}:{acc+3}]")
    a("; STAMP 5")
    a("s_barrier")
    a("v_lshrrev_b32 v40, 4, v1")
    a("v_and_b32 v41, 15, v1")
    a(f"v_mul_u32_u24 v42, {OP}, v41")
    a("v_lshl_add_u32 v42, v40, 3, v42")
    a("s_lshl_b32 s30, s4, 5")
    a("v_add_u32 v42, s30, v42")
    for rt in range(4):
        acc = 8 + 4*rt
        a(f"v_cvt_pk_bf16_f32 v{acc}, v{acc}, v{acc+1}")
        a(f"v_cvt_pk_bf16_f32 v{acc+1}, v{acc+2}, v{acc+3}")
        a(f"ds_write_b64 v42, v[{acc}:{acc+1}] offset:{rt*16*OP}")
    a("s_waitcnt lgkmcnt(0)")
    a("s_barrier")
    a("v_lshrrev_b32 v40, 4, v0")
    a("v_and_b32 v41, 15, v0")
    a(f"v_mul_u32_u24 v42, {OP}, v40")
    a("v_lshl_add_u32 v42, v41, 4, v42")
    a("ds_read_b128 v[8:11], v42")
    a(f"ds_read_b128 v[12:15], v42 offset:{32*OP}")
    a("s_lshl_b32 s7, s5, 6")
    a("v_add_u32 v40, s7, v40")
    a("v_mul_u32_u24 v40, 2560, v40")
    a("v_lshl_add_u32 v40, v41, 4, v40")
    a("s_lshl_b32 s30, s6, 8")
    a(f"s_add_u32 s31, s30, {32*2560}")
    a("s_waitcnt lgkmcnt(0)")
    a("buffer_store_dwordx4 v[8:11], v40, s[16:19], s30 offen")
    a("buffer_store_dwordx4 v[12:15], v40, s[16:19], s31 offen")
    a("s_endpgm")
```

```python
from asmlib import *

DEBUG_DUMP = False
WS_PQ = 0
WS_PART = 0x280000
PSZ = 18 * 1024
WS_KX = 0x700000
KXP = 4416
WS_MT = 0xA00000
WS_ZF = 0xB00000
WS_SIZE = 0x1000000
WS_SIZE2 = 0x2000000
LOG2E = "0x3fb8aa3b"
NLOG2E = "0xbfb8aa3b"

def srd(a, d, base, nbytes):
    a(f"s_mov_b32 s{d}, s{base}")
    a(f"s_mov_b32 s{d+1}, s{base+1}")
    a(f"s_mov_b32 s{d+2}, {nbytes}")
    a(f"s_mov_b32 s{d+3}, 0x00020000")

def emit_p0(a, vi, d0, d1, d2, t0, t1):
    a(f"v_and_b32 v{d0}, 7, v{vi}")
    a(f"v_and_b32 v{t0}, 8, v{vi}")
    a(f"v_lshlrev_b32 v{t0}, 4, v{t0}")
    a(f"v_or_b32 v{d0}, v{d0}, v{t0}")
    a(f"v_and_b32 v{t0}, 4, v{vi}")
    a(f"v_lshlrev_b32 v{t0}, 5, v{t0}")
    a(f"v_and_b32 v{t1}, 3, v{vi}")
    a(f"v_lshlrev_b32 v{t1}, 1, v{t1}")
    a(f"v_add3_u32 v{d1}, v{t0}, v{t1}, 0")
    a(f"v_add_u32 v{d1}, 0x100, v{d1}")
    a(f"v_and_b32 v{t0}, 6, v{vi}")
    a(f"v_lshlrev_b32 v{t0}, 6, v{t0}")
    a(f"v_and_b32 v{t1}, 1, v{vi}")
    a(f"v_lshlrev_b32 v{t1}, 2, v{t1}")
    a(f"v_add_u32 v{t0}, v{t0}, v{t1}")
    a(f"v_add_u32 v{t0}, 0x200, v{t0}")
    a(f"v_cmp_gt_u32 vcc, 8, v{vi}")
    a(f"v_cndmask_b32 v{d1}, v{t0}, v{d1}, vcc")
    a(f"v_lshlrev_b32 v{t0}, 7, v{vi}")
    a(f"v_add_u32 v{t0}, 0x400, v{t0}")
    a(f"v_mov_b32 v{t1}, 0x800")
    a(f"v_cndmask_b32 v{d2}, v{t1}, v{t0}, vcc")

KG_LDS = 3 * 12288
ATC = ['0x3e22f982', '0xbd594a64', '0x3d022dde', '0xbcb6bf74', '0x3c8127ca', '0xbc1ace2a', '0x3b7c1000', '0xba42c9cd']
def kgen(a, wg_base):
    a(f"s_sub_u32 s3, s2, {wg_base}")
    a("s_load_dwordx8 s[8:15], s[0:1], 32")
    a("s_load_dwordx2 s[16:17], s[0:1], 64")
    a("s_load_dwordx2 s[18:19], s[0:1], 96")
    a("v_lshrrev_b32 v4, 6, v0")
    a("v_readfirstlane_b32 s4, v4")
    a("v_and_b32 v1, 63, v0")
    a("v_and_b32 v2, 15, v0")
    a("v_bfe_u32 v3, v0, 4, 2")
    a("s_lshr_b32 s5, s4, 1")
    a("s_and_b32 s4, s4, 1")
    a("s_lshl_b32 s6, s5, 8")
    a("s_add_u32 s3, s3, s6")
    a("s_cmp_ge_u32 s3, 640")
    a("s_cbranch_scc1 L_kgen_exit")
    a("s_mul_i32 s5, s5, 12288")
    a("s_mul_i32 s44, s3, 384")
    a("s_mul_i32 s6, s4, 192")
    a("s_add_u32 s44, s44, s6")
    a("s_lshl_b32 s45, s3, 1")
    a("s_and_b32 s45, s45, 0xfffffffc")
    a("v_lshlrev_b32 v5, 2, v1")
    a("v_min_u32 v5, 188, v5")
    a("s_waitcnt lgkmcnt(0)")
    srd(a, 20, 8, 640*192*2); srd(a, 24, 10, 640*192*2); srd(a, 28, 12, 640*192*2); srd(a, 32, 14, 640*192*2)
    srd(a, 40, 18, WS_SIZE)
    for k, sr in enumerate((20, 24, 28, 32)):
        a(f"buffer_load_dword v{16+k}, v5, s[{sr}:{sr+3}], s44 offen")
    a("s_load_dword s51, s[16:17], s45")
    a("; KSTAMP 0")
    emit_p0(a, 2, 35, 36, 37, 52, 53)
    a("v_lshlrev_b32 v34, 3, v2")
    for r in (34, 35, 36, 37):
        a(f"v_cvt_f32_u32 v{r}, v{r}")
    for r in range(40, 52):
        a(f"v_mov_b32 v{r}, 0")
    a("v_mov_b32 v52, 0")
    a("v_mov_b32 v53, s5")
    a("ds_write_b16 v53, v52 offset:4400")
    a(f"s_mov_b32 s46, {LOG2E}")
    a(f"s_mov_b32 s47, {NLOG2E}")
    a("s_mov_b32 s48, 0xffff0000")
    a("s_mul_i32 s6, s4, 1536")
    a("s_add_u32 s6, s6, s5")
    a("v_lshlrev_b32 v13, 5, v1")
    a("v_add_u32 v13, s6, v13")
    a("v_mul_u32_u24 v12, 384, v3")
    a("v_add_u32 v12, s6, v12")
    a("s_waitcnt lgkmcnt(0)")
    a("s_and_b32 s7, s3, 1")
    a("s_lshl_b32 s7, s7, 4")
    a("s_lshr_b32 s51, s51, s7")
    a("s_lshl_b32 s51, s51, 16")
    a("v_mov_b32 v32, s51")
    a("v_mul_f32 v32, s46, v32")
    a("v_exp_f32 v32, v32")
    a("v_cvt_pk_bf16_f32 v32, v32, v32")
    a("v_lshlrev_b32 v32, 16, v32")
    a("v_add_f32 v33, v32, v32")
    a("s_waitcnt vmcnt(0)")
    a("; KSTAMP 1")
    seqs = []
    for q in range(2):
        B = 56 + 16*q
        l = []
        for k in range(4):
            l.append(f"v_lshlrev_b32 v{B+k}, 16, v{16+k}" if q == 0 else f"v_and_b32 v{B+k}, s48, v{16+k}")
        l += [f"v_mul_f32 v{B}, s46, v{B}", f"v_exp_f32 v{B}, v{B}", f"v_mul_f32 v{B+1}, v{B+1}, v32",
              f"v_mul_f32 v{B+2}, v{B+2}, v33", f"v_cvt_pk_bf16_f32 v{B}, v{B}, v{B}", f"v_mul_f32 v{B+3}, v{B+3}, v33",
              f"v_lshlrev_b32 v{B}, 16, v{B}", f"v_mul_f32 v{B+1}, 0.15915494, v{B+1}", f"v_mul_f32 v{B}, v{B}, v32",
              f"v_mul_f32 v{B}, s47, v{B}",
              f"v_mul_f32 v{B+4}, v{B+2}, v{B+2}", f"v_fma_f32 v{B+4}, v{B+3}, v{B+3}, v{B+4}", f"v_log_f32 v{B+4}, v{B+4}",
              f"v_max_f32 v{B+6}, abs(v{B+2}), abs(v{B+3})", f"v_min_f32 v{B+7}, abs(v{B+2}), abs(v{B+3})",
              f"v_max_f32 v{B+6}, 0x00800000, v{B+6}", f"v_rcp_f32 v{B+6}, v{B+6}", f"v_mul_f32 v{B+4}, 0.5, v{B+4}",
              f"v_mul_f32 v{B+7}, v{B+7}, v{B+6}", f"v_mul_f32 v{B+6}, v{B+7}, v{B+7}", f"v_mov_b32 v{B+5}, {ATC[7]}"]
        for c in range(6, -1, -1):
            l.append(f"v_fma_f32 v{B+5}, v{B+5}, v{B+6}, s{52+c}")
        cc = f"s[{60+2*q}:{61+2*q}]"
        l += [f"v_mul_f32 v{B+5}, v{B+5}, v{B+7}", f"v_sub_f32 v{B+6}, 0.25, v{B+5}",
              f"v_cmp_gt_f32 {cc}, abs(v{B+3}), abs(v{B+2})", f"v_cndmask_b32 v{B+5}, v{B+5}, v{B+6}, {cc}",
              f"v_sub_f32 v{B+6}, 0.5, v{B+5}", f"v_cmp_gt_f32 {cc}, 0, v{B+2}", f"v_cndmask_b32 v{B+5}, v{B+5}, v{B+6}, {cc}",
              f"v_cmp_gt_f32 {cc}, 0, v{B+3}", f"v_cndmask_b32 v{B+3}, v{B+5}, -v{B+5}, {cc}", f"v_mov_b32 v{B+2}, v{B+4}"]
        seqs.append(l)
    for c in range(7):
        a(f"s_mov_b32 s{52+c}, {ATC[c]}")
    for x, y in zip(*seqs):
        a(x); a(y)
    a("v_cmp_gt_u32 vcc, 48, v1")
    a("s_and_saveexec_b64 s[22:23], vcc")
    a("ds_write_b128 v13, v[56:59] offset:4608")
    a("ds_write_b128 v13, v[72:75] offset:4624")
    a("s_mov_b64 exec, s[22:23]")
    a("; KSTAMP 2")
    def prd(b):
        for n in range(4):
            a(f"ds_read_b128 v[{96+16*(b&1)+4*n}:{99+16*(b&1)+4*n}], v12 offset:{4608 + (4*b+n)*16}")
    prd(0)
    for b in range(6):
        if b + 1 < 6:
            prd(b+1); a("s_waitcnt lgkmcnt(4)")
        else:
            a("s_waitcnt lgkmcnt(0)")
        for n2 in range(0, 4, 2):
            seq = []
            for q in range(2):
                m = n2 + q; P = 96 + 16*(b&1) + 4*m; T = 52 + 16*q
                l = []
                l.append(f"v_mul_f32 v{T}, v{P}, v34")
                l.append(f"v_mul_f32 v{T+1}, v{P+1}, v34")
                for g in range(3):
                    l.append(f"v_fma_f32 v{T+4+4*g}, v{P}, v{35+g}, v{P+2}")
                    l.append(f"v_fma_f32 v{T+5+4*g}, v{P+1}, v{35+g}, v{P+3}")
                for k in range(4):
                    l.append(f"v_exp_f32 v{T+4*k}, v{T+4*k}")
                    l.append(f"v_fract_f32 v{T+4*k+1}, v{T+4*k+1}")
                for k in range(4):
                    l.append(f"v_cos_f32 v{T+4*k+2}, v{T+4*k+1}")
                    l.append(f"v_sin_f32 v{T+4*k+3}, v{T+4*k+1}")
                for k in range(4):
                    l.append(f"v_mul_f32 v{T+4*k+2}, v{T+4*k}, v{T+4*k+2}")
                    l.append(f"v_mul_f32 v{T+4*k+3}, v{T+4*k}, v{T+4*k+3}")
                l.append(f"v_cvt_pk_bf16_f32 v{28+m}, v{T+2}, -v{T+3}")
                for g in range(3):
                    l.append(f"v_cvt_pk_bf16_f32 v{16+4*g+m}, v{T+6+4*g}, v{T+7+4*g}")
                seq.append(l)
            for x, y in zip(*seq):
                a(x); a(y)
        for g in range(3):
            a(f"v_mfma_f32_16x16x32_bf16 v[{40+4*g}:{43+4*g}], v[{16+4*g}:{19+4*g}], v[28:31], v[{40+4*g}:{43+4*g}]")
    a("; KSTAMP 3")
    a("v_lshlrev_b32 v52, 4, v1")
    a("v_add_u32 v52, s5, v52")
    a("s_cmp_eq_u32 s4, 0")
    a("s_cbranch_scc1 L_kgen_h0a")
    for g in range(3):
        a(f"ds_write_b128 v52, v[{40+4*g}:{43+4*g}] offset:{8192 + g*1024}")
    a.label("L_kgen_h0a")
    a("s_waitcnt lgkmcnt(0)")
    a("s_barrier")
    a("s_cmp_eq_u32 s4, 1")
    a("s_cbranch_scc1 L_kgen_h1b")
    for g in range(3):
        a(f"ds_read_b128 v[{56+4*g}:{59+4*g}], v52 offset:{8192 + g*1024}")
    a("v_lshlrev_b32 v54, 3, v2")
    for r in range(4):
        a(f"v_lshl_add_u32 v53, v3, 2, {r}")
        emit_p0(a, 53, 72+r, 76+r, 80+r, 84, 85)
        for g in range(3):
            a(f"v_add_lshl_u32 v{72+4*g+r}, v{72+4*g+r}, v54, 1")
            a(f"v_add_u32 v{72+4*g+r}, s5, v{72+4*g+r}")
    a("s_waitcnt lgkmcnt(0)")
    for k in range(12):
        a(f"v_add_f32 v{40+k}, v{40+k}, v{56+k}")
        a(f"v_cvt_pk_bf16_f32 v{40+k}, v{40+k}, v{40+k}")
        a(f"ds_write_b16 v{72+k}, v{40+k}")
    a.label("L_kgen_h1b")
    a("s_waitcnt lgkmcnt(0)")
    a("s_barrier")
    a("; KSTAMP 4")
    a(f"s_mul_i32 s24, s3, {KXP}")
    a(f"s_add_u32 s24, s24, {WS_KX}")
    a("s_movk_i32 s25, 0x800")
    a("v_mov_b32 v86, 4400")
    a("v_and_b32 v6, 127, v0")
    for it in range(3):
        if it == 2:
            a("v_cmp_gt_u32 vcc, 20, v6")
            a("s_and_saveexec_b64 s[28:29], vcc")
            a("s_cbranch_execz L_kgen_exit")
        a(f"v_add_u32 v52, {128*it}, v6")
        a("v_lshlrev_b32 v53, 3, v52")
        for i in range(8):
            a(f"v_add_u32 v{54+i}, {i}, v53")
            a(f"v_sub_u32 v{62+i}, s25, v{54+i}")
            a(f"v_cvt_f32_i32 v{62+i}, v{62+i}")
        for i in range(0, 8, 2):
            a(f"v_cvt_pk_bf16_f32 v70, v{62+i}, v{63+i}")
            a(f"v_lshlrev_b32 v{62+i}, 16, v70")
            a(f"v_and_b32 v{63+i}, s48, v70")
        for i in range(8):
            a(f"v_cvt_u32_f32 v{62+i}, v{62+i}")
            a(f"v_lshlrev_b32 v{62+i}, 1, v{62+i}")
            a(f"v_add_u32 v{54+i}, -1, v{54+i}")
            a(f"v_cmp_gt_u32 vcc, s25, v{54+i}")
            a(f"v_cndmask_b32 v{62+i}, v86, v{62+i}, vcc")
            a(f"v_add_u32 v{62+i}, s5, v{62+i}")
        for i in range(8):
            a(f"ds_read_u16 v{54+i}, v{62+i}")
        a("v_lshlrev_b32 v53, 4, v52")
        a("s_waitcnt lgkmcnt(0)")
        for i in range(0, 8, 2):
            a(f"v_lshl_or_b32 v{72+4*(it&1)+i//2}, v{55+i}, 16, v{54+i}")
        a(f"buffer_store_dwordx4 v[{72+4*(it&1)}:{75+4*(it&1)}], v53, s[40:43], s24 offen")
    a.label("L_kgen_exit")
    a("; KEND")
    a("s_endpgm")

WS_UT = 0xC00000
WS_YT = 0xF00000

def transp(a, wg_base, nthreads, direction, nwg=None):
    nh = nthreads // 256
    tag = direction
    a(f"s_sub_u32 s3, s2, {wg_base}")
    a("s_load_dwordx2 s[8:9], s[0:1], 24")
    a("s_load_dwordx2 s[10:11], s[0:1], 72")
    a("s_load_dwordx2 s[12:13], s[0:1], 80")
    a("s_load_dwordx2 s[14:15], s[0:1], 96")
    a("v_lshrrev_b32 v4, 8, v0")
    a("v_readfirstlane_b32 s4, v4")
    a("v_and_b32 v0, 255, v0")
    a("v_and_b32 v1, 63, v0")
    a("v_lshrrev_b32 v4, 6, v0")
    a(f"s_mul_i32 s3, s3, {nh}")
    a("s_add_u32 s3, s3, s4")
    a("s_mul_i32 s5, s4, 9216")
    a("s_waitcnt lgkmcnt(0)")
    srd(a, 16, 8, 2048*640*2); srd(a, 20, 10, 1280); srd(a, 24, 12, 2048*1280*2); srd(a, 28, 14, WS_SIZE2)
    a.label(f"L_tr{tag}_loop")
    a("s_mul_i32 s6, s3, 6554")
    a("s_lshr_b32 s6, s6, 16")
    a("s_mul_i32 s7, s6, 10")
    a("s_sub_u32 s7, s3, s7")
    a("v_lshrrev_b32 v5, 3, v0")
    a("v_and_b32 v6, 7, v0")
    if direction == 'u':
        a("v_mul_u32_u24 v7, 1280, v5")
        a("v_lshl_add_u32 v7, v6, 4, v7")
        a("s_mul_i32 s32, s6, 81920")
        a("s_lshl_b32 s33, s7, 7")
        a("s_add_u32 s32, s32, s33")
        a("s_add_u32 s33, s32, 40960")
        a("buffer_load_dwordx4 v[8:11], v7, s[16:19], s32 offen")
        a("buffer_load_dwordx4 v[12:15], v7, s[16:19], s33 offen")
    else:
        a("v_lshlrev_b32 v7, 12, v5")
        a("v_lshl_add_u32 v7, v6, 4, v7")
        a("s_lshl_b32 s32, s7, 18")
        a("s_lshl_b32 s33, s6, 7")
        a("s_add_u32 s32, s32, s33")
        a(f"s_add_u32 s32, s32, {WS_YT}")
        a("s_add_u32 s33, s32, 131072")
        a("buffer_load_dwordx4 v[8:11], v7, s[28:31], s32 offen")
        a("buffer_load_dwordx4 v[12:15], v7, s[28:31], s33 offen")
    a("v_mul_u32_u24 v16, 144, v5")
    a("v_lshl_add_u32 v16, v6, 4, v16")
    a("v_add_u32 v16, s5, v16")
    a("v_lshrrev_b32 v17, 4, v1")
    a("v_bfe_u32 v18, v1, 2, 2")
    a("v_and_b32 v19, 3, v1")
    a("v_and_b32 v20, 15, v1")
    a("v_lshl_add_u32 v21, v17, 3, v18")
    a("v_mul_u32_u24 v21, 144, v21")
    a("v_lshl_add_u32 v21, v19, 3, v21")
    a("v_lshl_add_u32 v21, v4, 5, v21")
    a("v_add_u32 v21, s5, v21")
    a("v_lshl_add_u32 v22, v4, 4, v20")
    if direction == 'u':
        a("v_lshlrev_b32 v23, 12, v22")
        a("v_lshl_add_u32 v23, v17, 4, v23")
        a("s_lshl_b32 s34, s7, 18")
        a("s_lshl_b32 s35, s6, 7")
        a("s_add_u32 s34, s34, s35")
        a(f"s_add_u32 s34, s34, {WS_UT}")
    else:
        a("v_mul_u32_u24 v23, 2560, v22")
        a("v_lshl_add_u32 v23, v17, 4, v23")
        a("s_mul_i32 s34, s6, 163840")
        a("s_lshl_b32 s35, s7, 7")
        a("s_add_u32 s34, s34, s35")
        a("s_add_u32 s34, s34, 1280")
        a("v_mul_u32_u24 v24, 1280, v22")
        a("v_lshl_add_u32 v24, v17, 4, v24")
        a("s_mul_i32 s36, s6, 81920")
        a("s_add_u32 s36, s36, s35")
        a("buffer_load_dwordx4 v[32:35], v24, s[16:19], s36 offen")
        a("buffer_load_dwordx4 v[36:39], v24, s[16:19], s36 offen offset:64")
        a("v_lshlrev_b32 v24, 4, v17")
        a("buffer_load_dwordx4 v[40:43], v24, s[20:23], s35 offen")
        a("buffer_load_dwordx4 v[44:47], v24, s[20:23], s35 offen offset:64")
        a("s_waitcnt vmcnt(4)")
    if direction == 'u': a("s_waitcnt vmcnt(0)")
    a("ds_write_b128 v16, v[8:11]")
    a(f"ds_write_b128 v16, v[12:15] offset:{32*144}")
    a("s_waitcnt lgkmcnt(0)")
    a("s_barrier")
    for i in range(2):
        a(f"ds_read_b64_tr_b16 v[{8+4*i}:{9+4*i}], v21 offset:{i*32*144}")
        a(f"ds_read_b64_tr_b16 v[{10+4*i}:{11+4*i}], v21 offset:{i*32*144 + 4*144}")
    a("s_waitcnt lgkmcnt(0)")
    if direction == 'u':
        a("buffer_store_dwordx4 v[8:11], v23, s[28:31], s34 offen")
        a("buffer_store_dwordx4 v[12:15], v23, s[28:31], s34 offen offset:64")
    else:
        a("s_mov_b32 s38, 0xffff0000")
        a("s_waitcnt vmcnt(0)")
        for i in range(2):
            for k in range(4):
                y, u, d = 8+4*i+k, 32+4*i+k, 40+4*i+k
                a(f"v_lshlrev_b32 v48, 16, v{u}")
                a(f"v_and_b32 v49, s38, v{u}")
                a(f"v_lshlrev_b32 v50, 16, v{d}")
                a(f"v_and_b32 v51, s38, v{d}")
                a("v_mul_f32 v48, v48, v50")
                a("v_mul_f32 v49, v49, v51")
                a("v_cvt_pk_bf16_f32 v48, v48, v49")
                a("v_and_b32 v49, s38, v48")
                a("v_lshlrev_b32 v48, 16, v48")
                a(f"v_lshlrev_b32 v50, 16, v{y}")
                a(f"v_and_b32 v51, s38, v{y}")
                a("v_add_f32 v48, v48, v50")
                a("v_add_f32 v49, v49, v51")
                a(f"v_cvt_pk_bf16_f32 v{y}, v48, v49")
            a(f"buffer_store_dwordx4 v[{8+4*i}:{11+4*i}], v23, s[24:27], s34 offen offset:{64*i}")
    if nwg:
        a(f"s_add_u32 s3, s3, {nwg*nh}")
        a("s_cmp_ge_u32 s3, 320")
        a(f"s_cbranch_scc1 L_tr{tag}_end")
        a("s_barrier")
        a(f"s_branch L_tr{tag}_loop")
        a.label(f"L_tr{tag}_end")
    a("s_endpgm")

KCP = 4416
L_UD = 4 * KCP
CONV_LDS = L_UD + 96 * 80 + 256
L_Y = 24576
CONV_LDS = L_Y + 4096

def conv(a, wg_base):
    a(f"s_sub_u32 s3, s2, {wg_base}")
    a("; STAMP 0")
    a("s_load_dwordx2 s[14:15], s[0:1], 96")
    a("v_and_b32 v1, 63, v0")
    a("v_lshrrev_b32 v4, 6, v0")
    a("v_readfirstlane_b32 s4, v4")
    a("v_lshlrev_b32 v6, 4, v0")
    a(f"s_mul_i32 s34, s3, {KXP}")
    a(f"s_add_u32 s34, s34, {WS_KX - 8}")
    a("s_add_u32 s40, s34, 4096")
    a("s_lshl_b32 s32, s3, 12")
    a(f"s_add_u32 s33, s32, {WS_UT}")
    a("s_waitcnt lgkmcnt(0)")
    srd(a, 28, 14, WS_SIZE2)
    a("buffer_load_dwordx4 v[8:11], v6, s[28:31], s33 offen")
    for i in range(2):
        so = "s34" if i == 0 else "s40"
        a(f"buffer_load_dwordx2 v[{24+6*i}:{25+6*i}], v6, s[28:31], {so} offen")
        a(f"buffer_load_dwordx4 v[{26+6*i}:{29+6*i}], v6, s[28:31], {so} offen offset:8")
    a("v_mov_b32 v60, 0"); a("v_mov_b32 v61, 0"); a("v_mov_b32 v62, 0"); a("v_mov_b32 v63, 0")
    a("v_cmp_gt_u32 vcc, 160, v0")
    a("s_and_saveexec_b64 s[36:37], vcc")
    a(f"ds_write_b128 v6, v[60:63] offset:{L_UD}")
    a("s_mov_b64 exec, s[36:37]")
    a("v_lshrrev_b32 v7, 2, v0")
    a("v_mul_u32_u24 v7, 80, v7")
    a("v_and_b32 v12, 3, v0")
    a("v_lshl_add_u32 v7, v12, 4, v7")
    a("s_waitcnt vmcnt(4)")
    a(f"ds_write_b128 v7, v[8:11] offset:{L_UD + 32*80}")
    for i in range(2):
        a(f"s_waitcnt vmcnt({2 - 2*i})")
        d = 24 + 6*i
        if i == 1:
            a("v_cmp_gt_u32 vcc, 20, v0")
            a("s_and_saveexec_b64 s[36:37], vcc")
        if i == 0:
            a("v_cmp_eq_u32 vcc, 0, v0")
            a(f"v_cndmask_b32 v{d}, v{d}, 0, vcc")
            a(f"v_cndmask_b32 v{d+1}, v{d+1}, 0, vcc")
        a(f"ds_write_b128 v6, v[{d+2}:{d+5}] offset:{i*4096}")
        for j in range(4):
            a(f"v_alignbit_b32 v{64+j}, v{d+2+j}, v{d+1+j}, 16")
        a(f"ds_write_b128 v6, v[64:67] offset:{i*4096 + KCP}")
        for j in range(4):
            a(f"v_mov_b32 v{68+j}, v{d+1+j}")
        a(f"ds_write_b128 v6, v[68:71] offset:{i*4096 + 2*KCP}")
        for j in range(4):
            a(f"v_alignbit_b32 v{72+j}, v{d+1+j}, v{d+j}, 16")
        a(f"ds_write_b128 v6, v[72:75] offset:{i*4096 + 3*KCP}")
        if i == 1:
            a("s_mov_b64 exec, s[36:37]")
    a("v_and_b32 v8, 31, v1")
    a("v_lshrrev_b32 v9, 5, v1")
    a("v_and_b32 v10, 3, v8")
    a(f"v_mul_u32_u24 v10, {KCP}, v10")
    a("v_and_b32 v11, 28, v8")
    a("v_sub_u32 v11, 32, v11")
    a("v_lshl_add_u32 v11, v9, 3, v11")
    a("v_lshl_add_u32 v10, v11, 1, v10")
    a("s_and_b32 s5, s4, 1")
    a("s_lshr_b32 s6, s4, 1")
    a("s_lshl_b32 s6, s6, 5")
    a("s_xor_b32 s5, s5, 1")
    a("s_lshl_b32 s7, s5, 6")
    a("s_add_u32 s7, s7, s6")
    a("v_add_u32 v10, s7, v10")
    a("v_mul_u32_u24 v11, 80, v8")
    a("v_lshl_add_u32 v11, v9, 4, v11")
    a("s_mul_i32 s7, s5, 80")
    a("s_add_u32 s7, s7, s6")
    a(f"s_add_u32 s7, s7, {L_UD + 80}")
    a("v_add_u32 v11, s7, v11")
    ACC0, ACC1 = 64, 80
    for r in range(32):
        a(f"v_mov_b32 v{64+r}, 0")
    a("s_waitcnt lgkmcnt(0)")
    a("s_barrier")
    a("; STAMP 1")
    steps = list(range(1, 32, 2))
    FR = [96, 112, 128]
    def loads(si):
        d = steps[si]; f = FR[si % 3]
        oa = 64*(63-d); oa2 = 64*(63-(d+32))
        a(f"ds_read_b64 v[{f}:{f+1}], v10 offset:{oa}")
        a(f"ds_read_b64 v[{f+2}:{f+3}], v10 offset:{oa+8}")
        a(f"ds_read_b128 v[{f+8}:{f+11}], v11 offset:{(31-d)*80}")
        a(f"ds_read_b128 v[{f+12}:{f+15}], v11 offset:{(63-d)*80}")
        a(f"ds_read_b64 v[{f+4}:{f+5}], v10 offset:{oa2}")
        a(f"ds_read_b64 v[{f+6}:{f+7}], v10 offset:{oa2+8}")
    loads(0); loads(1)
    n = len(steps)
    for si in range(n):
        if si + 2 < n:
            loads(si + 2)
            a("s_waitcnt lgkmcnt(12)")
        elif si + 1 < n:
            a("s_waitcnt lgkmcnt(6)")
        else:
            a("s_waitcnt lgkmcnt(0)")
        f = FR[si % 3]
        a(f"v_mfma_f32_32x32x16_bf16 v[{ACC0}:{ACC0+15}], v[{f}:{f+3}], v[{f+8}:{f+11}], v[{ACC0}:{ACC0+15}]")
        a(f"v_mfma_f32_32x32x16_bf16 v[{ACC1}:{ACC1+15}], v[{f}:{f+3}], v[{f+12}:{f+15}], v[{ACC1}:{ACC1+15}]")
        a(f"v_mfma_f32_32x32x16_bf16 v[{ACC1}:{ACC1+15}], v[{f+4}:{f+7}], v[{f+8}:{f+11}], v[{ACC1}:{ACC1+15}]")
    a("; STAMP 2")
    a("s_barrier")
    a("v_lshlrev_b32 v12, 4, v1")
    for w in range(4):
        a(f"s_cmp_eq_u32 s4, {w}")
        a(f"s_cbranch_scc0 L_cv_w{w}")
        for dw in range(4):
            if dw == w: continue
            slot = w if w < dw else w - 1
            for q in range(2):
                r = 64 + 4*(2*dw + q)
                a(f"ds_write_b128 v12, v[{r}:{r+3}] offset:{(dw*3 + slot)*2048 + q*1024}")
        for q in range(2):
            for k in range(4):
                a(f"v_mov_b32 v{96+4*q+k}, v{64+4*(2*w+q)+k}")
        a.label(f"L_cv_w{w}")
    a("s_waitcnt lgkmcnt(0)")
    a("s_barrier")
    a("s_mul_i32 s5, s4, 6144")
    a("v_add_u32 v13, s5, v12")
    for sl in range(3):
        for q in range(2):
            a(f"ds_read_b128 v[{104+8*sl+4*q}:{107+8*sl+4*q}], v13 offset:{sl*2048 + q*1024}")
    a("s_waitcnt lgkmcnt(0)")
    for k in range(8):
        a(f"v_add_f32 v{104+k}, v{104+k}, v{112+k}")
        a(f"v_add_f32 v{96+k}, v{96+k}, v{120+k}")
        a(f"v_add_f32 v{96+k}, v{96+k}, v{104+k}")
    a("v_lshlrev_b32 v12, 6, v8")
    a("v_lshl_add_u32 v12, v9, 3, v12")
    a("s_lshr_b32 s5, s4, 1")
    a("s_lshl_b32 s5, s5, 11")
    a("s_and_b32 s6, s4, 1")
    a("s_lshl_b32 s6, s6, 5")
    a("s_add_u32 s5, s5, s6")
    a("v_add_u32 v12, s5, v12")
    for q in range(2):
        a(f"v_cvt_pk_bf16_f32 v{104+2*q}, v{96+4*q}, v{97+4*q}")
        a(f"v_cvt_pk_bf16_f32 v{105+2*q}, v{98+4*q}, v{99+4*q}")
        a(f"ds_write_b64 v12, v[{104+2*q}:{105+2*q}] offset:{L_Y + q*16}")
    a("s_waitcnt lgkmcnt(0)")
    a("s_barrier")
    a(f"ds_read_b128 v[96:99], v6 offset:{L_Y}")
    a(f"s_add_u32 s33, s32, {WS_YT}")
    a("s_waitcnt lgkmcnt(0)")
    a("buffer_store_dwordx4 v[96:99], v6, s[28:31], s33 offen")
    a("s_endpgm")
```

```python
import sys
import partb
from partb import *
from parta import *
from stamp import *

def kd(name, vgpr, sgpr=102):
    acc = (vgpr + 3)//4*4
    return f""".amdhsa_kernel {name}
  .amdhsa_next_free_vgpr {vgpr}
  .amdhsa_next_free_sgpr {sgpr}
  .amdhsa_accum_offset {acc}
  .amdhsa_group_segment_fixed_size 0
  .amdhsa_kernarg_size 104
  .amdhsa_user_sgpr_count 2
  .amdhsa_user_sgpr_kernarg_segment_ptr 1
  .amdhsa_system_sgpr_workgroup_id_x 1
.end_amdhsa_kernel
"""
def khead(a, name):
    a.raw(f".globl {name}\n.p2align 8\n.type {name},@function\n{name}:")

HEADER = open("concat_heads__linear_attn_block__ssm_conv_s4d__prompt.s.ref").read().split("; Override launch")[0]

def build(path):
    a = Asm()
    a.raw(HEADER.rstrip())
    a.raw(f"; @launch kernel=k1_kernel grid=(672,1,1) block=(512,1,1) lds={A1_LDS}")
    a.raw(f"; @launch kernel=k2_kernel grid=(672,1,1) block=(256,1,1) lds={max(CONV_LDS, A2R_LDS)}")
    a.raw(f"; @launch kernel=k3_kernel grid=(240,1,1) block=(512,1,1) lds={A3_LDS}")
    a.raw('.amdgcn_target "amdgcn-amd-amdhsa--gfx950"\n.text')
    khead(a, "k1_kernel")
    a("s_cmp_ge_u32 s2, 672"); a("s_cbranch_scc1 L_k1_exit")
    a("s_cmp_ge_u32 s2, 512"); a("s_cbranch_scc1 L_k1_c")
    a("s_cmp_ge_u32 s2, 256"); a("s_cbranch_scc1 L_k1_b")
    kgen(a, 0)
    a.label("L_k1_b")
    a("s_sub_u32 s2, s2, 256")
    a1(a)
    a.label("L_k1_c")
    transp(a, 512, 512, 'u')
    a.label("L_k1_exit"); a("s_endpgm")
    khead(a, "k2_kernel")
    a("s_cmp_ge_u32 s2, 672"); a("s_cbranch_scc1 L_k2_exit")
    a("s_cmp_ge_u32 s2, 32"); a("s_cbranch_scc1 L_k2_b")
    a2r(a)
    a.label("L_k2_b")
    conv(a, 32)
    a.label("L_k2_exit"); a("s_endpgm")
    khead(a, "k3_kernel")
    a("s_cmp_ge_u32 s2, 240"); a("s_cbranch_scc1 L_k3_exit")
    a("s_cmp_ge_u32 s2, 160"); a("s_cbranch_scc1 L_k3_b")
    a3(a)
    a.label("L_k3_b")
    transp(a, 160, 512, 'y', 80)
    a.label("L_k3_exit"); a("s_endpgm")
    a.raw('.section .rodata,"a"\n.p2align 6')
    a.raw(kd("k1_kernel", 128)); a.raw(".p2align 6"); a.raw(kd("k2_kernel", 144)); a.raw(".p2align 6"); a.raw(kd("k3_kernel", 168))
    open(path, "w").write(a.finalize())
if __name__ == "__main__":
    import parta
    parta.EXPF.update(sys.argv[2:])
    build(sys.argv[1] if len(sys.argv) > 1 else "concat_heads__linear_attn_block__ssm_conv_s4d__prompt.s")
```

```python
from asmlib import *
from partb import srd, WS_PQ, WS_PART, WS_MT, WS_ZF, WS_SIZE, LOG2E

STG = 19456
XOFF = 15360
NST = 4
A1_LDS = STG * NST
KVP = 352
L_CMP = 64 * KVP
PSZ = 4 * 420 * 4

def phi_pair(a, x0, x1, t, dst):
    a(f"v_cvt_pk_bf16_f32 v{t}, v{x0}, v{x1}")
    a(f"v_lshlrev_b32 v{t+1}, 16, v{t}")
    a(f"v_and_b32 v{t+2}, s61, v{t}")
    a(f"v_mul_f32 v{t+3}, s60, v{t+1}")
    a(f"v_mul_f32 v{t+4}, s60, v{t+2}")
    a(f"v_exp_f32 v{t+3}, v{t+3}")
    a(f"v_exp_f32 v{t+4}, v{t+4}")
    a(f"v_add_f32 v{t+5}, 1.0, v{t+1}")
    a(f"v_add_f32 v{t+6}, 1.0, v{t+2}")
    a(f"v_cmp_lt_f32 vcc, 0, v{t+1}")
    a(f"v_cmp_lt_f32 s[44:45], 0, v{t+2}")
    a(f"v_cndmask_b32 v{t+3}, v{t+3}, v{t+5}, vcc")
    a(f"v_cndmask_b32 v{t+4}, v{t+4}, v{t+6}, s[44:45]")
    a(f"v_cvt_pk_bf16_f32 v{t}, v{t+3}, v{t+4}")
    a(f"v_lshlrev_b32 v{t+1}, 16, v{t}")
    a(f"v_and_b32 v{t+2}, s61, v{t}")
    a(f"v_add_f32 v{t+1}, s62, v{t+1}")
    a(f"v_add_f32 v{t+2}, s62, v{t+2}")
    a(f"v_cvt_pk_bf16_f32 v{dst}, v{t+1}, v{t+2}")

EXPF = set()
def a1(a):
    a("s_load_dwordx4 s[8:11], s[0:1], 0")
    a("s_load_dwordx2 s[12:13], s[0:1], 96")
    a("s_and_b32 s5, s2, 1")
    a("s_lshl_b32 s5, s5, 4")
    a("s_lshr_b32 s46, s2, 4")
    a("s_add_u32 s5, s5, s46")
    a("s_and_b32 s6, s2, 6")
    a("s_bfe_u32 s47, s2, 0x10003")
    a("s_add_u32 s6, s6, s47")
    a("v_and_b32 v1, 63, v0")
    a("v_lshrrev_b32 v4, 6, v0")
    a("v_readfirstlane_b32 s4, v4")
    a("; STAMP 0")
    if "prio" in EXPF: a("s_setprio 3")
    a("s_cmp_lt_u32 s4, 4")
    a("s_cbranch_scc1 L_a1_cons")
    a("v_and_b32 v4, 3, v4")
    a("s_and_b32 s4, s4, 3")
    a("s_mul_i32 s7, s6, 160")
    for jj in range(4):
        g = 16; r = 17; c = 18; sg = 19
        a(f"v_lshl_add_u32 v{g}, v4, 6, v1")
        a(f"v_add_u32 v{g}, {256*jj}, v{g}")
        a(f"v_min_u32 v{g}, 959, v{g}")
        a(f"v_mul_u32_u24 v{r}, 2185, v{g}")
        a(f"v_lshrrev_b32 v{r}, 16, v{r}")
        a(f"v_mul_u32_u24 v{c}, 30, v{r}")
        a(f"v_sub_u32 v{c}, v{g}, v{c}")
        a(f"v_mul_u32_u24 v{sg}, 6554, v{c}")
        a(f"v_lshrrev_b32 v{sg}, 16, v{sg}")
        a(f"v_mul_u32_u24 v20, 10, v{sg}")
        a(f"v_sub_u32 v{c}, v{c}, v20")
        a(f"v_mul_u32_u24 v{r}, 3840, v{r}")
        a(f"v_mul_u32_u24 v{sg}, 1280, v{sg}")
        a(f"v_lshl_add_u32 v{r}, v{c}, 4, v{r}")
        a(f"v_add3_u32 v{8+jj}, v{r}, v{sg}, s7")
    a("v_lshrrev_b32 v16, 2, v1")
    a("v_and_b32 v17, 3, v1")
    a("v_bfe_u32 v18, v1, 4, 2")
    a("v_xor_b32 v17, v17, v18")
    a("s_lshl_b32 s7, s5, 6")
    a("v_lshl_add_u32 v16, v4, 4, v16")
    a("v_add_u32 v16, s7, v16")
    a("v_mul_u32_u24 v12, 1280, v16")
    a("v_lshl_add_u32 v12, v17, 4, v12")
    a("s_waitcnt lgkmcnt(0)")
    srd(a, 16, 8, 2048*640*2); srd(a, 20, 10, 640*1920*2)
    a("s_lshl_b32 s28, s4, 10")
    a("s_mov_b32 s29, 0")
    a("s_mov_b32 s30, 0")
    def issue(slot, nw):
        for jj in range(nw):
            a(f"s_add_u32 m0, s28, {slot*STG + jj*4096}")
            a(f"buffer_load_dwordx4 v{8+jj}, s[20:23], s29 offen lds")
        a(f"s_add_u32 m0, s28, {slot*STG + XOFF}")
        a(f"buffer_load_dwordx4 v12, s[16:19], s30 offen lds")
        a("s_add_u32 s29, s29, 122880")
        a("s_add_u32 s30, s30, 64")
    a("s_cmp_eq_u32 s4, 3")
    a("s_cbranch_scc1 L_a1_prod3")
    for nw in (4, 3):
        if nw == 3: a.label("L_a1_prod3")
        for stg in range(3):
            issue(stg, nw)
        for t in range(20):
            a(f"s_waitcnt vmcnt({(nw+1)*min(2, 19-t)})")
            a("s_barrier")
            if t + 3 < 20:
                issue((t+3) % 4, nw)
        a("s_endpgm")
    a.label("L_a1_cons")
    a("v_lshrrev_b32 v16, 4, v1")
    a("v_bfe_u32 v17, v1, 2, 2")
    a("v_and_b32 v18, 3, v1")
    a("v_lshl_add_u32 v13, v16, 2, v17")
    a("v_mul_u32_u24 v13, 480, v13")
    a("v_lshl_add_u32 v13, v18, 3, v13")
    a("v_lshl_add_u32 v13, v4, 5, v13")
    a("v_and_b32 v19, 15, v1")
    a("v_lshrrev_b32 v20, 1, v16")
    a("v_lshrrev_b32 v21, 2, v19")
    a("v_xor_b32 v20, v20, v21")
    a("v_xor_b32 v21, 2, v20")
    a("v_and_b32 v22, 1, v16")
    a("v_lshlrev_b32 v22, 3, v22")
    a("v_lshl_add_u32 v22, v19, 6, v22")
    a(f"v_add_u32 v22, {XOFF}, v22")
    a("v_lshl_add_u32 v14, v20, 4, v22")
    a("v_lshl_add_u32 v15, v21, 4, v22")
    a(f"v_add_u32 v2, {2*STG}, v13")
    a(f"v_add_u32 v3, {2*STG}, v14")
    a(f"v_add_u32 v5, {2*STG}, v15")
    a("s_waitcnt lgkmcnt(0)")
    srd(a, 24, 12, WS_SIZE)
    srd(a, 16, 8, 2048*640*2); srd(a, 20, 10, 640*1920*2)
    ACC = 52; F = 20
    if "nopf" not in EXPF:
        a("v_lshlrev_b32 v23, 4, v1")
        a("s_mul_i32 s32, s5, 81920")
        a("s_mul_i32 s33, s47, 40960")
        a("s_add_u32 s32, s32, s33")
        a("s_mul_i32 s33, s4, 10240")
        a("s_add_u32 s32, s32, s33")
        for i in range(10):
            if i % 4 == 0 and i: a("s_add_u32 s32, s32, 4096")
            a(f"buffer_load_dwordx4 v[{116+4*(i%3)}:{119+4*(i%3)}], v23, s[16:19], s32 offen offset:{(i%4)*1024}")
        a("s_mul_i32 s32, s46, 153600")
        a("s_mul_i32 s33, s6, 160")
        a("s_add_u32 s32, s32, s33")
        for i in range(5):
            a(f"v_add_u32 v24, {256*i}, v0")
            a("v_min_u32 v24, 1199, v24")
            a("v_mul_u32_u24 v25, 34953, v24")
            a("v_lshrrev_b32 v25, 20, v25")
            a("v_mul_u32_u24 v26, 30, v25")
            a("v_sub_u32 v26, v24, v26")
            a("v_mul_u32_u24 v27, 6554, v26")
            a("v_lshrrev_b32 v27, 16, v27")
            a("v_mul_u32_u24 v28, 10, v27")
            a("v_sub_u32 v26, v26, v28")
            a("v_mul_u32_u24 v25, 3840, v25")
            a("v_mul_u32_u24 v27, 1280, v27")
            a("v_lshl_add_u32 v25, v26, 4, v25")
            a("v_add_u32 v25, v25, v27")
            a(f"buffer_load_dwordx4 v[{116+4*(i%3)}:{119+4*(i%3)}], v25, s[20:23], s32 offen")
    for r in range(ACC, ACC+64):
        a(f"v_mov_b32 v{r}, 0")
    a("s_mov_b32 s31, 0")
    a.label("L_a1_loop")
    for stg in range(20 if "unroll" in EXPF else 4):
        if "unroll" in EXPF and stg % 2 == 0 and stg < 16: a(f"; STAMP {3 + stg//2}")
        a("s_barrier")
        stg = stg % 4
        base = (stg & 1) * STG
        vb, va, va2 = (13, 14, 15) if stg < 2 else (2, 3, 5)
        for ct in range(4):
            a(f"ds_read_b64_tr_b16 v[{F+4*ct}:{F+1+4*ct}], v{vb} offset:{base + ct*128}")
            a(f"ds_read_b64_tr_b16 v[{F+2+4*ct}:{F+3+4*ct}], v{vb} offset:{base + ct*128 + 7680}")
            rt = ct
            a(f"ds_read_b64 v[{F+16+4*rt}:{F+17+4*rt}], v{va} offset:{base + rt*1024}")
            a(f"ds_read_b64 v[{F+18+4*rt}:{F+19+4*rt}], v{va2} offset:{base + rt*1024}")
        for lvl in range(4):
            a(f"s_waitcnt lgkmcnt({12 - 4*lvl})")
            pairs = [(lvl, j) for j in range(lvl+1)] + [(j, lvl) for j in range(lvl)]
            for (ct, rt) in pairs:
                acc = ACC + 16*ct + 4*rt
                a(f"v_mfma_f32_16x16x32_bf16 v[{acc}:{acc+3}], v[{F+4*ct}:{F+3+4*ct}], v[{F+16+4*rt}:{F+19+4*rt}], v[{acc}:{acc+3}]")
    if "unroll" not in EXPF:
        a("s_add_u32 s31, s31, 1")
        a("s_cmp_lt_u32 s31, 5")
        a("s_cbranch_scc1 L_a1_loop")
    a("s_barrier")
    a("; STAMP 1")
    a("s_waitcnt vmcnt(0)")
    a(f"s_mov_b32 s60, {LOG2E}")
    a("s_mov_b32 s61, 0xffff0000")
    a("s_mov_b32 s62, 0x358637bd")
    a("v_lshlrev_b32 v5, 3, v1")
    a(f"v_mul_u32_u24 v6, {KVP}, v19")
    a("v_lshl_add_u32 v6, v16, 3, v6")
    for slot in range(4):
        a(f"s_add_u32 s32, s4, {4*slot}")
        a("s_cmp_ge_u32 s32, 10")
        a(f"s_cbranch_scc1 L_a1_ep{slot}_v")
        for rt in range(4):
            acc = ACC + 16*slot + 4*rt
            phi_pair(a, acc, acc+1, 116, 20+8*slot+2*rt)
            phi_pair(a, acc+2, acc+3, 8, 21+8*slot+2*rt)
        a(f"s_branch L_a1_ep{slot}_done")
        a.label(f"L_a1_ep{slot}_v")
        for rt in range(4):
            acc = ACC + 16*slot + 4*rt
            a(f"v_cvt_pk_bf16_f32 v{20+8*slot+2*rt}, v{acc}, v{acc+1}")
            a(f"v_cvt_pk_bf16_f32 v{21+8*slot+2*rt}, v{acc+2}, v{acc+3}")
        a.label(f"L_a1_ep{slot}_done")
    for slot in range(4):
        a(f"s_add_u32 s32, s4, {4*slot}")
        a("s_cmp_ge_u32 s32, 15")
        a(f"s_cbranch_scc1 L_a1_st{slot}_done")
        a("s_cmp_ge_u32 s32, 5")
        a(f"s_cbranch_scc1 L_a1_st{slot}_lds")
        a("s_mul_i32 s35, s6, 5")
        a("s_add_u32 s35, s35, s32")
        a("s_lshl_b32 s35, s35, 9")
        a(f"s_mul_i32 s36, s5, {4*40*512}")
        a("s_add_u32 s35, s35, s36")
        for rt in range(4):
            a(f"s_add_u32 s36, s35, {WS_PQ + rt*40*512}")
            a(f"buffer_store_dwordx2 v[{20+8*slot+2*rt}:{21+8*slot+2*rt}], v5, s[24:27], s36 offen")
        a(f"s_branch L_a1_st{slot}_done")
        a.label(f"L_a1_st{slot}_lds")
        a("s_sub_u32 s35, s32, 5")
        a("s_lshl_b32 s35, s35, 5")
        a("v_add_u32 v7, s35, v6")
        for rt in range(4):
            a(f"ds_write_b64 v7, v[{20+8*slot+2*rt}:{21+8*slot+2*rt}] offset:{rt*16*KVP}")
        a.label(f"L_a1_st{slot}_done")
    a("s_waitcnt lgkmcnt(0)")
    a("s_barrier")
    a("; STAMP 2")
    a("v_lshl_add_u32 v13, v16, 2, v17")
    a(f"v_mul_u32_u24 v13, {KVP}, v13")
    a("v_lshl_add_u32 v13, v18, 3, v13")
    a("s_mul_i32 s35, s4, 40")
    a("v_add_u32 v13, s35, v13")
    for ks in range(2):
        for tl in range(2):
            a(f"ds_read_b64_tr_b16 v[{32+8*ks+4*tl}:{33+8*ks+4*tl}], v13 offset:{ks*32*KVP + tl*32}")
            a(f"ds_read_b64_tr_b16 v[{34+8*ks+4*tl}:{35+8*ks+4*tl}], v13 offset:{(ks*32+16)*KVP + tl*32}")
            a(f"ds_read_b64_tr_b16 v[{48+8*ks+4*tl}:{49+8*ks+4*tl}], v13 offset:{ks*32*KVP + 160 + tl*32}")
            a(f"ds_read_b64_tr_b16 v[{50+8*ks+4*tl}:{51+8*ks+4*tl}], v13 offset:{(ks*32+16)*KVP + 160 + tl*32}")
    a("v_cmp_eq_u32 vcc, 4, v19")
    a("v_mov_b32 v24, 0x3f803f80")
    a("s_waitcnt lgkmcnt(0)")
    for ks in range(2):
        for k in range(4):
            a(f"v_cndmask_b32 v{52+8*ks+k}, v{52+8*ks+k}, v24, vcc")
    for dtl in range(2):
        for etl in range(2):
            acc = 64 + 8*dtl + 4*etl
            a(f"v_mfma_f32_16x16x32_bf16 v[{acc}:{acc+3}], v[{32+4*dtl}:{35+4*dtl}], v[{48+4*etl}:{51+4*etl}], 0")
            a(f"v_mfma_f32_16x16x32_bf16 v[{acc}:{acc+3}], v[{40+4*dtl}:{43+4*dtl}], v[{56+4*etl}:{59+4*etl}], v[{acc}:{acc+3}]")
    a("v_mul_u32_u24 v24, 84, v16")
    a("v_add_u32 v24, v24, v19")
    a("s_mul_i32 s35, s4, 420")
    a("v_add_u32 v24, s35, v24")
    a("v_lshlrev_b32 v24, 2, v24")
    a(f"v_add_u32 v24, {L_CMP}, v24")
    a("v_cmp_gt_u32 s[36:37], 5, v19")
    a("v_cmp_gt_u32 s[38:39], 16, v1")
    a("s_and_b64 s[40:41], s[36:37], s[38:39]")
    for dtl in range(2):
        for etl in range(2):
            acc = 64 + 8*dtl + 4*etl
            m = {(0,0): None, (0,1): "s[36:37]", (1,0): "s[38:39]", (1,1): "s[40:41]"}[(dtl, etl)]
            if m: a(f"s_mov_b64 exec, {m}")
            for r in range(4):
                a(f"ds_write_b32 v24, v{acc+r} offset:{((16*dtl + r)*21 + 16*etl)*4}")
            if m: a("s_mov_b64 exec, -1")
    a("s_waitcnt lgkmcnt(0)")
    a("s_barrier")
    a("v_lshlrev_b32 v24, 4, v0")
    a("s_lshl_b32 s35, s5, 3")
    a("s_add_u32 s35, s35, s6")
    a(f"s_mul_i32 s35, s35, {PSZ}")
    a(f"s_add_u32 s35, s35, {WS_PART}")
    a(f"ds_read_b128 v[32:35], v24 offset:{L_CMP}")
    a(f"ds_read_b128 v[36:39], v24 offset:{L_CMP + 4096}")
    a("s_waitcnt lgkmcnt(0)")
    a("buffer_store_dwordx4 v[32:35], v24, s[24:27], s35 offen")
    a(f"v_cmp_gt_u32 vcc, {(PSZ - 4096)//16}, v0")
    a("s_and_saveexec_b64 s[36:37], vcc")
    a("s_add_u32 s35, s35, 4096")
    a("buffer_store_dwordx4 v[36:39], v24, s[24:27], s35 offen")
    a("s_endpgm")

WOP = 1312
L_KVT = 32 * WOP
A2R_LDS = L_KVT + 32 * 80

def a2r(a):
    a("s_load_dwordx2 s[8:9], s[0:1], 16")
    a("s_load_dwordx2 s[12:13], s[0:1], 96")
    a("s_load_dwordx2 s[20:21], s[0:1], 88")
    a("v_and_b32 v1, 63, v0")
    a("v_lshrrev_b32 v4, 6, v0")
    a("v_readfirstlane_b32 s4, v4")
    a("s_lshr_b32 s5, s2, 2")
    a("s_and_b32 s6, s2, 3")
    a(f"s_mul_i32 s29, s5, {PSZ}")
    a("s_mul_i32 s30, s6, 1680")
    a("s_add_u32 s29, s29, s30")
    a(f"s_add_u32 s34, s29, {WS_PART}")
    a("v_lshlrev_b32 v25, 2, v0")
    a("v_min_u32 v25, 1676, v25")
    a("s_waitcnt lgkmcnt(0)")
    srd(a, 16, 8, 640*640*2); srd(a, 24, 12, WS_SIZE)
    for rb in range(32):
        a(f"buffer_load_dword v{28+rb}, v25, s[24:27], s34 offen")
        a(f"s_add_u32 s34, s34, {8*PSZ}")
    a("s_mul_i32 s28, s2, 25600")
    for i in range(5):
        a(f"v_add_u32 v16, {512*i}, v0")
        a("v_mul_u32_u24 v17, 52429, v16")
        a("v_lshrrev_b32 v17, 22, v17")
        a("v_mul_u32_u24 v18, 80, v17")
        a("v_sub_u32 v18, v16, v18")
        a("v_mul_u32_u24 v19, 1280, v17")
        a("v_lshl_add_u32 v19, v18, 4, v19")
        a("v_cmp_gt_u32 vcc, 20, v17")
        a("v_cndmask_b32 v19, -1, v19, vcc")
        a(f"v_mul_u32_u24 v{8+i}, {WOP}, v17")
        a(f"v_lshl_add_u32 v{8+i}, v18, 4, v{8+i}")
        a(f"buffer_load_dwordx4 v[{64+4*i}:{67+4*i}], v19, s[16:19], s28 offen")
    a("v_mov_b32 v20, 0"); a("v_mov_b32 v21, 0"); a("v_mov_b32 v22, 0"); a("v_mov_b32 v23, 0")
    a("v_lshlrev_b32 v24, 4, v0")
    a("v_cmp_gt_u32 vcc, 160, v0")
    a("s_and_saveexec_b64 s[30:31], vcc")
    a(f"ds_write_b128 v24, v[20:23] offset:{L_KVT}")
    a("s_mov_b64 exec, s[30:31]")
    a("s_waitcnt lgkmcnt(0)")
    a("s_barrier")
    a("s_waitcnt vmcnt(5)")
    for st in (16, 8, 4, 2, 1):
        for k in range(st):
            a(f"v_add_f32 v{28+k}, v{28+k}, v{28+k+st}")
    a("s_movk_i32 s40, 420")
    a("v_cmp_gt_u32 vcc, s40, v0")
    a("s_and_saveexec_b64 s[30:31], vcc")
    a("v_mul_u32_u24 v17, 49933, v0")
    a("v_lshrrev_b32 v17, 20, v17")
    a("v_mul_u32_u24 v18, 21, v17")
    a("v_sub_u32 v18, v0, v18")
    a("v_cmp_eq_u32 s[32:33], 20, v18")
    a("v_cvt_pk_bf16_f32 v27, v28, v28")
    a("v_mul_u32_u24 v26, 80, v17")
    a("v_lshl_add_u32 v26, v18, 1, v26")
    a("s_mov_b64 s[36:37], exec")
    a("s_andn2_b64 exec, exec, s[32:33]")
    a(f"ds_write_b16 v26, v27 offset:{L_KVT}")
    a("s_and_b64 exec, s[36:37], s[32:33]")
    a("s_mul_i32 s35, s2, 40")
    a(f"s_add_u32 s35, s35, {WS_ZF}")
    a("v_lshlrev_b32 v26, 1, v17")
    a("s_cbranch_execz L_a2r_noz")
    a("buffer_store_short v27, v26, s[24:27], s35 offen sc1")
    a.label("L_a2r_noz")
    a("s_mov_b64 exec, -1")
    a("s_waitcnt vmcnt(0)")
    for i in range(5):
        a(f"ds_write_b128 v{8+i}, v[{64+4*i}:{67+4*i}]")
    a("s_waitcnt lgkmcnt(0)")
    a("s_barrier")
    a("v_lshrrev_b32 v16, 4, v1")
    a("v_bfe_u32 v17, v1, 2, 2")
    a("v_and_b32 v18, 3, v1")
    a("v_and_b32 v19, 15, v1")
    a("v_mul_u32_u24 v20, 80, v19")
    a("v_lshl_add_u32 v20, v16, 3, v20")
    for dtile in range(2):
        a(f"ds_read_b64 v[{32+4*dtile}:{33+4*dtile}], v20 offset:{L_KVT + dtile*16*80}")
        a(f"ds_read_b64 v[{34+4*dtile}:{35+4*dtile}], v20 offset:{L_KVT + dtile*16*80 + 32}")
    a("v_lshl_add_u32 v21, v16, 2, v17")
    a(f"v_mul_u32_u24 v21, {WOP}, v21")
    a("v_lshl_add_u32 v21, v18, 3, v21")
    a("s_mul_i32 s35, s4, 160")
    a("v_add_u32 v21, s35, v21")
    a("s_mul_i32 s35, s2, 5")
    for dtile in range(2):
        d = 22 + dtile
        a(f"v_add_u32 v24, s35, v16")
        if dtile: a("v_add_u32 v24, 4, v24")
        a("v_lshrrev_b32 v25, 3, v24")
        a("v_and_b32 v26, 3, v24")
        a("v_bfe_u32 v27, v24, 2, 1")
        a(f"v_lshlrev_b32 v{d}, 10, v25")
        a(f"v_lshl_add_u32 v{d}, v26, 8, v{d}")
        a(f"v_lshl_add_u32 v{d}, v19, 4, v{d}")
        a(f"v_lshl_add_u32 v{d}, v27, 3, v{d}")
    a(f"s_mul_i32 s36, s4, {5*20*1024}")
    a(f"s_add_u32 s36, s36, {WS_MT}")
    a("v_cmp_gt_u32 s[38:39], 16, v1")
    for ct in range(5):
        a(f"ds_read_b64_tr_b16 v[{40+4*ct}:{41+4*ct}], v21 offset:{ct*32}")
        a(f"ds_read_b64_tr_b16 v[{42+4*ct}:{43+4*ct}], v21 offset:{ct*32 + 16*WOP}")
    for ct in range(5):
        a(f"s_waitcnt lgkmcnt({8 - 2*ct})")
        r0 = 80 + 8*(ct & 1)
        a(f"v_mfma_f32_16x16x32_bf16 v[{r0}:{r0+3}], v[32:35], v[{40+4*ct}:{43+4*ct}], 0")
        a(f"v_mfma_f32_16x16x32_bf16 v[{r0+4}:{r0+7}], v[36:39], v[{40+4*ct}:{43+4*ct}], 0")
        p = 96 + 4*(ct & 1)
        a(f"v_cvt_pk_bf16_f32 v{p}, v{r0}, v{r0+1}")
        a(f"v_cvt_pk_bf16_f32 v{p+1}, v{r0+2}, v{r0+3}")
        a(f"v_cvt_pk_bf16_f32 v{p+2}, v{r0+4}, v{r0+5}")
        a(f"v_cvt_pk_bf16_f32 v{p+3}, v{r0+6}, v{r0+7}")
        a(f"s_add_u32 s37, s36, {ct*20*1024}")
        a(f"buffer_store_dwordx2 v[{p}:{p+1}], v22, s[24:27], s37 offen sc1")
        a("s_mov_b64 exec, s[38:39]")
        a(f"buffer_store_dwordx2 v[{p+2}:{p+3}], v23, s[24:27], s37 offen sc1")
        a("s_mov_b64 exec, -1")
    a("s_waitcnt vmcnt(0)")
    a("s_barrier")
    a("s_mov_b32 s22, 256")
    a("s_mov_b32 s23, 0x00020000")
    a("v_mov_b32 v8, 1")
    a("v_cmp_eq_u32 vcc, 0, v0")
    a("s_and_saveexec_b64 s[30:31], vcc")
    a("s_cbranch_execz L_a2r_exit")
    a("buffer_atomic_add v8, off, s[20:23], 0 sc1")
    a.label("L_a2r_exit")
    a("s_endpgm")

A3_LDS = 4 * 40 * 512
OP = 272

def poll(a, tag, srd_, off, target, vtmp, swave):
    a(f"s_cmp_lg_u32 s{swave}, 0")
    a(f"s_cbranch_scc1 L_poll_{tag}_done")
    a("s_mov_b32 s63, 0")
    a.label(f"L_poll_{tag}")
    a(f"buffer_load_dword v{vtmp}, off, s[{srd_}:{srd_+3}], {off} sc1")
    a("s_waitcnt vmcnt(0)")
    a(f"v_readfirstlane_b32 s60, v{vtmp}")
    a("s_add_u32 s63, s63, 1")
    a(f"s_cmp_ge_u32 s60, {target}")
    a(f"s_cbranch_scc1 L_poll_{tag}_ok")
    a("s_sleep 8")
    a("s_cmp_lt_u32 s63, 0x40000")
    a(f"s_cbranch_scc1 L_poll_{tag}")
    a.label(f"L_poll_{tag}_ok")
    a("buffer_inv sc1")
    a("s_waitcnt vmcnt(0)")
    a.label(f"L_poll_{tag}_done")

def a3(a):
    a("s_load_dwordx2 s[8:9], s[0:1], 80")
    a("s_load_dwordx2 s[12:13], s[0:1], 96")
    a("s_load_dwordx2 s[20:21], s[0:1], 88")
    a("v_and_b32 v1, 63, v0")
    a("v_lshrrev_b32 v4, 6, v0")
    a("v_readfirstlane_b32 s4, v4")
    a("s_lshr_b32 s7, s2, 3")
    a("s_mul_i32 s5, s7, 52429")
    a("s_lshr_b32 s5, s5, 18")
    a("s_mul_i32 s6, s5, 5")
    a("s_sub_u32 s6, s7, s6")
    a("s_and_b32 s7, s2, 7")
    a("s_lshl_b32 s7, s7, 2")
    a("s_add_u32 s5, s5, s7")
    a("; STAMP 0")
    a("v_lshlrev_b32 v5, 4, v1")
    a("s_waitcnt lgkmcnt(0)")
    srd(a, 16, 8, 2048*1280*2); srd(a, 24, 12, WS_SIZE)
    a("s_mov_b32 s22, 256")
    a("s_mov_b32 s23, 0x00020000")
    a(f"s_mul_i32 s28, s5, {4*40*512}")
    a("s_mul_i32 s29, s4, 10240")
    a("s_add_u32 s28, s28, s29")
    for i in range(10):
        a(f"s_add_u32 m0, s29, {i*1024}")
        a(f"s_add_u32 s30, s28, {WS_PQ + i*1024}")
        a("buffer_load_dwordx4 v5, s[24:27], s30 offen lds")
    a("s_lshl_b32 s29, s6, 3")
    a("s_add_u32 s29, s29, s4")
    a("s_mul_i32 s34, s29, 20480")
    a(f"s_add_u32 s34, s34, {WS_MT}")
    MT = 24; NMT = 16
    def mtload(t):
        if t % 4 == 0 and t: a("s_add_u32 s34, s34, 4096")
        r = MT + 4*(t % NMT)
        a(f"buffer_load_dwordx4 v[{r}:{r+3}], v5, s[24:27], s34 offen offset:{(t%4)*1024}")
    a("s_mov_b32 s61, 0xffff0000")
    a("s_mov_b32 s62, 0x358637bd")
    a("v_lshrrev_b32 v6, 4, v1")
    a("v_mul_u32_u24 v6, 20480, v6")
    a("v_and_b32 v7, 15, v1")
    a("v_lshl_add_u32 v6, v7, 3, v6")
    a("s_mul_i32 s30, s4, 2560")
    a("v_add_u32 v6, s30, v6")
    a("; STAMP 1")
    poll(a, "a3", 20, 0, 32, 8, 4)
    a("s_waitcnt vmcnt(0)")
    a("s_barrier")
    a("; STAMP 2")
    a("s_mul_i32 s30, s4, 160")
    a(f"s_add_u32 s30, s30, {WS_ZF}")
    for i in range(10):
        a(f"buffer_load_dwordx4 v[{88+4*i}:{91+4*i}], off, s[24:27], s30 offset:{16*i}")
    a("; STAMP 3")
    def rd(hd):
        for i in range(5):
            qd = 5*hd + i
            a(f"ds_read_b64 v[{8+2*i}:{9+2*i}], v6 offset:{(qd>>2)*512 + (qd&3)*128}")
    a("s_waitcnt vmcnt(0)")
    for hd in range(4):
        rd(hd)
        for k in range(4): mtload(4*hd + k)
        a("s_waitcnt lgkmcnt(0)")
        Z = 88 + 10*hd
        a(f"v_dot2_f32_bf16 v18, v8, v{Z}, 0")
        a(f"v_dot2_f32_bf16 v19, v9, v{Z+1}, 0")
        for i in range(2, 10, 2):
            a(f"v_dot2_f32_bf16 v18, v{8+i}, v{Z+i}, v18")
            a(f"v_dot2_f32_bf16 v19, v{9+i}, v{Z+i+1}, v19")
        a("s_nop 2")
        a("v_add_f32 v18, v18, v19")
        a("v_cvt_pk_bf16_f32 v18, v18, v18")
        a("v_lshlrev_b32 v18, 16, v18")
        a("v_add_f32 v18, s62, v18")
        a("v_cvt_pk_bf16_f32 v18, v18, v18")
        a("v_lshlrev_b32 v18, 16, v18")
        a("v_rcp_f32 v18, v18")
        for i in range(0, 10, 2):
            a(f"v_lshlrev_b32 v20, 16, v{8+i}")
            a(f"v_and_b32 v21, s61, v{8+i}")
            a(f"v_lshlrev_b32 v22, 16, v{9+i}")
            a(f"v_and_b32 v23, s61, v{9+i}")
            for k in range(4): a(f"v_mul_f32 v{20+k}, v{20+k}, v18")
            a(f"v_cvt_pk_bf16_f32 v{8+i}, v20, v21")
            a(f"v_cvt_pk_bf16_f32 v{9+i}, v22, v23")
        for i in range(5):
            qd = 5*hd + i
            a(f"ds_write_b64 v6, v[{8+2*i}:{9+2*i}] offset:{(qd>>2)*512 + (qd&3)*128}")
    a("s_waitcnt lgkmcnt(0)")
    a("s_barrier")
    a("; STAMP 4")
    a("v_lshlrev_b32 v6, 3, v1")
    a("v_add_u32 v7, 40960, v6")
    for r in range(8, 24):
        a(f"v_mov_b32 v{r}, 0")
    AF = [88, 104]
    def lda(t):
        f = AF[t % 2]
        for rt in range(4):
            va = 6 if rt < 2 else 7
            a(f"ds_read_b64 v[{f+4*rt}:{f+4*rt+1}], v{va} offset:{(rt&1)*20480 + t*1024}")
            a(f"ds_read_b64 v[{f+4*rt+2}:{f+4*rt+3}], v{va} offset:{(rt&1)*20480 + t*1024 + 512}")
    lda(0)
    issued = 16
    for t in range(20):
        if t + 1 < 20:
            lda(t+1)
        a(f"s_waitcnt vmcnt({issued-1-t}) lgkmcnt({8 if t + 1 < 20 else 0})")
        f = AF[t % 2]
        r = MT + 4*(t % NMT)
        for rt in range(4):
            acc = 8 + 4*rt
            a(f"v_mfma_f32_16x16x32_bf16 v[{acc}:{acc+3}], v[{r}:{r+3}], v[{f+4*rt}:{f+4*rt+3}], v[{acc}:{acc+3}]")
        if issued < 20:
            mtload(issued); issued += 1
    a("; STAMP 5")
    a("s_barrier")
    a("v_lshrrev_b32 v40, 4, v1")
    a("v_and_b32 v41, 15, v1")
    a(f"v_mul_u32_u24 v42, {OP}, v41")
    a("v_lshl_add_u32 v42, v40, 3, v42")
    a("s_lshl_b32 s30, s4, 5")
    a("v_add_u32 v42, s30, v42")
    for rt in range(4):
        acc = 8 + 4*rt
        a(f"v_cvt_pk_bf16_f32 v{acc}, v{acc}, v{acc+1}")
        a(f"v_cvt_pk_bf16_f32 v{acc+1}, v{acc+2}, v{acc+3}")
        a(f"ds_write_b64 v42, v[{acc}:{acc+1}] offset:{rt*16*OP}")
    a("s_waitcnt lgkmcnt(0)")
    a("s_barrier")
    a("v_lshrrev_b32 v40, 4, v0")
    a("v_and_b32 v41, 15, v0")
    a(f"v_mul_u32_u24 v42, {OP}, v40")
    a("v_lshl_add_u32 v42, v41, 4, v42")
    a("ds_read_b128 v[8:11], v42")
    a(f"ds_read_b128 v[12:15], v42 offset:{32*OP}")
    a("s_lshl_b32 s7, s5, 6")
    a("v_add_u32 v40, s7, v40")
    a("v_mul_u32_u24 v40, 2560, v40")
    a("v_lshl_add_u32 v40, v41, 4, v40")
    a("s_lshl_b32 s30, s6, 8")
    a(f"s_add_u32 s31, s30, {32*2560}")
    a("s_waitcnt lgkmcnt(0)")
    a("buffer_store_dwordx4 v[8:11], v40, s[16:19], s30 offen")
    a("buffer_store_dwordx4 v[12:15], v40, s[16:19], s31 offen")
    a("s_endpgm")
```

```python
from asmlib import *

DEBUG_DUMP = False
WS_PQ = 0
WS_PART = 0x280000
PSZ = 18 * 1024
WS_KX = 0x700000
KXP = 4416
WS_MT = 0xA00000
WS_ZF = 0xB00000
WS_SIZE = 0x1000000
WS_SIZE2 = 0x2000000
LOG2E = "0x3fb8aa3b"
NLOG2E = "0xbfb8aa3b"

def srd(a, d, base, nbytes):
    a(f"s_mov_b32 s{d}, s{base}")
    a(f"s_mov_b32 s{d+1}, s{base+1}")
    a(f"s_mov_b32 s{d+2}, {nbytes}")
    a(f"s_mov_b32 s{d+3}, 0x00020000")

def emit_p0(a, vi, d0, d1, d2, t0, t1):
    a(f"v_and_b32 v{d0}, 7, v{vi}")
    a(f"v_and_b32 v{t0}, 8, v{vi}")
    a(f"v_lshlrev_b32 v{t0}, 4, v{t0}")
    a(f"v_or_b32 v{d0}, v{d0}, v{t0}")
    a(f"v_and_b32 v{t0}, 4, v{vi}")
    a(f"v_lshlrev_b32 v{t0}, 5, v{t0}")
    a(f"v_and_b32 v{t1}, 3, v{vi}")
    a(f"v_lshlrev_b32 v{t1}, 1, v{t1}")
    a(f"v_add3_u32 v{d1}, v{t0}, v{t1}, 0")
    a(f"v_add_u32 v{d1}, 0x100, v{d1}")
    a(f"v_and_b32 v{t0}, 6, v{vi}")
    a(f"v_lshlrev_b32 v{t0}, 6, v{t0}")
    a(f"v_and_b32 v{t1}, 1, v{vi}")
    a(f"v_lshlrev_b32 v{t1}, 2, v{t1}")
    a(f"v_add_u32 v{t0}, v{t0}, v{t1}")
    a(f"v_add_u32 v{t0}, 0x200, v{t0}")
    a(f"v_cmp_gt_u32 vcc, 8, v{vi}")
    a(f"v_cndmask_b32 v{d1}, v{t0}, v{d1}, vcc")
    a(f"v_lshlrev_b32 v{t0}, 7, v{vi}")
    a(f"v_add_u32 v{t0}, 0x400, v{t0}")
    a(f"v_mov_b32 v{t1}, 0x800")
    a(f"v_cndmask_b32 v{d2}, v{t1}, v{t0}, vcc")

KG_LDS = 3 * 12288
ATC = ['0x3e22f982', '0xbd594a64', '0x3d022dde', '0xbcb6bf74', '0x3c8127ca', '0xbc1ace2a', '0x3b7c1000', '0xba42c9cd']
def kgen(a, wg_base):
    a(f"s_sub_u32 s3, s2, {wg_base}")
    a("s_load_dwordx8 s[8:15], s[0:1], 32")
    a("s_load_dwordx2 s[16:17], s[0:1], 64")
    a("s_load_dwordx2 s[18:19], s[0:1], 96")
    a("v_lshrrev_b32 v4, 6, v0")
    a("v_readfirstlane_b32 s4, v4")
    a("v_and_b32 v1, 63, v0")
    a("v_and_b32 v2, 15, v0")
    a("v_bfe_u32 v3, v0, 4, 2")
    a("s_lshr_b32 s5, s4, 1")
    a("s_and_b32 s4, s4, 1")
    a("s_lshl_b32 s6, s5, 8")
    a("s_add_u32 s3, s3, s6")
    a("s_cmp_ge_u32 s3, 640")
    a("s_cbranch_scc1 L_kgen_exit")
    a("s_mul_i32 s5, s5, 12288")
    a("s_mul_i32 s44, s3, 384")
    a("s_mul_i32 s6, s4, 192")
    a("s_add_u32 s44, s44, s6")
    a("s_lshl_b32 s45, s3, 1")
    a("s_and_b32 s45, s45, 0xfffffffc")
    a("v_lshlrev_b32 v5, 2, v1")
    a("v_min_u32 v5, 188, v5")
    a("s_waitcnt lgkmcnt(0)")
    srd(a, 20, 8, 640*192*2); srd(a, 24, 10, 640*192*2); srd(a, 28, 12, 640*192*2); srd(a, 32, 14, 640*192*2)
    srd(a, 40, 18, WS_SIZE)
    for k, sr in enumerate((20, 24, 28, 32)):
        a(f"buffer_load_dword v{16+k}, v5, s[{sr}:{sr+3}], s44 offen")
    a("s_load_dword s51, s[16:17], s45")
    a("; KSTAMP 0")
    emit_p0(a, 2, 35, 36, 37, 52, 53)
    a("v_lshlrev_b32 v34, 3, v2")
    for r in (34, 35, 36, 37):
        a(f"v_cvt_f32_u32 v{r}, v{r}")
    for r in range(40, 52):
        a(f"v_mov_b32 v{r}, 0")
    a("v_mov_b32 v52, 0")
    a("v_mov_b32 v53, s5")
    a("ds_write_b16 v53, v52 offset:4400")
    a(f"s_mov_b32 s46, {LOG2E}")
    a(f"s_mov_b32 s47, {NLOG2E}")
    a("s_mov_b32 s48, 0xffff0000")
    a("s_mul_i32 s6, s4, 1536")
    a("s_add_u32 s6, s6, s5")
    a("v_lshlrev_b32 v13, 5, v1")
    a("v_add_u32 v13, s6, v13")
    a("v_mul_u32_u24 v12, 384, v3")
    a("v_add_u32 v12, s6, v12")
    a("s_waitcnt lgkmcnt(0)")
    a("s_and_b32 s7, s3, 1")
    a("s_lshl_b32 s7, s7, 4")
    a("s_lshr_b32 s51, s51, s7")
    a("s_lshl_b32 s51, s51, 16")
    a("v_mov_b32 v32, s51")
    a("v_mul_f32 v32, s46, v32")
    a("v_exp_f32 v32, v32")
    a("v_cvt_pk_bf16_f32 v32, v32, v32")
    a("v_lshlrev_b32 v32, 16, v32")
    a("v_add_f32 v33, v32, v32")
    a("s_waitcnt vmcnt(0)")
    a("; KSTAMP 1")
    seqs = []
    for q in range(2):
        B = 56 + 16*q
        l = []
        for k in range(4):
            l.append(f"v_lshlrev_b32 v{B+k}, 16, v{16+k}" if q == 0 else f"v_and_b32 v{B+k}, s48, v{16+k}")
        l += [f"v_mul_f32 v{B}, s46, v{B}", f"v_exp_f32 v{B}, v{B}", f"v_mul_f32 v{B+1}, v{B+1}, v32",
              f"v_mul_f32 v{B+2}, v{B+2}, v33", f"v_cvt_pk_bf16_f32 v{B}, v{B}, v{B}", f"v_mul_f32 v{B+3}, v{B+3}, v33",
              f"v_lshlrev_b32 v{B}, 16, v{B}", f"v_mul_f32 v{B+1}, 0.15915494, v{B+1}", f"v_mul_f32 v{B}, v{B}, v32",
              f"v_mul_f32 v{B}, s47, v{B}",
              f"v_mul_f32 v{B+4}, v{B+2}, v{B+2}", f"v_fma_f32 v{B+4}, v{B+3}, v{B+3}, v{B+4}", f"v_log_f32 v{B+4}, v{B+4}",
              f"v_max_f32 v{B+6}, abs(v{B+2}), abs(v{B+3})", f"v_min_f32 v{B+7}, abs(v{B+2}), abs(v{B+3})",
              f"v_max_f32 v{B+6}, 0x00800000, v{B+6}", f"v_rcp_f32 v{B+6}, v{B+6}", f"v_mul_f32 v{B+4}, 0.5, v{B+4}",
              f"v_mul_f32 v{B+7}, v{B+7}, v{B+6}", f"v_mul_f32 v{B+6}, v{B+7}, v{B+7}", f"v_mov_b32 v{B+5}, {ATC[7]}"]
        for c in range(6, -1, -1):
            l.append(f"v_fma_f32 v{B+5}, v{B+5}, v{B+6}, s{52+c}")
        cc = f"s[{60+2*q}:{61+2*q}]"
        l += [f"v_mul_f32 v{B+5}, v{B+5}, v{B+7}", f"v_sub_f32 v{B+6}, 0.25, v{B+5}",
              f"v_cmp_gt_f32 {cc}, abs(v{B+3}), abs(v{B+2})", f"v_cndmask_b32 v{B+5}, v{B+5}, v{B+6}, {cc}",
              f"v_sub_f32 v{B+6}, 0.5, v{B+5}", f"v_cmp_gt_f32 {cc}, 0, v{B+2}", f"v_cndmask_b32 v{B+5}, v{B+5}, v{B+6}, {cc}",
              f"v_cmp_gt_f32 {cc}, 0, v{B+3}", f"v_cndmask_b32 v{B+3}, v{B+5}, -v{B+5}, {cc}", f"v_mov_b32 v{B+2}, v{B+4}"]
        seqs.append(l)
    for c in range(7):
        a(f"s_mov_b32 s{52+c}, {ATC[c]}")
    for x, y in zip(*seqs):
        a(x); a(y)
    a("v_cmp_gt_u32 vcc, 48, v1")
    a("s_and_saveexec_b64 s[22:23], vcc")
    a("ds_write_b128 v13, v[56:59] offset:4608")
    a("ds_write_b128 v13, v[72:75] offset:4624")
    a("s_mov_b64 exec, s[22:23]")
    a("; KSTAMP 2")
    def prd(b):
        for n in range(4):
            a(f"ds_read_b128 v[{96+16*(b&1)+4*n}:{99+16*(b&1)+4*n}], v12 offset:{4608 + (4*b+n)*16}")
    prd(0)
    for b in range(6):
        if b + 1 < 6:
            prd(b+1); a("s_waitcnt lgkmcnt(4)")
        else:
            a("s_waitcnt lgkmcnt(0)")
        for n2 in range(0, 4, 2):
            seq = []
            for q in range(2):
                m = n2 + q; P = 96 + 16*(b&1) + 4*m; T = 52 + 16*q
                l = []
                l.append(f"v_mul_f32 v{T}, v{P}, v34")
                l.append(f"v_mul_f32 v{T+1}, v{P+1}, v34")
                for g in range(3):
                    l.append(f"v_fma_f32 v{T+4+4*g}, v{P}, v{35+g}, v{P+2}")
                    l.append(f"v_fma_f32 v{T+5+4*g}, v{P+1}, v{35+g}, v{P+3}")
                for k in range(4):
                    l.append(f"v_exp_f32 v{T+4*k}, v{T+4*k}")
                    l.append(f"v_fract_f32 v{T+4*k+1}, v{T+4*k+1}")
                for k in range(4):
                    l.append(f"v_cos_f32 v{T+4*k+2}, v{T+4*k+1}")
                    l.append(f"v_sin_f32 v{T+4*k+3}, v{T+4*k+1}")
                for k in range(4):
                    l.append(f"v_mul_f32 v{T+4*k+2}, v{T+4*k}, v{T+4*k+2}")
                    l.append(f"v_mul_f32 v{T+4*k+3}, v{T+4*k}, v{T+4*k+3}")
                l.append(f"v_cvt_pk_bf16_f32 v{28+m}, v{T+2}, -v{T+3}")
                for g in range(3):
                    l.append(f"v_cvt_pk_bf16_f32 v{16+4*g+m}, v{T+6+4*g}, v{T+7+4*g}")
                seq.append(l)
            for x, y in zip(*seq):
                a(x); a(y)
        for g in range(3):
            a(f"v_mfma_f32_16x16x32_bf16 v[{40+4*g}:{43+4*g}], v[{16+4*g}:{19+4*g}], v[28:31], v[{40+4*g}:{43+4*g}]")
    a("; KSTAMP 3")
    a("v_lshlrev_b32 v52, 4, v1")
    a("v_add_u32 v52, s5, v52")
    a("s_cmp_eq_u32 s4, 0")
    a("s_cbranch_scc1 L_kgen_h0a")
    for g in range(3):
        a(f"ds_write_b128 v52, v[{40+4*g}:{43+4*g}] offset:{8192 + g*1024}")
    a.label("L_kgen_h0a")
    a("s_waitcnt lgkmcnt(0)")
    a("s_barrier")
    a("s_cmp_eq_u32 s4, 1")
    a("s_cbranch_scc1 L_kgen_h1b")
    for g in range(3):
        a(f"ds_read_b128 v[{56+4*g}:{59+4*g}], v52 offset:{8192 + g*1024}")
    a("v_lshlrev_b32 v54, 3, v2")
    for r in range(4):
        a(f"v_lshl_add_u32 v53, v3, 2, {r}")
        emit_p0(a, 53, 72+r, 76+r, 80+r, 84, 85)
        for g in range(3):
            a(f"v_add_lshl_u32 v{72+4*g+r}, v{72+4*g+r}, v54, 1")
            a(f"v_add_u32 v{72+4*g+r}, s5, v{72+4*g+r}")
    a("s_waitcnt lgkmcnt(0)")
    for k in range(12):
        a(f"v_add_f32 v{40+k}, v{40+k}, v{56+k}")
        a(f"v_cvt_pk_bf16_f32 v{40+k}, v{40+k}, v{40+k}")
        a(f"ds_write_b16 v{72+k}, v{40+k}")
    a.label("L_kgen_h1b")
    a("s_waitcnt lgkmcnt(0)")
    a("s_barrier")
    a("; KSTAMP 4")
    a(f"s_mul_i32 s24, s3, {KXP}")
    a(f"s_add_u32 s24, s24, {WS_KX}")
    a("s_movk_i32 s25, 0x800")
    a("v_mov_b32 v86, 4400")
    a("v_and_b32 v6, 127, v0")
    for it in range(3):
        if it == 2:
            a("v_cmp_gt_u32 vcc, 20, v6")
            a("s_and_saveexec_b64 s[28:29], vcc")
            a("s_cbranch_execz L_kgen_exit")
        a(f"v_add_u32 v52, {128*it}, v6")
        a("v_lshlrev_b32 v53, 3, v52")
        for i in range(8):
            a(f"v_add_u32 v{54+i}, {i}, v53")
            a(f"v_sub_u32 v{62+i}, s25, v{54+i}")
            a(f"v_cvt_f32_i32 v{62+i}, v{62+i}")
        for i in range(0, 8, 2):
            a(f"v_cvt_pk_bf16_f32 v70, v{62+i}, v{63+i}")
            a(f"v_lshlrev_b32 v{62+i}, 16, v70")
            a(f"v_and_b32 v{63+i}, s48, v70")
        for i in range(8):
            a(f"v_cvt_u32_f32 v{62+i}, v{62+i}")
            a(f"v_lshlrev_b32 v{62+i}, 1, v{62+i}")
            a(f"v_add_u32 v{54+i}, -1, v{54+i}")
            a(f"v_cmp_gt_u32 vcc, s25, v{54+i}")
            a(f"v_cndmask_b32 v{62+i}, v86, v{62+i}, vcc")
            a(f"v_add_u32 v{62+i}, s5, v{62+i}")
        for i in range(8):
            a(f"ds_read_u16 v{54+i}, v{62+i}")
        a("v_lshlrev_b32 v53, 4, v52")
        a("s_waitcnt lgkmcnt(0)")
        for i in range(0, 8, 2):
            a(f"v_lshl_or_b32 v{72+4*(it&1)+i//2}, v{55+i}, 16, v{54+i}")
        a(f"buffer_store_dwordx4 v[{72+4*(it&1)}:{75+4*(it&1)}], v53, s[40:43], s24 offen")
    a.label("L_kgen_exit")
    a("; KEND")
    a("s_endpgm")

WS_UT = 0xC00000
WS_YT = 0xF00000

def transp(a, wg_base, nthreads, direction, nwg=None, wait=False):
    nh = nthreads // 256
    tag = direction
    a(f"s_sub_u32 s3, s2, {wg_base}")
    a("s_load_dwordx2 s[8:9], s[0:1], 24")
    a("s_load_dwordx2 s[10:11], s[0:1], 72")
    a("s_load_dwordx2 s[12:13], s[0:1], 80")
    a("s_load_dwordx2 s[14:15], s[0:1], 96")
    a("v_lshrrev_b32 v4, 8, v0")
    a("v_readfirstlane_b32 s4, v4")
    a("v_and_b32 v0, 255, v0")
    a("v_and_b32 v1, 63, v0")
    a("v_lshrrev_b32 v4, 6, v0")
    a(f"s_mul_i32 s3, s3, {nh}")
    a("s_add_u32 s3, s3, s4")
    a("s_mul_i32 s5, s4, 9216")
    a("s_waitcnt lgkmcnt(0)")
    srd(a, 16, 8, 2048*640*2); srd(a, 20, 10, 1280); srd(a, 24, 12, 2048*1280*2); srd(a, 28, 14, WS_SIZE2)
    a.label(f"L_tr{tag}_loop")
    a("s_mul_i32 s6, s3, 6554")
    a("s_lshr_b32 s6, s6, 16")
    a("s_mul_i32 s7, s6, 10")
    a("s_sub_u32 s7, s3, s7")
    if wait:
        from parta import poll
        a("s_lshl_b32 s48, s7, 2")
        a("s_add_u32 s48, s48, 16")
        a("v_readfirstlane_b32 s49, v4")
        a("; STAMP 4")
        poll(a, "yt", 44, "s48", 64, 8, 49)
        a("s_barrier")
        a("; STAMP 5")
    a("v_lshrrev_b32 v5, 3, v0")
    a("v_and_b32 v6, 7, v0")
    if direction == 'u':
        a("v_mul_u32_u24 v7, 1280, v5")
        a("v_lshl_add_u32 v7, v6, 4, v7")
        a("s_mul_i32 s32, s6, 81920")
        a("s_lshl_b32 s33, s7, 7")
        a("s_add_u32 s32, s32, s33")
        a("s_add_u32 s33, s32, 40960")
        a("buffer_load_dwordx4 v[8:11], v7, s[16:19], s32 offen")
        a("buffer_load_dwordx4 v[12:15], v7, s[16:19], s33 offen")
    else:
        a("v_lshlrev_b32 v7, 12, v5")
        a("v_lshl_add_u32 v7, v6, 4, v7")
        a("s_lshl_b32 s32, s7, 18")
        a("s_lshl_b32 s33, s6, 7")
        a("s_add_u32 s32, s32, s33")
        a(f"s_add_u32 s32, s32, {WS_YT}")
        a("s_add_u32 s33, s32, 131072")
        a("buffer_load_dwordx4 v[8:11], v7, s[28:31], s32 offen")
        a("buffer_load_dwordx4 v[12:15], v7, s[28:31], s33 offen")
    a("v_mul_u32_u24 v16, 144, v5")
    a("v_lshl_add_u32 v16, v6, 4, v16")
    a("v_add_u32 v16, s5, v16")
    a("v_lshrrev_b32 v17, 4, v1")
    a("v_bfe_u32 v18, v1, 2, 2")
    a("v_and_b32 v19, 3, v1")
    a("v_and_b32 v20, 15, v1")
    a("v_lshl_add_u32 v21, v17, 3, v18")
    a("v_mul_u32_u24 v21, 144, v21")
    a("v_lshl_add_u32 v21, v19, 3, v21")
    a("v_lshl_add_u32 v21, v4, 5, v21")
    a("v_add_u32 v21, s5, v21")
    a("v_lshl_add_u32 v22, v4, 4, v20")
    if direction == 'u':
        a("v_lshlrev_b32 v23, 12, v22")
        a("v_lshl_add_u32 v23, v17, 4, v23")
        a("s_lshl_b32 s34, s7, 18")
        a("s_lshl_b32 s35, s6, 7")
        a("s_add_u32 s34, s34, s35")
        a(f"s_add_u32 s34, s34, {WS_UT}")
    else:
        a("v_mul_u32_u24 v23, 2560, v22")
        a("v_lshl_add_u32 v23, v17, 4, v23")
        a("s_mul_i32 s34, s6, 163840")
        a("s_lshl_b32 s35, s7, 7")
        a("s_add_u32 s34, s34, s35")
        a("s_add_u32 s34, s34, 1280")
        a("v_mul_u32_u24 v24, 1280, v22")
        a("v_lshl_add_u32 v24, v17, 4, v24")
        a("s_mul_i32 s36, s6, 81920")
        a("s_add_u32 s36, s36, s35")
        a("buffer_load_dwordx4 v[32:35], v24, s[16:19], s36 offen")
        a("buffer_load_dwordx4 v[36:39], v24, s[16:19], s36 offen offset:64")
        a("v_lshlrev_b32 v24, 4, v17")
        a("buffer_load_dwordx4 v[40:43], v24, s[20:23], s35 offen")
        a("buffer_load_dwordx4 v[44:47], v24, s[20:23], s35 offen offset:64")
        a("s_waitcnt vmcnt(4)")
    if direction == 'u': a("s_waitcnt vmcnt(0)")
    a("ds_write_b128 v16, v[8:11]")
    a(f"ds_write_b128 v16, v[12:15] offset:{32*144}")
    a("s_waitcnt lgkmcnt(0)")
    a("s_barrier")
    for i in range(2):
        a(f"ds_read_b64_tr_b16 v[{8+4*i}:{9+4*i}], v21 offset:{i*32*144}")
        a(f"ds_read_b64_tr_b16 v[{10+4*i}:{11+4*i}], v21 offset:{i*32*144 + 4*144}")
    a("s_waitcnt lgkmcnt(0)")
    if direction == 'u':
        a("buffer_store_dwordx4 v[8:11], v23, s[28:31], s34 offen")
        a("buffer_store_dwordx4 v[12:15], v23, s[28:31], s34 offen offset:64")
    else:
        a("s_mov_b32 s38, 0xffff0000")
        a("s_waitcnt vmcnt(0)")
        for i in range(2):
            for k in range(4):
                y, u, d = 8+4*i+k, 32+4*i+k, 40+4*i+k
                a(f"v_lshlrev_b32 v48, 16, v{u}")
                a(f"v_and_b32 v49, s38, v{u}")
                a(f"v_lshlrev_b32 v50, 16, v{d}")
                a(f"v_and_b32 v51, s38, v{d}")
                a("v_mul_f32 v48, v48, v50")
                a("v_mul_f32 v49, v49, v51")
                a("v_cvt_pk_bf16_f32 v48, v48, v49")
                a("v_and_b32 v49, s38, v48")
                a("v_lshlrev_b32 v48, 16, v48")
                a(f"v_lshlrev_b32 v50, 16, v{y}")
                a(f"v_and_b32 v51, s38, v{y}")
                a("v_add_f32 v48, v48, v50")
                a("v_add_f32 v49, v49, v51")
                a(f"v_cvt_pk_bf16_f32 v{y}, v48, v49")
            a(f"buffer_store_dwordx4 v[{8+4*i}:{11+4*i}], v23, s[24:27], s34 offen offset:{64*i}")
    if nwg:
        a(f"s_add_u32 s3, s3, {nwg*nh}")
        a("s_cmp_ge_u32 s3, 320")
        a(f"s_cbranch_scc1 L_tr{tag}_end")
        a("s_barrier")
        a(f"s_branch L_tr{tag}_loop")
        a.label(f"L_tr{tag}_end")
    a("s_endpgm")

KCP = 4416
L_UD = 4 * KCP
L_Y = 25600
CVG = 29696
CONV_LDS = 2 * CVG

def conv(a, wg_base):
    from parta import poll
    a(f"s_sub_u32 s2, s2, {wg_base}")
    a("; STAMP 0")
    a("s_load_dwordx2 s[14:15], s[0:1], 96")
    a("s_load_dwordx2 s[44:45], s[0:1], 88")
    a("v_mov_b32 v127, v0")
    a("v_lshrrev_b32 v4, 8, v0")
    a("v_readfirstlane_b32 s41, v4")
    a("v_and_b32 v0, 255, v0")
    a("v_and_b32 v1, 63, v0")
    a("v_lshrrev_b32 v4, 6, v0")
    a("v_readfirstlane_b32 s4, v4")
    a("s_lshl_b32 s3, s2, 2")
    a("s_add_u32 s3, s3, s41")
    a(f"s_mul_i32 s42, s41, {CVG}")
    a("v_lshlrev_b32 v5, 4, v0")
    a("v_add_u32 v6, s42, v5")
    a("s_mov_b32 s43, 0")
    a("s_waitcnt lgkmcnt(0)")
    srd(a, 28, 14, WS_SIZE2)
    a("s_mov_b32 s46, 256")
    a("s_mov_b32 s47, 0x00020000")
    a("v_lshrrev_b32 v7, 2, v0")
    a("v_mul_u32_u24 v7, 80, v7")
    a("v_and_b32 v12, 3, v0")
    a("v_lshl_add_u32 v7, v12, 4, v7")
    a("v_add_u32 v7, s42, v7")
    a("v_and_b32 v8, 31, v1")
    a("v_lshrrev_b32 v9, 5, v1")
    a("v_and_b32 v10, 3, v8")
    a(f"v_mul_u32_u24 v10, {KCP}, v10")
    a("v_and_b32 v11, 28, v8")
    a("v_sub_u32 v11, 32, v11")
    a("v_lshl_add_u32 v11, v9, 3, v11")
    a("v_lshl_add_u32 v10, v11, 1, v10")
    a("s_and_b32 s5, s4, 1")
    a("s_lshr_b32 s6, s4, 1")
    a("s_lshl_b32 s6, s6, 5")
    a("s_xor_b32 s5, s5, 1")
    a("s_lshl_b32 s7, s5, 6")
    a("s_add_u32 s7, s7, s6")
    a("s_add_u32 s7, s7, s42")
    a("v_add_u32 v10, s7, v10")
    a("v_mul_u32_u24 v11, 80, v8")
    a("v_lshl_add_u32 v11, v9, 4, v11")
    a("s_mul_i32 s7, s5, 80")
    a("s_add_u32 s7, s7, s6")
    a("s_add_u32 s7, s7, s42")
    a(f"s_add_u32 s7, s7, {L_UD + 80}")
    a("v_add_u32 v11, s7, v11")
    def gloads():
        a(f"s_mul_i32 s34, s3, {KXP}")
        a(f"s_add_u32 s34, s34, {WS_KX - 8}")
        a("s_add_u32 s40, s34, 4096")
        a("s_lshl_b32 s33, s3, 12")
        a(f"s_add_u32 s33, s33, {WS_UT}")
        a("buffer_load_dwordx4 v[16:19], v5, s[28:31], s33 offen")
        for i in range(2):
            so = "s34" if i == 0 else "s40"
            a(f"buffer_load_dwordx2 v[{24+6*i}:{25+6*i}], v5, s[28:31], {so} offen")
            a(f"buffer_load_dwordx4 v[{26+6*i}:{29+6*i}], v5, s[28:31], {so} offen offset:8")
    gloads()
    a.label("L_cv_loop")
    a("v_mov_b32 v60, 0"); a("v_mov_b32 v61, 0"); a("v_mov_b32 v62, 0"); a("v_mov_b32 v63, 0")
    a("v_cmp_gt_u32 vcc, 160, v0")
    a("s_and_saveexec_b64 s[36:37], vcc")
    a(f"ds_write_b128 v6, v[60:63] offset:{L_UD}")
    a("s_mov_b64 exec, s[36:37]")
    a("s_waitcnt vmcnt(0)")
    a(f"ds_write_b128 v7, v[16:19] offset:{L_UD + 32*80}")
    for i in range(2):
        d = 24 + 6*i
        if i == 1:
            a("v_cmp_gt_u32 vcc, 20, v0")
            a("s_and_saveexec_b64 s[36:37], vcc")
        if i == 0:
            a("v_cmp_eq_u32 vcc, 0, v0")
            a(f"v_cndmask_b32 v{d}, v{d}, 0, vcc")
            a(f"v_cndmask_b32 v{d+1}, v{d+1}, 0, vcc")
        a(f"ds_write_b128 v6, v[{d+2}:{d+5}] offset:{i*4096}")
        for j in range(4):
            a(f"v_alignbit_b32 v{64+j}, v{d+2+j}, v{d+1+j}, 16")
        a(f"ds_write_b128 v6, v[64:67] offset:{i*4096 + KCP}")
        for j in range(4):
            a(f"v_mov_b32 v{68+j}, v{d+1+j}")
        a(f"ds_write_b128 v6, v[68:71] offset:{i*4096 + 2*KCP}")
        for j in range(4):
            a(f"v_alignbit_b32 v{72+j}, v{d+1+j}, v{d+j}, 16")
        a(f"ds_write_b128 v6, v[72:75] offset:{i*4096 + 3*KCP}")
        if i == 1:
            a("s_mov_b64 exec, s[36:37]")
    a("s_lshl_b32 s32, s3, 12")
    a("s_lshr_b32 s48, s3, 6")
    a("s_cmp_lg_u32 s43, 0")
    a("s_cbranch_scc1 L_cv_nopf")
    a("s_add_u32 s3, s3, 2")
    gloads()
    a.label("L_cv_nopf")
    ACC0, ACC1 = 64, 80
    for r in range(32):
        a(f"v_mov_b32 v{64+r}, 0")
    a("s_waitcnt lgkmcnt(0)")
    a("s_barrier")
    a("; STAMP 1")
    steps = list(range(1, 32, 2))
    FR = [96, 36]
    def loads(si):
        d = steps[si]; f = FR[si % 2]
        oa = 64*(63-d); oa2 = 64*(63-(d+32))
        a(f"ds_read_b64 v[{f}:{f+1}], v10 offset:{oa}")
        a(f"ds_read_b64 v[{f+2}:{f+3}], v10 offset:{oa+8}")
        a(f"ds_read_b128 v[{f+8}:{f+11}], v11 offset:{(31-d)*80}")
        a(f"ds_read_b128 v[{f+12}:{f+15}], v11 offset:{(63-d)*80}")
        a(f"ds_read_b64 v[{f+4}:{f+5}], v10 offset:{oa2}")
        a(f"ds_read_b64 v[{f+6}:{f+7}], v10 offset:{oa2+8}")
    loads(0)
    n = len(steps)
    for si in range(n):
        if si + 1 < n:
            loads(si + 1)
            a("s_waitcnt lgkmcnt(6)")
        else:
            a("s_waitcnt lgkmcnt(0)")
        f = FR[si % 2]
        a(f"v_mfma_f32_32x32x16_bf16 v[{ACC0}:{ACC0+15}], v[{f}:{f+3}], v[{f+8}:{f+11}], v[{ACC0}:{ACC0+15}]")
        a(f"v_mfma_f32_32x32x16_bf16 v[{ACC1}:{ACC1+15}], v[{f}:{f+3}], v[{f+12}:{f+15}], v[{ACC1}:{ACC1+15}]")
        a(f"v_mfma_f32_32x32x16_bf16 v[{ACC1}:{ACC1+15}], v[{f+4}:{f+7}], v[{f+8}:{f+11}], v[{ACC1}:{ACC1+15}]")
    a("; STAMP 2")
    a("s_barrier")
    a("v_lshlrev_b32 v12, 4, v1")
    a("v_add_u32 v12, s42, v12")
    for w in range(4):
        a(f"s_cmp_eq_u32 s4, {w}")
        a(f"s_cbranch_scc0 L_cv_w{w}")
        for dw in range(4):
            if dw == w: continue
            slot = w if w < dw else w - 1
            for q in range(2):
                r = 64 + 4*(2*dw + q)
                a(f"ds_write_b128 v12, v[{r}:{r+3}] offset:{(dw*3 + slot)*2048 + q*1024}")
        for q in range(2):
            for k in range(4):
                a(f"v_mov_b32 v{96+4*q+k}, v{64+4*(2*w+q)+k}")
        a.label(f"L_cv_w{w}")
    a("s_waitcnt lgkmcnt(0)")
    a("s_barrier")
    a("s_mul_i32 s5, s4, 6144")
    a("v_add_u32 v13, s5, v12")
    for sl in range(3):
        for q in range(2):
            a(f"ds_read_b128 v[{64+8*sl+4*q}:{67+8*sl+4*q}], v13 offset:{sl*2048 + q*1024}")
    a("s_waitcnt lgkmcnt(0)")
    for k in range(8):
        a(f"v_add_f32 v{64+k}, v{64+k}, v{72+k}")
        a(f"v_add_f32 v{96+k}, v{96+k}, v{80+k}")
        a(f"v_add_f32 v{96+k}, v{96+k}, v{64+k}")
    a("v_lshlrev_b32 v12, 6, v8")
    a("v_lshl_add_u32 v12, v9, 3, v12")
    a("s_lshr_b32 s5, s4, 1")
    a("s_lshl_b32 s5, s5, 11")
    a("s_and_b32 s6, s4, 1")
    a("s_lshl_b32 s6, s6, 5")
    a("s_add_u32 s5, s5, s6")
    a("s_add_u32 s5, s5, s42")
    a("v_add_u32 v12, s5, v12")
    for q in range(2):
        a(f"v_cvt_pk_bf16_f32 v{104+2*q}, v{96+4*q}, v{97+4*q}")
        a(f"v_cvt_pk_bf16_f32 v{105+2*q}, v{98+4*q}, v{99+4*q}")
        a(f"ds_write_b64 v12, v[{104+2*q}:{105+2*q}] offset:{L_Y + q*16}")
    a("s_waitcnt lgkmcnt(0)")
    a("s_barrier")
    a(f"ds_read_b128 v[96:99], v6 offset:{L_Y}")
    a(f"s_add_u32 s33, s32, {WS_YT}")
    a("s_waitcnt lgkmcnt(0)")
    a("buffer_store_dwordx4 v[96:99], v5, s[28:31], s33 offen sc1")
    a("s_add_u32 s43, s43, 1")
    a("s_cmp_lt_u32 s43, 2")
    a("s_cbranch_scc1 L_cv_loop")
    a("; STAMP 3")
    a("s_waitcnt vmcnt(0)")
    a("s_barrier")
    a("v_mov_b32 v12, 4")
    a("s_lshl_b32 s48, s48, 2")
    a("s_add_u32 s48, s48, 16")
    a("v_cmp_eq_u32 vcc, 0, v127")
    a("s_and_saveexec_b64 s[36:37], vcc")
    a("s_cbranch_execz L_cv_nosig")
    a("buffer_atomic_add v12, off, s[44:47], s48 sc1")
    a.label("L_cv_nosig")
    a("s_mov_b64 exec, -1")
    a("v_mov_b32 v0, v127")
    transp(a, 0, 512, 'y', None, True)
```

```python
from asmlib import *
from partb import srd, WS_PQ, WS_PART, WS_MT, WS_ZF, WS_SIZE, LOG2E

STG = 19456
XOFF = 15360
NST = 4
A1_LDS = STG * NST
KVP = 352
L_CMP = 64 * KVP
PSZ = 4 * 420 * 4

def phi_pair(a, x0, x1, t, dst):
    a(f"v_cvt_pk_bf16_f32 v{t}, v{x0}, v{x1}")
    a(f"v_lshlrev_b32 v{t+1}, 16, v{t}")
    a(f"v_and_b32 v{t+2}, s61, v{t}")
    a(f"v_mul_f32 v{t+3}, s60, v{t+1}")
    a(f"v_mul_f32 v{t+4}, s60, v{t+2}")
    a(f"v_exp_f32 v{t+3}, v{t+3}")
    a(f"v_exp_f32 v{t+4}, v{t+4}")
    a(f"v_add_f32 v{t+5}, 1.0, v{t+1}")
    a(f"v_add_f32 v{t+6}, 1.0, v{t+2}")
    a(f"v_cmp_lt_f32 vcc, 0, v{t+1}")
    a(f"v_cmp_lt_f32 s[44:45], 0, v{t+2}")
    a(f"v_cndmask_b32 v{t+3}, v{t+3}, v{t+5}, vcc")
    a(f"v_cndmask_b32 v{t+4}, v{t+4}, v{t+6}, s[44:45]")
    a(f"v_cvt_pk_bf16_f32 v{t}, v{t+3}, v{t+4}")
    a(f"v_lshlrev_b32 v{t+1}, 16, v{t}")
    a(f"v_and_b32 v{t+2}, s61, v{t}")
    a(f"v_add_f32 v{t+1}, s62, v{t+1}")
    a(f"v_add_f32 v{t+2}, s62, v{t+2}")
    a(f"v_cvt_pk_bf16_f32 v{dst}, v{t+1}, v{t+2}")

EXPF = set()
def a1(a):
    a("s_load_dwordx4 s[8:11], s[0:1], 0")
    a("s_load_dwordx2 s[12:13], s[0:1], 96")
    a("s_and_b32 s5, s2, 1")
    a("s_lshl_b32 s5, s5, 4")
    a("s_lshr_b32 s46, s2, 4")
    a("s_add_u32 s5, s5, s46")
    a("s_and_b32 s6, s2, 6")
    a("s_bfe_u32 s47, s2, 0x10003")
    a("s_add_u32 s6, s6, s47")
    a("v_and_b32 v1, 63, v0")
    a("v_lshrrev_b32 v4, 6, v0")
    a("v_readfirstlane_b32 s4, v4")
    a("; STAMP 0")
    if "prio" in EXPF: a("s_setprio 3")
    a("s_cmp_lt_u32 s4, 4")
    a("s_cbranch_scc1 L_a1_cons")
    a("v_and_b32 v4, 3, v4")
    a("s_and_b32 s4, s4, 3")
    a("s_mul_i32 s7, s6, 160")
    for jj in range(4):
        g = 16; r = 17; c = 18; sg = 19
        a(f"v_lshl_add_u32 v{g}, v4, 6, v1")
        a(f"v_add_u32 v{g}, {256*jj}, v{g}")
        a(f"v_min_u32 v{g}, 959, v{g}")
        a(f"v_mul_u32_u24 v{r}, 2185, v{g}")
        a(f"v_lshrrev_b32 v{r}, 16, v{r}")
        a(f"v_mul_u32_u24 v{c}, 30, v{r}")
        a(f"v_sub_u32 v{c}, v{g}, v{c}")
        a(f"v_mul_u32_u24 v{sg}, 6554, v{c}")
        a(f"v_lshrrev_b32 v{sg}, 16, v{sg}")
        a(f"v_mul_u32_u24 v20, 10, v{sg}")
        a(f"v_sub_u32 v{c}, v{c}, v20")
        a(f"v_mul_u32_u24 v{r}, 3840, v{r}")
        a(f"v_mul_u32_u24 v{sg}, 1280, v{sg}")
        a(f"v_lshl_add_u32 v{r}, v{c}, 4, v{r}")
        a(f"v_add3_u32 v{8+jj}, v{r}, v{sg}, s7")
    a("v_lshrrev_b32 v16, 2, v1")
    a("v_and_b32 v17, 3, v1")
    a("v_bfe_u32 v18, v1, 4, 2")
    a("v_xor_b32 v17, v17, v18")
    a("s_lshl_b32 s7, s5, 6")
    a("v_lshl_add_u32 v16, v4, 4, v16")
    a("v_add_u32 v16, s7, v16")
    a("v_mul_u32_u24 v12, 1280, v16")
    a("v_lshl_add_u32 v12, v17, 4, v12")
    a("s_waitcnt lgkmcnt(0)")
    srd(a, 16, 8, 2048*640*2); srd(a, 20, 10, 640*1920*2)
    a("s_lshl_b32 s28, s4, 10")
    a("s_mov_b32 s29, 0")
    a("s_mov_b32 s30, 0")
    def issue(slot, nw):
        for jj in range(nw):
            a(f"s_add_u32 m0, s28, {slot*STG + jj*4096}")
            a(f"buffer_load_dwordx4 v{8+jj}, s[20:23], s29 offen lds")
        a(f"s_add_u32 m0, s28, {slot*STG + XOFF}")
        a(f"buffer_load_dwordx4 v12, s[16:19], s30 offen lds")
        a("s_add_u32 s29, s29, 122880")
        a("s_add_u32 s30, s30, 64")
    a("v_lshrrev_b32 v23, 3, v1")
    a("v_lshl_add_u32 v23, v4, 3, v23")
    a("s_lshl_b32 s32, s5, 6")
    a("s_lshl_b32 s33, s47, 5")
    a("s_add_u32 s32, s32, s33")
    a("v_add_u32 v23, s32, v23")
    a("v_mul_u32_u24 v23, 1280, v23")
    a("v_and_b32 v24, 7, v1")
    a("v_lshl_add_u32 v23, v24, 4, v23")
    a("v_min_u32 v24, 29, v1")
    a("v_mul_u32_u24 v27, 6554, v24")
    a("v_lshrrev_b32 v27, 16, v27")
    a("v_mul_u32_u24 v28, 10, v27")
    a("v_sub_u32 v26, v24, v28")
    a("v_mul_u32_u24 v27, 1280, v27")
    a("v_lshl_add_u32 v25, v26, 4, v27")
    a("s_lshl_b32 s32, s46, 2")
    a("s_add_u32 s32, s32, s4")
    a("s_mul_i32 s32, s32, 3840")
    a("s_mul_i32 s33, s6, 160")
    a("s_add_u32 s32, s32, s33")
    def pfb(j):
        a(f"s_add_u32 s33, s32, {j*64*3840}")
        a(f"buffer_load_dwordx4 v[32:35], v25, s[20:23], s33 offen")
        a(f"buffer_load_dwordx4 v[36:39], v23, s[16:19], 0 offen offset:{128*j}")
    a("s_cmp_eq_u32 s4, 3")
    a("s_cbranch_scc1 L_a1_prod3")
    for nw in (4, 3):
        if nw == 3: a.label("L_a1_prod3")
        seq = []
        def do_issue(stg):
            issue(stg % 4, nw); seq.extend([('d', stg)]*(nw+1))
        def do_pf(j):
            pfb(j); seq.extend([('p', j)]*2)
        for stg in range(3):
            do_issue(stg)
        PFD = 4
        for j in range(1, PFD+1): do_pf(j)
        nextj = PFD + 1
        for t in range(20):
            last = max(i for i, o in enumerate(seq) if o == ('d', t))
            a(f"s_waitcnt vmcnt({len(seq) - 1 - last})")
            a("s_barrier")
            if t + 3 < 20:
                do_issue(t+3)
            if t % 2 == 0 and nextj < 10:
                do_pf(nextj); nextj += 1
        a("s_endpgm")
    a.label("L_a1_cons")
    a("v_lshrrev_b32 v16, 4, v1")
    a("v_bfe_u32 v17, v1, 2, 2")
    a("v_and_b32 v18, 3, v1")
    a("v_lshl_add_u32 v13, v16, 2, v17")
    a("v_mul_u32_u24 v13, 480, v13")
    a("v_lshl_add_u32 v13, v18, 3, v13")
    a("v_lshl_add_u32 v13, v4, 5, v13")
    a("v_and_b32 v19, 15, v1")
    a("v_lshrrev_b32 v20, 1, v16")
    a("v_lshrrev_b32 v21, 2, v19")
    a("v_xor_b32 v20, v20, v21")
    a("v_xor_b32 v21, 2, v20")
    a("v_and_b32 v22, 1, v16")
    a("v_lshlrev_b32 v22, 3, v22")
    a("v_lshl_add_u32 v22, v19, 6, v22")
    a(f"v_add_u32 v22, {XOFF}, v22")
    a("v_lshl_add_u32 v14, v20, 4, v22")
    a("v_lshl_add_u32 v15, v21, 4, v22")
    a(f"v_add_u32 v2, {2*STG}, v13")
    a(f"v_add_u32 v3, {2*STG}, v14")
    a(f"v_add_u32 v5, {2*STG}, v15")
    a("s_waitcnt lgkmcnt(0)")
    srd(a, 24, 12, WS_SIZE)
    srd(a, 16, 8, 2048*640*2); srd(a, 20, 10, 640*1920*2)
    ACC = 52; F = 20
    for r in range(ACC, ACC+64):
        a(f"v_mov_b32 v{r}, 0")
    a("s_mov_b32 s31, 0")
    a.label("L_a1_loop")
    for stg in range(20 if "unroll" in EXPF else 4):
        if "unroll" in EXPF and stg % 2 == 0 and stg < 16: a(f"; STAMP {3 + stg//2}")
        a("s_barrier")
        stg = stg % 4
        base = (stg & 1) * STG
        vb, va, va2 = (13, 14, 15) if stg < 2 else (2, 3, 5)
        for ct in range(4):
            a(f"ds_read_b64_tr_b16 v[{F+4*ct}:{F+1+4*ct}], v{vb} offset:{base + ct*128}")
            a(f"ds_read_b64_tr_b16 v[{F+2+4*ct}:{F+3+4*ct}], v{vb} offset:{base + ct*128 + 7680}")
            rt = ct
            a(f"ds_read_b64 v[{F+16+4*rt}:{F+17+4*rt}], v{va} offset:{base + rt*1024}")
            a(f"ds_read_b64 v[{F+18+4*rt}:{F+19+4*rt}], v{va2} offset:{base + rt*1024}")
        for lvl in range(4):
            a(f"s_waitcnt lgkmcnt({12 - 4*lvl})")
            pairs = [(lvl, j) for j in range(lvl+1)] + [(j, lvl) for j in range(lvl)]
            for (ct, rt) in pairs:
                acc = ACC + 16*ct + 4*rt
                a(f"v_mfma_f32_16x16x32_bf16 v[{acc}:{acc+3}], v[{F+4*ct}:{F+3+4*ct}], v[{F+16+4*rt}:{F+19+4*rt}], v[{acc}:{acc+3}]")
    if "unroll" not in EXPF:
        a("s_add_u32 s31, s31, 1")
        a("s_cmp_lt_u32 s31, 5")
        a("s_cbranch_scc1 L_a1_loop")
    a("s_barrier")
    a("; STAMP 1")
    a("s_waitcnt vmcnt(0)")
    a(f"s_mov_b32 s60, {LOG2E}")
    a("s_mov_b32 s61, 0xffff0000")
    a("s_mov_b32 s62, 0x358637bd")
    a("v_lshlrev_b32 v5, 3, v1")
    a(f"v_mul_u32_u24 v6, {KVP}, v19")
    a("v_lshl_add_u32 v6, v16, 3, v6")
    for slot in range(4):
        a(f"s_add_u32 s32, s4, {4*slot}")
        a("s_cmp_ge_u32 s32, 10")
        a(f"s_cbranch_scc1 L_a1_ep{slot}_v")
        for rt in range(4):
            acc = ACC + 16*slot + 4*rt
            phi_pair(a, acc, acc+1, 116, 20+8*slot+2*rt)
            phi_pair(a, acc+2, acc+3, 8, 21+8*slot+2*rt)
        a(f"s_branch L_a1_ep{slot}_done")
        a.label(f"L_a1_ep{slot}_v")
        for rt in range(4):
            acc = ACC + 16*slot + 4*rt
            a(f"v_cvt_pk_bf16_f32 v{20+8*slot+2*rt}, v{acc}, v{acc+1}")
            a(f"v_cvt_pk_bf16_f32 v{21+8*slot+2*rt}, v{acc+2}, v{acc+3}")
        a.label(f"L_a1_ep{slot}_done")
    for slot in range(4):
        a(f"s_add_u32 s32, s4, {4*slot}")
        a("s_cmp_ge_u32 s32, 15")
        a(f"s_cbranch_scc1 L_a1_st{slot}_done")
        a("s_cmp_ge_u32 s32, 5")
        a(f"s_cbranch_scc1 L_a1_st{slot}_lds")
        a("s_mul_i32 s35, s6, 5")
        a("s_add_u32 s35, s35, s32")
        a("s_lshl_b32 s35, s35, 9")
        a(f"s_mul_i32 s36, s5, {4*40*512}")
        a("s_add_u32 s35, s35, s36")
        for rt in range(4):
            a(f"s_add_u32 s36, s35, {WS_PQ + rt*40*512}")
            a(f"buffer_store_dwordx2 v[{20+8*slot+2*rt}:{21+8*slot+2*rt}], v5, s[24:27], s36 offen")
        a(f"s_branch L_a1_st{slot}_done")
        a.label(f"L_a1_st{slot}_lds")
        a("s_sub_u32 s35, s32, 5")
        a("s_lshl_b32 s35, s35, 5")
        a("v_add_u32 v7, s35, v6")
        for rt in range(4):
            a(f"ds_write_b64 v7, v[{20+8*slot+2*rt}:{21+8*slot+2*rt}] offset:{rt*16*KVP}")
        a.label(f"L_a1_st{slot}_done")
    a("s_waitcnt lgkmcnt(0)")
    a("s_barrier")
    a("; STAMP 2")
    a("v_lshl_add_u32 v13, v16, 2, v17")
    a(f"v_mul_u32_u24 v13, {KVP}, v13")
    a("v_lshl_add_u32 v13, v18, 3, v13")
    a("s_mul_i32 s35, s4, 40")
    a("v_add_u32 v13, s35, v13")
    for ks in range(2):
        for tl in range(2):
            a(f"ds_read_b64_tr_b16 v[{32+8*ks+4*tl}:{33+8*ks+4*tl}], v13 offset:{ks*32*KVP + tl*32}")
            a(f"ds_read_b64_tr_b16 v[{34+8*ks+4*tl}:{35+8*ks+4*tl}], v13 offset:{(ks*32+16)*KVP + tl*32}")
            a(f"ds_read_b64_tr_b16 v[{48+8*ks+4*tl}:{49+8*ks+4*tl}], v13 offset:{ks*32*KVP + 160 + tl*32}")
            a(f"ds_read_b64_tr_b16 v[{50+8*ks+4*tl}:{51+8*ks+4*tl}], v13 offset:{(ks*32+16)*KVP + 160 + tl*32}")
    a("v_cmp_eq_u32 vcc, 4, v19")
    a("v_mov_b32 v24, 0x3f803f80")
    a("s_waitcnt lgkmcnt(0)")
    for ks in range(2):
        for k in range(4):
            a(f"v_cndmask_b32 v{52+8*ks+k}, v{52+8*ks+k}, v24, vcc")
    for dtl in range(2):
        for etl in range(2):
            acc = 64 + 8*dtl + 4*etl
            a(f"v_mfma_f32_16x16x32_bf16 v[{acc}:{acc+3}], v[{32+4*dtl}:{35+4*dtl}], v[{48+4*etl}:{51+4*etl}], 0")
            a(f"v_mfma_f32_16x16x32_bf16 v[{acc}:{acc+3}], v[{40+4*dtl}:{43+4*dtl}], v[{56+4*etl}:{59+4*etl}], v[{acc}:{acc+3}]")
    a("v_mul_u32_u24 v24, 84, v16")
    a("v_add_u32 v24, v24, v19")
    a("s_mul_i32 s35, s4, 420")
    a("v_add_u32 v24, s35, v24")
    a("v_lshlrev_b32 v24, 2, v24")
    a(f"v_add_u32 v24, {L_CMP}, v24")
    a("v_cmp_gt_u32 s[36:37], 5, v19")
    a("v_cmp_gt_u32 s[38:39], 16, v1")
    a("s_and_b64 s[40:41], s[36:37], s[38:39]")
    for dtl in range(2):
        for etl in range(2):
            acc = 64 + 8*dtl + 4*etl
            m = {(0,0): None, (0,1): "s[36:37]", (1,0): "s[38:39]", (1,1): "s[40:41]"}[(dtl, etl)]
            if m: a(f"s_mov_b64 exec, {m}")
            for r in range(4):
                a(f"ds_write_b32 v24, v{acc+r} offset:{((16*dtl + r)*21 + 16*etl)*4}")
            if m: a("s_mov_b64 exec, -1")
    a("s_waitcnt lgkmcnt(0)")
    a("s_barrier")
    a("v_lshlrev_b32 v24, 4, v0")
    a("s_lshl_b32 s35, s5, 3")
    a("s_add_u32 s35, s35, s6")
    a(f"s_mul_i32 s35, s35, {PSZ}")
    a(f"s_add_u32 s35, s35, {WS_PART}")
    a(f"ds_read_b128 v[32:35], v24 offset:{L_CMP}")
    a(f"ds_read_b128 v[36:39], v24 offset:{L_CMP + 4096}")
    a("s_waitcnt lgkmcnt(0)")
    a("buffer_store_dwordx4 v[32:35], v24, s[24:27], s35 offen")
    a(f"v_cmp_gt_u32 vcc, {(PSZ - 4096)//16}, v0")
    a("s_and_saveexec_b64 s[36:37], vcc")
    a("s_add_u32 s35, s35, 4096")
    a("buffer_store_dwordx4 v[36:39], v24, s[24:27], s35 offen")
    a("s_endpgm")

WOP = 1312
L_KVT = 32 * WOP
A2R_LDS = L_KVT + 32 * 80

WOA = [8,9,10,11,12,13,14,15,60,61]
def a2r(a):
    a("s_load_dwordx2 s[8:9], s[0:1], 16")
    a("s_load_dwordx2 s[12:13], s[0:1], 96")
    a("v_and_b32 v1, 63, v0")
    a("v_lshrrev_b32 v4, 6, v0")
    a("v_readfirstlane_b32 s4, v4")
    a("s_lshr_b32 s5, s2, 2")
    a("s_and_b32 s6, s2, 3")
    a("; STAMP 0")
    a("s_waitcnt lgkmcnt(0)")
    srd(a, 16, 8, 640*640*2); srd(a, 24, 12, WS_SIZE)
    a(f"s_mul_i32 s29, s5, {PSZ}")
    a("s_mul_i32 s30, s6, 1680")
    a("s_add_u32 s29, s29, s30")
    a(f"s_add_u32 s29, s29, {WS_PART}")
    a("v_lshlrev_b32 v25, 2, v0")
    a("v_add_u32 v26, 1024, v25")
    a("v_min_u32 v26, 1676, v26")
    a("s_mov_b32 s34, s29")
    for rb in range(32):
        a(f"buffer_load_dword v{28+rb}, v25, s[24:27], s34 offen")
        a(f"buffer_load_dword v{112+rb}, v26, s[24:27], s34 offen")
        a(f"s_add_u32 s34, s34, {8*PSZ}")
    a("s_mul_i32 s28, s2, 25600")
    for i in range(10):
        a(f"v_add_u32 v16, {256*i}, v0")
        a("v_mul_u32_u24 v17, 52429, v16")
        a("v_lshrrev_b32 v17, 22, v17")
        a("v_mul_u32_u24 v18, 80, v17")
        a("v_sub_u32 v18, v16, v18")
        a("v_mul_u32_u24 v19, 1280, v17")
        a("v_lshl_add_u32 v19, v18, 4, v19")
        a("v_cmp_gt_u32 vcc, 20, v17")
        a("v_cndmask_b32 v19, -1, v19, vcc")
        a(f"v_mul_u32_u24 v{WOA[i]}, {WOP}, v17")
        a(f"v_lshl_add_u32 v{WOA[i]}, v18, 4, v{WOA[i]}")
        a(f"buffer_load_dwordx4 v[{64+4*i}:{67+4*i}], v19, s[16:19], s28 offen")
    a("v_mov_b32 v20, 0"); a("v_mov_b32 v21, 0"); a("v_mov_b32 v22, 0"); a("v_mov_b32 v23, 0")
    a("v_lshlrev_b32 v24, 4, v0")
    a("v_cmp_gt_u32 vcc, 160, v0")
    a("s_and_saveexec_b64 s[30:31], vcc")
    a(f"ds_write_b128 v24, v[20:23] offset:{L_KVT}")
    a("s_mov_b64 exec, s[30:31]")
    a("s_waitcnt lgkmcnt(0)")
    a("s_barrier")
    a("; STAMP 1")
    a("s_waitcnt vmcnt(10)")
    a("; STAMP 2")
    for rnd in range(2):
        b = 28 if rnd == 0 else 112
        for st in (16, 8, 4, 2, 1):
            for k in range(st):
                a(f"v_add_f32 v{b+k}, v{b+k}, v{b+k+st}")
        if rnd == 1:
            a("v_cmp_gt_u32 vcc, 164, v0")
            a("s_and_saveexec_b64 s[30:31], vcc")
        a(f"v_add_u32 v16, {256*rnd}, v0")
        a("v_mul_u32_u24 v17, 49933, v16")
        a("v_lshrrev_b32 v17, 20, v17")
        a("v_mul_u32_u24 v18, 21, v17")
        a("v_sub_u32 v18, v16, v18")
        a("v_cmp_eq_u32 s[32:33], 20, v18")
        a(f"v_cvt_pk_bf16_f32 v27, v{b}, v{b}")
        a("v_mul_u32_u24 v26, 80, v17")
        a("v_lshl_add_u32 v26, v18, 1, v26")
        a("s_mov_b64 s[36:37], exec")
        a("s_andn2_b64 exec, exec, s[32:33]")
        a(f"ds_write_b16 v26, v27 offset:{L_KVT}")
        a("s_and_b64 exec, s[36:37], s[32:33]")
        a("s_mul_i32 s35, s2, 40")
        a(f"s_add_u32 s35, s35, {WS_ZF}")
        a("v_lshlrev_b32 v26, 1, v17")
        a("buffer_store_short v27, v26, s[24:27], s35 offen")
        a("s_mov_b64 exec, -1")
    a("s_waitcnt vmcnt(0)")
    for i in range(10):
        a(f"ds_write_b128 v{WOA[i]}, v[{64+4*i}:{67+4*i}]")
    a("s_waitcnt lgkmcnt(0)")
    a("s_barrier")
    a("; STAMP 3")
    a("v_lshrrev_b32 v16, 4, v1")
    a("v_bfe_u32 v17, v1, 2, 2")
    a("v_and_b32 v18, 3, v1")
    a("v_and_b32 v19, 15, v1")
    a("v_mul_u32_u24 v20, 80, v19")
    a("v_lshl_add_u32 v20, v16, 3, v20")
    for dtile in range(2):
        a(f"ds_read_b64 v[{32+4*dtile}:{33+4*dtile}], v20 offset:{L_KVT + dtile*16*80}")
        a(f"ds_read_b64 v[{34+4*dtile}:{35+4*dtile}], v20 offset:{L_KVT + dtile*16*80 + 32}")
    a("v_lshl_add_u32 v21, v16, 2, v17")
    a(f"v_mul_u32_u24 v21, {WOP}, v21")
    a("v_lshl_add_u32 v21, v18, 3, v21")
    a("s_mul_i32 s35, s4, 320")
    a("v_add_u32 v21, s35, v21")
    a("s_mul_i32 s35, s2, 5")
    for dtile in range(2):
        d = 22 + dtile
        a(f"v_add_u32 v24, s35, v16")
        if dtile: a("v_add_u32 v24, 4, v24")
        a("v_lshrrev_b32 v25, 3, v24")
        a("v_and_b32 v26, 3, v24")
        a("v_bfe_u32 v27, v24, 2, 1")
        a(f"v_lshlrev_b32 v{d}, 10, v25")
        a(f"v_lshl_add_u32 v{d}, v26, 8, v{d}")
        a(f"v_lshl_add_u32 v{d}, v19, 4, v{d}")
        a(f"v_lshl_add_u32 v{d}, v27, 3, v{d}")
    a(f"s_mul_i32 s36, s4, {10*20*1024}")
    a(f"s_add_u32 s36, s36, {WS_MT}")
    a("v_cmp_gt_u32 s[38:39], 16, v1")
    for ct in range(10):
        a(f"ds_read_b64_tr_b16 v[{40+4*ct}:{41+4*ct}], v21 offset:{ct*32}")
        a(f"ds_read_b64_tr_b16 v[{42+4*ct}:{43+4*ct}], v21 offset:{ct*32 + 16*WOP}")
    for ct in range(10):
        a(f"s_waitcnt lgkmcnt({min(15, 18 - 2*ct)})")
        r0 = 80 + 8*(ct & 1)
        a(f"v_mfma_f32_16x16x32_bf16 v[{r0}:{r0+3}], v[32:35], v[{40+4*ct}:{43+4*ct}], 0")
        a(f"v_mfma_f32_16x16x32_bf16 v[{r0+4}:{r0+7}], v[36:39], v[{40+4*ct}:{43+4*ct}], 0")
        p = 96 + 4*(ct & 1)
        a(f"v_cvt_pk_bf16_f32 v{p}, v{r0}, v{r0+1}")
        a(f"v_cvt_pk_bf16_f32 v{p+1}, v{r0+2}, v{r0+3}")
        a(f"v_cvt_pk_bf16_f32 v{p+2}, v{r0+4}, v{r0+5}")
        a(f"v_cvt_pk_bf16_f32 v{p+3}, v{r0+6}, v{r0+7}")
        a(f"s_add_u32 s37, s36, {ct*20*1024}")
        a(f"buffer_store_dwordx2 v[{p}:{p+1}], v22, s[24:27], s37 offen")
        a("s_mov_b64 exec, s[38:39]")
        a(f"buffer_store_dwordx2 v[{p+2}:{p+3}], v23, s[24:27], s37 offen")
        a("s_mov_b64 exec, -1")
    a("s_endpgm")

L_Z = 4 * 40 * 512
A3_LDS = L_Z + 1280
OP = 272

def a3(a):
    a("s_load_dwordx2 s[8:9], s[0:1], 80")
    a("s_load_dwordx2 s[12:13], s[0:1], 96")
    a("v_and_b32 v1, 63, v0")
    a("v_lshrrev_b32 v4, 6, v0")
    a("v_readfirstlane_b32 s4, v4")
    a("s_lshr_b32 s7, s2, 3")
    a("s_mul_i32 s5, s7, 52429")
    a("s_lshr_b32 s5, s5, 18")
    a("s_mul_i32 s6, s5, 5")
    a("s_sub_u32 s6, s7, s6")
    a("s_and_b32 s7, s2, 7")
    a("s_lshl_b32 s7, s7, 2")
    a("s_add_u32 s5, s5, s7")
    a("; STAMP 0")
    a("v_lshlrev_b32 v5, 4, v1")
    a("s_waitcnt lgkmcnt(0)")
    srd(a, 16, 8, 2048*1280*2); srd(a, 24, 12, WS_SIZE)
    a("s_mul_i32 s30, s4, 160")
    a(f"s_add_u32 m0, s30, {L_Z}")
    a(f"s_add_u32 s30, s30, {WS_ZF}")
    a("v_cmp_gt_u32 vcc, 10, v1")
    a("s_and_saveexec_b64 s[32:33], vcc")
    a("buffer_load_dwordx4 v5, s[24:27], s30 offen lds")
    a("s_mov_b64 exec, s[32:33]")
    a(f"s_mul_i32 s28, s5, {4*40*512}")
    a("s_mul_i32 s29, s4, 10240")
    a("s_add_u32 s28, s28, s29")
    for i in range(10):
        a(f"s_add_u32 m0, s29, {i*1024}")
        a(f"s_add_u32 s30, s28, {WS_PQ + i*1024}")
        a("buffer_load_dwordx4 v5, s[24:27], s30 offen lds")
    a("s_lshl_b32 s29, s6, 3")
    a("s_add_u32 s29, s29, s4")
    a("s_mul_i32 s34, s29, 20480")
    a(f"s_add_u32 s34, s34, {WS_MT}")
    MT = 40
    def mtload(t):
        if t % 4 == 0 and t: a("s_add_u32 s34, s34, 4096")
        a(f"buffer_load_dwordx4 v[{MT+4*t}:{MT+4*t+3}], v5, s[24:27], s34 offen offset:{(t%4)*1024}")
    a("; STAMP 1")
    a("s_mov_b32 s61, 0xffff0000")
    a("s_mov_b32 s62, 0x358637bd")
    a("v_lshrrev_b32 v6, 4, v1")
    a("v_mul_u32_u24 v6, 20480, v6")
    a("v_and_b32 v7, 15, v1")
    a("v_lshl_add_u32 v6, v7, 3, v6")
    a("s_mul_i32 s30, s4, 2560")
    a("v_add_u32 v6, s30, v6")
    a("s_mul_i32 s30, s4, 160")
    a(f"s_add_u32 s30, s30, {L_Z}")
    a("v_mov_b32 v7, s30")
    a("s_waitcnt vmcnt(0)")
    a("s_barrier")
    a("; STAMP 2")
    a("; STAMP 3")
    PB, ZB = 120, 140
    def rd(hd):
        P = PB + 10*(hd & 1); Z = ZB + 10*(hd & 1)
        for i in range(5):
            qd = 5*hd + i
            a(f"ds_read_b64 v[{P+2*i}:{P+2*i+1}], v6 offset:{(qd>>2)*512 + (qd&3)*128}")
            a(f"ds_read_b64 v[{Z+2*i}:{Z+2*i+1}], v7 offset:{hd*40 + 8*i}")
    rd(0)
    for hd in range(4):
        P = PB + 10*(hd & 1); Z = ZB + 10*(hd & 1)
        if hd + 1 < 4:
            rd(hd+1)
            a(f"s_waitcnt lgkmcnt({10 if hd == 0 else 15})")
        else:
            a("s_waitcnt lgkmcnt(0)")
        a(f"v_dot2_f32_bf16 v32, v{P}, v{Z}, 0")
        a(f"v_dot2_f32_bf16 v33, v{P+1}, v{Z+1}, 0")
        for i in range(2, 10, 2):
            a(f"v_dot2_f32_bf16 v32, v{P+i}, v{Z+i}, v32")
            a(f"v_dot2_f32_bf16 v33, v{P+i+1}, v{Z+i+1}, v33")
        mtload(5*hd)
        for i in range(10):
            if i == 5: mtload(5*hd+1)
            a(f"v_lshlrev_b32 v{8+2*i}, 16, v{P+i}")
            a(f"v_and_b32 v{9+2*i}, s61, v{P+i}")
        a("v_add_f32 v32, v32, v33")
        a("v_cvt_pk_bf16_f32 v32, v32, v32")
        a("v_lshlrev_b32 v32, 16, v32")
        a("v_add_f32 v32, s62, v32")
        a("v_cvt_pk_bf16_f32 v32, v32, v32")
        a("v_lshlrev_b32 v32, 16, v32")
        a("v_rcp_f32 v32, v32")
        mtload(5*hd+2)
        for i in range(10):
            if i in (4, 9): mtload(5*hd+3+(i==9))
            a(f"v_mul_f32 v{8+2*i}, v{8+2*i}, v32")
            a(f"v_mul_f32 v{9+2*i}, v{9+2*i}, v32")
            a(f"v_cvt_pk_bf16_f32 v{P+i}, v{8+2*i}, v{9+2*i}")
        for i in range(5):
            qd = 5*hd + i
            a(f"ds_write_b64 v6, v[{P+2*i}:{P+2*i+1}] offset:{(qd>>2)*512 + (qd&3)*128}")
    a("s_waitcnt lgkmcnt(0)")
    a("s_barrier")
    a("; STAMP 4")
    a("v_lshlrev_b32 v6, 3, v1")
    a("v_add_u32 v7, 40960, v6")
    for r in range(8, 24):
        a(f"v_mov_b32 v{r}, 0")
    AF = [120, 136, 152]
    def lda(t):
        f = AF[t % 3]
        for rt in range(4):
            va = 6 if rt < 2 else 7
            a(f"ds_read_b64 v[{f+4*rt}:{f+4*rt+1}], v{va} offset:{(rt&1)*20480 + t*1024}")
            a(f"ds_read_b64 v[{f+4*rt+2}:{f+4*rt+3}], v{va} offset:{(rt&1)*20480 + t*1024 + 512}")
    lda(0)
    for t in range(20):
        if t + 1 < 20:
            lda(t+1)
        a(f"s_waitcnt vmcnt({19-t}) lgkmcnt({8 if t + 1 < 20 else 0})")
        f = AF[t % 3]
        for rt in range(4):
            acc = 8 + 4*rt
            a(f"v_mfma_f32_16x16x32_bf16 v[{acc}:{acc+3}], v[{MT+4*t}:{MT+4*t+3}], v[{f+4*rt}:{f+4*rt+3}], v[{acc}:{acc+3}]")
    a("; STAMP 5")
    a("s_barrier")
    a("v_lshrrev_b32 v40, 4, v1")
    a("v_and_b32 v41, 15, v1")
    a(f"v_mul_u32_u24 v42, {OP}, v41")
    a("v_lshl_add_u32 v42, v40, 3, v42")
    a("s_lshl_b32 s30, s4, 5")
    a("v_add_u32 v42, s30, v42")
    for rt in range(4):
        acc = 8 + 4*rt
        a(f"v_cvt_pk_bf16_f32 v{acc}, v{acc}, v{acc+1}")
        a(f"v_cvt_pk_bf16_f32 v{acc+1}, v{acc+2}, v{acc+3}")
        a(f"ds_write_b64 v42, v[{acc}:{acc+1}] offset:{rt*16*OP}")
    a("s_waitcnt lgkmcnt(0)")
    a("s_barrier")
    a("v_lshrrev_b32 v40, 4, v0")
    a("v_and_b32 v41, 15, v0")
    a(f"v_mul_u32_u24 v42, {OP}, v40")
    a("v_lshl_add_u32 v42, v41, 4, v42")
    a("ds_read_b128 v[8:11], v42")
    a(f"ds_read_b128 v[12:15], v42 offset:{32*OP}")
    a("s_lshl_b32 s7, s5, 6")
    a("v_add_u32 v40, s7, v40")
    a("v_mul_u32_u24 v40, 2560, v40")
    a("v_lshl_add_u32 v40, v41, 4, v40")
    a("s_lshl_b32 s30, s6, 8")
    a(f"s_add_u32 s31, s30, {32*2560}")
    a("s_waitcnt lgkmcnt(0)")
    a("buffer_store_dwordx4 v[8:11], v40, s[16:19], s30 offen")
    a("buffer_store_dwordx4 v[12:15], v40, s[16:19], s31 offen")
    a("s_endpgm")
```

```python
from asmlib import *

DEBUG_DUMP = False
WS_PQ = 0
WS_PART = 0x280000
PSZ = 18 * 1024
WS_KX = 0x700000
KXP = 4416
WS_MT = 0xA00000
WS_ZF = 0xB00000
WS_SIZE = 0x1000000
WS_SIZE2 = 0x2000000
LOG2E = "0x3fb8aa3b"
NLOG2E = "0xbfb8aa3b"

def srd(a, d, base, nbytes):
    a(f"s_mov_b32 s{d}, s{base}")
    a(f"s_mov_b32 s{d+1}, s{base+1}")
    a(f"s_mov_b32 s{d+2}, {nbytes}")
    a(f"s_mov_b32 s{d+3}, 0x00020000")

def emit_p0(a, vi, d0, d1, d2, t0, t1):
    a(f"v_and_b32 v{d0}, 7, v{vi}")
    a(f"v_and_b32 v{t0}, 8, v{vi}")
    a(f"v_lshlrev_b32 v{t0}, 4, v{t0}")
    a(f"v_or_b32 v{d0}, v{d0}, v{t0}")
    a(f"v_and_b32 v{t0}, 4, v{vi}")
    a(f"v_lshlrev_b32 v{t0}, 5, v{t0}")
    a(f"v_and_b32 v{t1}, 3, v{vi}")
    a(f"v_lshlrev_b32 v{t1}, 1, v{t1}")
    a(f"v_add3_u32 v{d1}, v{t0}, v{t1}, 0")
    a(f"v_add_u32 v{d1}, 0x100, v{d1}")
    a(f"v_and_b32 v{t0}, 6, v{vi}")
    a(f"v_lshlrev_b32 v{t0}, 6, v{t0}")
    a(f"v_and_b32 v{t1}, 1, v{vi}")
    a(f"v_lshlrev_b32 v{t1}, 2, v{t1}")
    a(f"v_add_u32 v{t0}, v{t0}, v{t1}")
    a(f"v_add_u32 v{t0}, 0x200, v{t0}")
    a(f"v_cmp_gt_u32 vcc, 8, v{vi}")
    a(f"v_cndmask_b32 v{d1}, v{t0}, v{d1}, vcc")
    a(f"v_lshlrev_b32 v{t0}, 7, v{vi}")
    a(f"v_add_u32 v{t0}, 0x400, v{t0}")
    a(f"v_mov_b32 v{t1}, 0x800")
    a(f"v_cndmask_b32 v{d2}, v{t1}, v{t0}, vcc")

KG_LDS = 3 * 12288
ATC = ['0x3e22f982', '0xbd594a64', '0x3d022dde', '0xbcb6bf74', '0x3c8127ca', '0xbc1ace2a', '0x3b7c1000', '0xba42c9cd']
def kgen(a, wg_base):
    a(f"s_sub_u32 s3, s2, {wg_base}")
    a("s_load_dwordx8 s[8:15], s[0:1], 32")
    a("s_load_dwordx2 s[16:17], s[0:1], 64")
    a("s_load_dwordx2 s[18:19], s[0:1], 96")
    a("v_lshrrev_b32 v4, 6, v0")
    a("v_readfirstlane_b32 s4, v4")
    a("v_and_b32 v1, 63, v0")
    a("v_and_b32 v2, 15, v0")
    a("v_bfe_u32 v3, v0, 4, 2")
    a("s_lshr_b32 s5, s4, 1")
    a("s_and_b32 s4, s4, 1")
    a("s_lshl_b32 s6, s5, 8")
    a("s_add_u32 s3, s3, s6")
    a("s_cmp_ge_u32 s3, 640")
    a("s_cbranch_scc1 L_kgen_exit")
    a("s_mul_i32 s5, s5, 12288")
    a("s_mul_i32 s44, s3, 384")
    a("s_mul_i32 s6, s4, 192")
    a("s_add_u32 s44, s44, s6")
    a("s_lshl_b32 s45, s3, 1")
    a("s_and_b32 s45, s45, 0xfffffffc")
    a("v_lshlrev_b32 v5, 2, v1")
    a("v_min_u32 v5, 188, v5")
    a("s_waitcnt lgkmcnt(0)")
    srd(a, 20, 8, 640*192*2); srd(a, 24, 10, 640*192*2); srd(a, 28, 12, 640*192*2); srd(a, 32, 14, 640*192*2)
    srd(a, 40, 18, WS_SIZE)
    for k, sr in enumerate((20, 24, 28, 32)):
        a(f"buffer_load_dword v{16+k}, v5, s[{sr}:{sr+3}], s44 offen")
    a("s_load_dword s51, s[16:17], s45")
    a("; KSTAMP 0")
    emit_p0(a, 2, 35, 36, 37, 52, 53)
    a("v_lshlrev_b32 v34, 3, v2")
    for r in (34, 35, 36, 37):
        a(f"v_cvt_f32_u32 v{r}, v{r}")
    for r in range(40, 52):
        a(f"v_mov_b32 v{r}, 0")
    a("v_mov_b32 v52, 0")
    a("v_mov_b32 v53, s5")
    a("ds_write_b16 v53, v52 offset:4400")
    a(f"s_mov_b32 s46, {LOG2E}")
    a(f"s_mov_b32 s47, {NLOG2E}")
    a("s_mov_b32 s48, 0xffff0000")
    a("s_mul_i32 s6, s4, 1536")
    a("s_add_u32 s6, s6, s5")
    a("v_lshlrev_b32 v13, 5, v1")
    a("v_add_u32 v13, s6, v13")
    a("v_mul_u32_u24 v12, 384, v3")
    a("v_add_u32 v12, s6, v12")
    a("s_waitcnt lgkmcnt(0)")
    a("s_and_b32 s7, s3, 1")
    a("s_lshl_b32 s7, s7, 4")
    a("s_lshr_b32 s51, s51, s7")
    a("s_lshl_b32 s51, s51, 16")
    a("v_mov_b32 v32, s51")
    a("v_mul_f32 v32, s46, v32")
    a("v_exp_f32 v32, v32")
    a("v_cvt_pk_bf16_f32 v32, v32, v32")
    a("v_lshlrev_b32 v32, 16, v32")
    a("v_add_f32 v33, v32, v32")
    a("s_waitcnt vmcnt(0)")
    a("; KSTAMP 1")
    seqs = []
    for q in range(2):
        B = 56 + 16*q
        l = []
        for k in range(4):
            l.append(f"v_lshlrev_b32 v{B+k}, 16, v{16+k}" if q == 0 else f"v_and_b32 v{B+k}, s48, v{16+k}")
        l += [f"v_mul_f32 v{B}, s46, v{B}", f"v_exp_f32 v{B}, v{B}", f"v_mul_f32 v{B+1}, v{B+1}, v32",
              f"v_mul_f32 v{B+2}, v{B+2}, v33", f"v_cvt_pk_bf16_f32 v{B}, v{B}, v{B}", f"v_mul_f32 v{B+3}, v{B+3}, v33",
              f"v_lshlrev_b32 v{B}, 16, v{B}", f"v_mul_f32 v{B+1}, 0.15915494, v{B+1}", f"v_mul_f32 v{B}, v{B}, v32",
              f"v_mul_f32 v{B}, s47, v{B}",
              f"v_mul_f32 v{B+4}, v{B+2}, v{B+2}", f"v_fma_f32 v{B+4}, v{B+3}, v{B+3}, v{B+4}", f"v_log_f32 v{B+4}, v{B+4}",
              f"v_max_f32 v{B+6}, abs(v{B+2}), abs(v{B+3})", f"v_min_f32 v{B+7}, abs(v{B+2}), abs(v{B+3})",
              f"v_max_f32 v{B+6}, 0x00800000, v{B+6}", f"v_rcp_f32 v{B+6}, v{B+6}", f"v_mul_f32 v{B+4}, 0.5, v{B+4}",
              f"v_mul_f32 v{B+7}, v{B+7}, v{B+6}", f"v_mul_f32 v{B+6}, v{B+7}, v{B+7}", f"v_mov_b32 v{B+5}, {ATC[7]}"]
        for c in range(6, -1, -1):
            l.append(f"v_fma_f32 v{B+5}, v{B+5}, v{B+6}, s{52+c}")
        cc = f"s[{60+2*q}:{61+2*q}]"
        l += [f"v_mul_f32 v{B+5}, v{B+5}, v{B+7}", f"v_sub_f32 v{B+6}, 0.25, v{B+5}",
              f"v_cmp_gt_f32 {cc}, abs(v{B+3}), abs(v{B+2})", f"v_cndmask_b32 v{B+5}, v{B+5}, v{B+6}, {cc}",
              f"v_sub_f32 v{B+6}, 0.5, v{B+5}", f"v_cmp_gt_f32 {cc}, 0, v{B+2}", f"v_cndmask_b32 v{B+5}, v{B+5}, v{B+6}, {cc}",
              f"v_cmp_gt_f32 {cc}, 0, v{B+3}", f"v_cndmask_b32 v{B+3}, v{B+5}, -v{B+5}, {cc}", f"v_mov_b32 v{B+2}, v{B+4}"]
        seqs.append(l)
    for c in range(7):
        a(f"s_mov_b32 s{52+c}, {ATC[c]}")
    for x, y in zip(*seqs):
        a(x); a(y)
    a("v_cmp_gt_u32 vcc, 48, v1")
    a("s_and_saveexec_b64 s[22:23], vcc")
    a("ds_write_b128 v13, v[56:59] offset:4608")
    a("ds_write_b128 v13, v[72:75] offset:4624")
    a("s_mov_b64 exec, s[22:23]")
    a("; KSTAMP 2")
    def prd(b):
        for n in range(4):
            a(f"ds_read_b128 v[{96+16*(b&1)+4*n}:{99+16*(b&1)+4*n}], v12 offset:{4608 + (4*b+n)*16}")
    prd(0)
    for b in range(6):
        if b + 1 < 6:
            prd(b+1); a("s_waitcnt lgkmcnt(4)")
        else:
            a("s_waitcnt lgkmcnt(0)")
        for n2 in range(0, 4, 2):
            seq = []
            for q in range(2):
                m = n2 + q; P = 96 + 16*(b&1) + 4*m; T = 52 + 16*q
                l = []
                l.append(f"v_mul_f32 v{T}, v{P}, v34")
                l.append(f"v_mul_f32 v{T+1}, v{P+1}, v34")
                for g in range(3):
                    l.append(f"v_fma_f32 v{T+4+4*g}, v{P}, v{35+g}, v{P+2}")
                    l.append(f"v_fma_f32 v{T+5+4*g}, v{P+1}, v{35+g}, v{P+3}")
                for k in range(4):
                    l.append(f"v_exp_f32 v{T+4*k}, v{T+4*k}")
                    l.append(f"v_fract_f32 v{T+4*k+1}, v{T+4*k+1}")
                for k in range(4):
                    l.append(f"v_cos_f32 v{T+4*k+2}, v{T+4*k+1}")
                    l.append(f"v_sin_f32 v{T+4*k+3}, v{T+4*k+1}")
                for k in range(4):
                    l.append(f"v_mul_f32 v{T+4*k+2}, v{T+4*k}, v{T+4*k+2}")
                    l.append(f"v_mul_f32 v{T+4*k+3}, v{T+4*k}, v{T+4*k+3}")
                l.append(f"v_cvt_pk_bf16_f32 v{28+m}, v{T+2}, -v{T+3}")
                for g in range(3):
                    l.append(f"v_cvt_pk_bf16_f32 v{16+4*g+m}, v{T+6+4*g}, v{T+7+4*g}")
                seq.append(l)
            for x, y in zip(*seq):
                a(x); a(y)
        for g in range(3):
            a(f"v_mfma_f32_16x16x32_bf16 v[{40+4*g}:{43+4*g}], v[{16+4*g}:{19+4*g}], v[28:31], v[{40+4*g}:{43+4*g}]")
    a("; KSTAMP 3")
    a("v_lshlrev_b32 v52, 4, v1")
    a("v_add_u32 v52, s5, v52")
    a("s_cmp_eq_u32 s4, 0")
    a("s_cbranch_scc1 L_kgen_h0a")
    for g in range(3):
        a(f"ds_write_b128 v52, v[{40+4*g}:{43+4*g}] offset:{8192 + g*1024}")
    a.label("L_kgen_h0a")
    a("s_waitcnt lgkmcnt(0)")
    a("s_barrier")
    a("s_cmp_eq_u32 s4, 1")
    a("s_cbranch_scc1 L_kgen_h1b")
    for g in range(3):
        a(f"ds_read_b128 v[{56+4*g}:{59+4*g}], v52 offset:{8192 + g*1024}")
    a("v_lshlrev_b32 v54, 3, v2")
    for r in range(4):
        a(f"v_lshl_add_u32 v53, v3, 2, {r}")
        emit_p0(a, 53, 72+r, 76+r, 80+r, 84, 85)
        for g in range(3):
            a(f"v_add_lshl_u32 v{72+4*g+r}, v{72+4*g+r}, v54, 1")
            a(f"v_add_u32 v{72+4*g+r}, s5, v{72+4*g+r}")
    a("s_waitcnt lgkmcnt(0)")
    for k in range(12):
        a(f"v_add_f32 v{40+k}, v{40+k}, v{56+k}")
        a(f"v_cvt_pk_bf16_f32 v{40+k}, v{40+k}, v{40+k}")
        a(f"ds_write_b16 v{72+k}, v{40+k}")
    a.label("L_kgen_h1b")
    a("s_waitcnt lgkmcnt(0)")
    a("s_barrier")
    a("; KSTAMP 4")
    a(f"s_mul_i32 s24, s3, {KXP}")
    a(f"s_add_u32 s24, s24, {WS_KX}")
    a("s_movk_i32 s25, 0x800")
    a("v_mov_b32 v86, 4400")
    a("v_and_b32 v6, 127, v0")
    for it in range(3):
        if it == 2:
            a("v_cmp_gt_u32 vcc, 20, v6")
            a("s_and_saveexec_b64 s[28:29], vcc")
            a("s_cbranch_execz L_kgen_exit")
        a(f"v_add_u32 v52, {128*it}, v6")
        a("v_lshlrev_b32 v53, 3, v52")
        for i in range(8):
            a(f"v_add_u32 v{54+i}, {i}, v53")
            a(f"v_sub_u32 v{62+i}, s25, v{54+i}")
            a(f"v_cvt_f32_i32 v{62+i}, v{62+i}")
        for i in range(0, 8, 2):
            a(f"v_cvt_pk_bf16_f32 v70, v{62+i}, v{63+i}")
            a(f"v_lshlrev_b32 v{62+i}, 16, v70")
            a(f"v_and_b32 v{63+i}, s48, v70")
        for i in range(8):
            a(f"v_cvt_u32_f32 v{62+i}, v{62+i}")
            a(f"v_lshlrev_b32 v{62+i}, 1, v{62+i}")
            a(f"v_add_u32 v{54+i}, -1, v{54+i}")
            a(f"v_cmp_gt_u32 vcc, s25, v{54+i}")
            a(f"v_cndmask_b32 v{62+i}, v86, v{62+i}, vcc")
            a(f"v_add_u32 v{62+i}, s5, v{62+i}")
        for i in range(8):
            a(f"ds_read_u16 v{54+i}, v{62+i}")
        a("v_lshlrev_b32 v53, 4, v52")
        a("s_waitcnt lgkmcnt(0)")
        for i in range(0, 8, 2):
            a(f"v_lshl_or_b32 v{72+4*(it&1)+i//2}, v{55+i}, 16, v{54+i}")
        a(f"buffer_store_dwordx4 v[{72+4*(it&1)}:{75+4*(it&1)}], v53, s[40:43], s24 offen")
    a.label("L_kgen_exit")
    a("; KEND")
    a("s_endpgm")

WS_UT = 0xC00000
WS_YT = 0xF00000

def transp(a, wg_base, nthreads, direction, nwg=None):
    nh = nthreads // 256
    tag = direction
    a(f"s_sub_u32 s3, s2, {wg_base}")
    a("s_load_dwordx2 s[8:9], s[0:1], 24")
    a("s_load_dwordx2 s[10:11], s[0:1], 72")
    a("s_load_dwordx2 s[12:13], s[0:1], 80")
    a("s_load_dwordx2 s[14:15], s[0:1], 96")
    a("v_lshrrev_b32 v4, 8, v0")
    a("v_readfirstlane_b32 s4, v4")
    a("v_and_b32 v0, 255, v0")
    a("v_and_b32 v1, 63, v0")
    a("v_lshrrev_b32 v4, 6, v0")
    a(f"s_mul_i32 s3, s3, {nh}")
    a("s_add_u32 s3, s3, s4")
    a("s_mul_i32 s5, s4, 9216")
    a("s_waitcnt lgkmcnt(0)")
    srd(a, 16, 8, 2048*640*2); srd(a, 20, 10, 1280); srd(a, 24, 12, 2048*1280*2); srd(a, 28, 14, WS_SIZE2)
    a.label(f"L_tr{tag}_loop")
    a("s_mul_i32 s6, s3, 6554")
    a("s_lshr_b32 s6, s6, 16")
    a("s_mul_i32 s7, s6, 10")
    a("s_sub_u32 s7, s3, s7")
    a("v_lshrrev_b32 v5, 3, v0")
    a("v_and_b32 v6, 7, v0")
    if direction == 'u':
        a("v_mul_u32_u24 v7, 1280, v5")
        a("v_lshl_add_u32 v7, v6, 4, v7")
        a("s_mul_i32 s32, s6, 81920")
        a("s_lshl_b32 s33, s7, 7")
        a("s_add_u32 s32, s32, s33")
        a("s_add_u32 s33, s32, 40960")
        a("buffer_load_dwordx4 v[8:11], v7, s[16:19], s32 offen")
        a("buffer_load_dwordx4 v[12:15], v7, s[16:19], s33 offen")
    else:
        a("v_lshlrev_b32 v7, 12, v5")
        a("v_lshl_add_u32 v7, v6, 4, v7")
        a("s_lshl_b32 s32, s7, 18")
        a("s_lshl_b32 s33, s6, 7")
        a("s_add_u32 s32, s32, s33")
        a(f"s_add_u32 s32, s32, {WS_YT}")
        a("s_add_u32 s33, s32, 131072")
        a("buffer_load_dwordx4 v[8:11], v7, s[28:31], s32 offen")
        a("buffer_load_dwordx4 v[12:15], v7, s[28:31], s33 offen")
    a("v_mul_u32_u24 v16, 144, v5")
    a("v_lshl_add_u32 v16, v6, 4, v16")
    a("v_add_u32 v16, s5, v16")
    a("v_lshrrev_b32 v17, 4, v1")
    a("v_bfe_u32 v18, v1, 2, 2")
    a("v_and_b32 v19, 3, v1")
    a("v_and_b32 v20, 15, v1")
    a("v_lshl_add_u32 v21, v17, 3, v18")
    a("v_mul_u32_u24 v21, 144, v21")
    a("v_lshl_add_u32 v21, v19, 3, v21")
    a("v_lshl_add_u32 v21, v4, 5, v21")
    a("v_add_u32 v21, s5, v21")
    a("v_lshl_add_u32 v22, v4, 4, v20")
    if direction == 'u':
        a("v_lshlrev_b32 v23, 12, v22")
        a("v_lshl_add_u32 v23, v17, 4, v23")
        a("s_lshl_b32 s34, s7, 18")
        a("s_lshl_b32 s35, s6, 7")
        a("s_add_u32 s34, s34, s35")
        a(f"s_add_u32 s34, s34, {WS_UT}")
    else:
        a("v_mul_u32_u24 v23, 2560, v22")
        a("v_lshl_add_u32 v23, v17, 4, v23")
        a("s_mul_i32 s34, s6, 163840")
        a("s_lshl_b32 s35, s7, 7")
        a("s_add_u32 s34, s34, s35")
        a("s_add_u32 s34, s34, 1280")
        a("v_mul_u32_u24 v24, 1280, v22")
        a("v_lshl_add_u32 v24, v17, 4, v24")
        a("s_mul_i32 s36, s6, 81920")
        a("s_add_u32 s36, s36, s35")
        a("buffer_load_dwordx4 v[32:35], v24, s[16:19], s36 offen")
        a("buffer_load_dwordx4 v[36:39], v24, s[16:19], s36 offen offset:64")
        a("v_lshlrev_b32 v24, 4, v17")
        a("buffer_load_dwordx4 v[40:43], v24, s[20:23], s35 offen")
        a("buffer_load_dwordx4 v[44:47], v24, s[20:23], s35 offen offset:64")
        a("s_waitcnt vmcnt(4)")
    if direction == 'u': a("s_waitcnt vmcnt(0)")
    a("ds_write_b128 v16, v[8:11]")
    a(f"ds_write_b128 v16, v[12:15] offset:{32*144}")
    a("s_waitcnt lgkmcnt(0)")
    a("s_barrier")
    for i in range(2):
        a(f"ds_read_b64_tr_b16 v[{8+4*i}:{9+4*i}], v21 offset:{i*32*144}")
        a(f"ds_read_b64_tr_b16 v[{10+4*i}:{11+4*i}], v21 offset:{i*32*144 + 4*144}")
    a("s_waitcnt lgkmcnt(0)")
    if direction == 'u':
        a("buffer_store_dwordx4 v[8:11], v23, s[28:31], s34 offen")
        a("buffer_store_dwordx4 v[12:15], v23, s[28:31], s34 offen offset:64")
    else:
        a("s_mov_b32 s38, 0xffff0000")
        a("s_waitcnt vmcnt(0)")
        for i in range(2):
            for k in range(4):
                y, u, d = 8+4*i+k, 32+4*i+k, 40+4*i+k
                a(f"v_lshlrev_b32 v48, 16, v{u}")
                a(f"v_and_b32 v49, s38, v{u}")
                a(f"v_lshlrev_b32 v50, 16, v{d}")
                a(f"v_and_b32 v51, s38, v{d}")
                a("v_mul_f32 v48, v48, v50")
                a("v_mul_f32 v49, v49, v51")
                a("v_cvt_pk_bf16_f32 v48, v48, v49")
                a("v_and_b32 v49, s38, v48")
                a("v_lshlrev_b32 v48, 16, v48")
                a(f"v_lshlrev_b32 v50, 16, v{y}")
                a(f"v_and_b32 v51, s38, v{y}")
                a("v_add_f32 v48, v48, v50")
                a("v_add_f32 v49, v49, v51")
                a(f"v_cvt_pk_bf16_f32 v{y}, v48, v49")
            a(f"buffer_store_dwordx4 v[{8+4*i}:{11+4*i}], v23, s[24:27], s34 offen offset:{64*i}")
    if nwg:
        a(f"s_add_u32 s3, s3, {nwg*nh}")
        a("s_cmp_ge_u32 s3, 320")
        a(f"s_cbranch_scc1 L_tr{tag}_end")
        a("s_barrier")
        a(f"s_branch L_tr{tag}_loop")
        a.label(f"L_tr{tag}_end")
    a("s_endpgm")

KCP = 4416
L_UD = 4 * KCP
CONV_LDS = L_UD + 96 * 80 + 256
L_Y = 24576
CONV_LDS = L_Y + 4096

def conv(a, wg_base):
    a(f"s_sub_u32 s3, s2, {wg_base}")
    a("; STAMP 0")
    a("s_load_dwordx2 s[14:15], s[0:1], 96")
    a("v_and_b32 v1, 63, v0")
    a("v_lshrrev_b32 v4, 6, v0")
    a("v_readfirstlane_b32 s4, v4")
    a("v_lshlrev_b32 v6, 4, v0")
    a(f"s_mul_i32 s34, s3, {KXP}")
    a(f"s_add_u32 s34, s34, {WS_KX - 8}")
    a("s_add_u32 s40, s34, 4096")
    a("s_lshl_b32 s32, s3, 12")
    a(f"s_add_u32 s33, s32, {WS_UT}")
    a("s_waitcnt lgkmcnt(0)")
    srd(a, 28, 14, WS_SIZE2)
    a("buffer_load_dwordx4 v[8:11], v6, s[28:31], s33 offen")
    for i in range(2):
        so = "s34" if i == 0 else "s40"
        a(f"buffer_load_dwordx2 v[{24+6*i}:{25+6*i}], v6, s[28:31], {so} offen")
        a(f"buffer_load_dwordx4 v[{26+6*i}:{29+6*i}], v6, s[28:31], {so} offen offset:8")
    a("v_mov_b32 v60, 0"); a("v_mov_b32 v61, 0"); a("v_mov_b32 v62, 0"); a("v_mov_b32 v63, 0")
    a("v_cmp_gt_u32 vcc, 160, v0")
    a("s_and_saveexec_b64 s[36:37], vcc")
    a(f"ds_write_b128 v6, v[60:63] offset:{L_UD}")
    a("s_mov_b64 exec, s[36:37]")
    a("v_lshrrev_b32 v7, 2, v0")
    a("v_mul_u32_u24 v7, 80, v7")
    a("v_and_b32 v12, 3, v0")
    a("v_lshl_add_u32 v7, v12, 4, v7")
    a("; STAMP 3")
    a("s_waitcnt vmcnt(4)")
    a("; STAMP 4")
    a(f"ds_write_b128 v7, v[8:11] offset:{L_UD + 32*80}")
    for i in range(2):
        a(f"s_waitcnt vmcnt({2 - 2*i})")
        d = 24 + 6*i
        if i == 1:
            a("v_cmp_gt_u32 vcc, 20, v0")
            a("s_and_saveexec_b64 s[36:37], vcc")
        if i == 0:
            a("v_cmp_eq_u32 vcc, 0, v0")
            a(f"v_cndmask_b32 v{d}, v{d}, 0, vcc")
            a(f"v_cndmask_b32 v{d+1}, v{d+1}, 0, vcc")
        a(f"ds_write_b128 v6, v[{d+2}:{d+5}] offset:{i*4096}")
        for j in range(4):
            a(f"v_alignbit_b32 v{64+j}, v{d+2+j}, v{d+1+j}, 16")
        a(f"ds_write_b128 v6, v[64:67] offset:{i*4096 + KCP}")
        for j in range(4):
            a(f"v_mov_b32 v{68+j}, v{d+1+j}")
        a(f"ds_write_b128 v6, v[68:71] offset:{i*4096 + 2*KCP}")
        for j in range(4):
            a(f"v_alignbit_b32 v{72+j}, v{d+1+j}, v{d+j}, 16")
        a(f"ds_write_b128 v6, v[72:75] offset:{i*4096 + 3*KCP}")
        if i == 1:
            a("s_mov_b64 exec, s[36:37]")
    a("; STAMP 5")
    a("v_and_b32 v8, 31, v1")
    a("v_lshrrev_b32 v9, 5, v1")
    a("v_and_b32 v10, 3, v8")
    a(f"v_mul_u32_u24 v10, {KCP}, v10")
    a("v_and_b32 v11, 28, v8")
    a("v_sub_u32 v11, 32, v11")
    a("v_lshl_add_u32 v11, v9, 3, v11")
    a("v_lshl_add_u32 v10, v11, 1, v10")
    a("s_and_b32 s5, s4, 1")
    a("s_lshr_b32 s6, s4, 1")
    a("s_lshl_b32 s6, s6, 5")
    a("s_xor_b32 s5, s5, 1")
    a("s_lshl_b32 s7, s5, 6")
    a("s_add_u32 s7, s7, s6")
    a("v_add_u32 v10, s7, v10")
    a("v_mul_u32_u24 v11, 80, v8")
    a("v_lshl_add_u32 v11, v9, 4, v11")
    a("s_mul_i32 s7, s5, 80")
    a("s_add_u32 s7, s7, s6")
    a(f"s_add_u32 s7, s7, {L_UD + 80}")
    a("v_add_u32 v11, s7, v11")
    ACC0, ACC1 = 64, 80
    for r in range(32):
        a(f"v_mov_b32 v{64+r}, 0")
    a("s_waitcnt lgkmcnt(0)")
    a("s_barrier")
    a("; STAMP 1")
    steps = list(range(1, 32, 2))
    FR = [96, 112, 128]
    def loads(si):
        d = steps[si]; f = FR[si % 3]
        oa = 64*(63-d); oa2 = 64*(63-(d+32))
        a(f"ds_read_b64 v[{f}:{f+1}], v10 offset:{oa}")
        a(f"ds_read_b64 v[{f+2}:{f+3}], v10 offset:{oa+8}")
        a(f"ds_read_b128 v[{f+8}:{f+11}], v11 offset:{(31-d)*80}")
        a(f"ds_read_b128 v[{f+12}:{f+15}], v11 offset:{(63-d)*80}")
        a(f"ds_read_b64 v[{f+4}:{f+5}], v10 offset:{oa2}")
        a(f"ds_read_b64 v[{f+6}:{f+7}], v10 offset:{oa2+8}")
    loads(0); loads(1)
    n = len(steps)
    for si in range(n):
        if si + 2 < n:
            loads(si + 2)
            a("s_waitcnt lgkmcnt(12)")
        elif si + 1 < n:
            a("s_waitcnt lgkmcnt(6)")
        else:
            a("s_waitcnt lgkmcnt(0)")
        f = FR[si % 3]
        a(f"v_mfma_f32_32x32x16_bf16 v[{ACC0}:{ACC0+15}], v[{f}:{f+3}], v[{f+8}:{f+11}], v[{ACC0}:{ACC0+15}]")
        a(f"v_mfma_f32_32x32x16_bf16 v[{ACC1}:{ACC1+15}], v[{f}:{f+3}], v[{f+12}:{f+15}], v[{ACC1}:{ACC1+15}]")
        a(f"v_mfma_f32_32x32x16_bf16 v[{ACC1}:{ACC1+15}], v[{f+4}:{f+7}], v[{f+8}:{f+11}], v[{ACC1}:{ACC1+15}]")
    a("; STAMP 2")
    a("s_barrier")
    a("v_lshlrev_b32 v12, 4, v1")
    for w in range(4):
        a(f"s_cmp_eq_u32 s4, {w}")
        a(f"s_cbranch_scc0 L_cv_w{w}")
        for dw in range(4):
            if dw == w: continue
            slot = w if w < dw else w - 1
            for q in range(2):
                r = 64 + 4*(2*dw + q)
                a(f"ds_write_b128 v12, v[{r}:{r+3}] offset:{(dw*3 + slot)*2048 + q*1024}")
        for q in range(2):
            for k in range(4):
                a(f"v_mov_b32 v{96+4*q+k}, v{64+4*(2*w+q)+k}")
        a.label(f"L_cv_w{w}")
    a("s_waitcnt lgkmcnt(0)")
    a("s_barrier")
    a("s_mul_i32 s5, s4, 6144")
    a("v_add_u32 v13, s5, v12")
    for sl in range(3):
        for q in range(2):
            a(f"ds_read_b128 v[{104+8*sl+4*q}:{107+8*sl+4*q}], v13 offset:{sl*2048 + q*1024}")
    a("s_waitcnt lgkmcnt(0)")
    for k in range(8):
        a(f"v_add_f32 v{104+k}, v{104+k}, v{112+k}")
        a(f"v_add_f32 v{96+k}, v{96+k}, v{120+k}")
        a(f"v_add_f32 v{96+k}, v{96+k}, v{104+k}")
    a("v_lshlrev_b32 v12, 6, v8")
    a("v_lshl_add_u32 v12, v9, 3, v12")
    a("s_lshr_b32 s5, s4, 1")
    a("s_lshl_b32 s5, s5, 11")
    a("s_and_b32 s6, s4, 1")
    a("s_lshl_b32 s6, s6, 5")
    a("s_add_u32 s5, s5, s6")
    a("v_add_u32 v12, s5, v12")
    for q in range(2):
        a(f"v_cvt_pk_bf16_f32 v{104+2*q}, v{96+4*q}, v{97+4*q}")
        a(f"v_cvt_pk_bf16_f32 v{105+2*q}, v{98+4*q}, v{99+4*q}")
        a(f"ds_write_b64 v12, v[{104+2*q}:{105+2*q}] offset:{L_Y + q*16}")
    a("s_waitcnt lgkmcnt(0)")
    a("s_barrier")
    a(f"ds_read_b128 v[96:99], v6 offset:{L_Y}")
    a(f"s_add_u32 s33, s32, {WS_YT}")
    a("s_waitcnt lgkmcnt(0)")
    a("buffer_store_dwordx4 v[96:99], v6, s[28:31], s33 offen")
    a("s_endpgm")
```

```python
from asmlib import *
from partb import srd, WS_PQ, WS_PART, WS_MT, WS_ZF, WS_SIZE, LOG2E

WS_ZP = 0xB10000
STG = 19456
XOFF = 15360
NST = 4
A1_LDS = STG * NST
KVP = 352
L_CMP = 64 * KVP
PSZ = 4 * 420 * 4

def phi_pair(a, x0, x1, t, dst):
    a(f"v_cvt_pk_bf16_f32 v{t}, v{x0}, v{x1}")
    a(f"v_lshlrev_b32 v{t+1}, 16, v{t}")
    a(f"v_and_b32 v{t+2}, s61, v{t}")
    a(f"v_mul_f32 v{t+3}, s60, v{t+1}")
    a(f"v_mul_f32 v{t+4}, s60, v{t+2}")
    a(f"v_exp_f32 v{t+3}, v{t+3}")
    a(f"v_exp_f32 v{t+4}, v{t+4}")
    a(f"v_add_f32 v{t+5}, 1.0, v{t+1}")
    a(f"v_add_f32 v{t+6}, 1.0, v{t+2}")
    a(f"v_cmp_lt_f32 vcc, 0, v{t+1}")
    a(f"v_cmp_lt_f32 s[44:45], 0, v{t+2}")
    a(f"v_cndmask_b32 v{t+3}, v{t+3}, v{t+5}, vcc")
    a(f"v_cndmask_b32 v{t+4}, v{t+4}, v{t+6}, s[44:45]")
    a(f"v_cvt_pk_bf16_f32 v{t}, v{t+3}, v{t+4}")
    a(f"v_lshlrev_b32 v{t+1}, 16, v{t}")
    a(f"v_and_b32 v{t+2}, s61, v{t}")
    a(f"v_add_f32 v{t+1}, s62, v{t+1}")
    a(f"v_add_f32 v{t+2}, s62, v{t+2}")
    a(f"v_cvt_pk_bf16_f32 v{dst}, v{t+1}, v{t+2}")

EXPF = set()
def a1(a):
    a("s_load_dwordx4 s[8:11], s[0:1], 0")
    a("s_load_dwordx2 s[12:13], s[0:1], 96")
    a("s_and_b32 s5, s2, 1")
    a("s_lshl_b32 s5, s5, 4")
    a("s_lshr_b32 s46, s2, 4")
    a("s_add_u32 s5, s5, s46")
    a("s_and_b32 s6, s2, 6")
    a("s_bfe_u32 s47, s2, 0x10003")
    a("s_add_u32 s6, s6, s47")
    a("v_and_b32 v1, 63, v0")
    a("v_lshrrev_b32 v4, 6, v0")
    a("v_readfirstlane_b32 s4, v4")
    a("; STAMP 0")
    if "prio" in EXPF: a("s_setprio 3")
    a("s_cmp_lt_u32 s4, 4")
    a("s_cbranch_scc1 L_a1_cons")
    a("v_and_b32 v4, 3, v4")
    a("s_and_b32 s4, s4, 3")
    a("s_mul_i32 s7, s6, 160")
    for jj in range(4):
        g = 16; r = 17; c = 18; sg = 19
        a(f"v_lshl_add_u32 v{g}, v4, 6, v1")
        a(f"v_add_u32 v{g}, {256*jj}, v{g}")
        a(f"v_min_u32 v{g}, 959, v{g}")
        a(f"v_mul_u32_u24 v{r}, 2185, v{g}")
        a(f"v_lshrrev_b32 v{r}, 16, v{r}")
        a(f"v_mul_u32_u24 v{c}, 30, v{r}")
        a(f"v_sub_u32 v{c}, v{g}, v{c}")
        a(f"v_mul_u32_u24 v{sg}, 6554, v{c}")
        a(f"v_lshrrev_b32 v{sg}, 16, v{sg}")
        a(f"v_mul_u32_u24 v20, 10, v{sg}")
        a(f"v_sub_u32 v{c}, v{c}, v20")
        a(f"v_mul_u32_u24 v{r}, 3840, v{r}")
        a(f"v_mul_u32_u24 v{sg}, 1280, v{sg}")
        a(f"v_lshl_add_u32 v{r}, v{c}, 4, v{r}")
        a(f"v_add3_u32 v{8+jj}, v{r}, v{sg}, s7")
    a("v_lshrrev_b32 v16, 2, v1")
    a("v_and_b32 v17, 3, v1")
    a("v_bfe_u32 v18, v1, 4, 2")
    a("v_xor_b32 v17, v17, v18")
    a("s_lshl_b32 s7, s5, 6")
    a("v_lshl_add_u32 v16, v4, 4, v16")
    a("v_add_u32 v16, s7, v16")
    a("v_mul_u32_u24 v12, 1280, v16")
    a("v_lshl_add_u32 v12, v17, 4, v12")
    a("s_waitcnt lgkmcnt(0)")
    srd(a, 16, 8, 2048*640*2); srd(a, 20, 10, 640*1920*2)
    a("s_lshl_b32 s28, s4, 10")
    a("s_mov_b32 s29, 0")
    a("s_mov_b32 s30, 0")
    def issue(slot, nw):
        for jj in range(nw):
            a(f"s_add_u32 m0, s28, {slot*STG + jj*4096}")
            a(f"buffer_load_dwordx4 v{8+jj}, s[20:23], s29 offen lds")
        a(f"s_add_u32 m0, s28, {slot*STG + XOFF}")
        a(f"buffer_load_dwordx4 v12, s[16:19], s30 offen lds")
        a("s_add_u32 s29, s29, 122880")
        a("s_add_u32 s30, s30, 64")
    a("v_lshrrev_b32 v23, 3, v1")
    a("v_lshl_add_u32 v23, v4, 3, v23")
    a("s_lshl_b32 s32, s5, 6")
    a("s_lshl_b32 s33, s47, 5")
    a("s_add_u32 s32, s32, s33")
    a("v_add_u32 v23, s32, v23")
    a("v_mul_u32_u24 v23, 1280, v23")
    a("v_and_b32 v24, 7, v1")
    a("v_lshl_add_u32 v23, v24, 4, v23")
    a("v_min_u32 v24, 29, v1")
    a("v_mul_u32_u24 v27, 6554, v24")
    a("v_lshrrev_b32 v27, 16, v27")
    a("v_mul_u32_u24 v28, 10, v27")
    a("v_sub_u32 v26, v24, v28")
    a("v_mul_u32_u24 v27, 1280, v27")
    a("v_lshl_add_u32 v25, v26, 4, v27")
    a("s_lshl_b32 s32, s46, 2")
    a("s_add_u32 s32, s32, s4")
    a("s_mul_i32 s32, s32, 3840")
    a("s_mul_i32 s33, s6, 160")
    a("s_add_u32 s32, s32, s33")
    def pfb(j):
        a(f"s_add_u32 s33, s32, {j*64*3840}")
        a(f"buffer_load_dwordx4 v[32:35], v25, s[20:23], s33 offen")
        a(f"buffer_load_dwordx4 v[36:39], v23, s[16:19], 0 offen offset:{128*j}")
    a("s_cmp_eq_u32 s4, 3")
    a("s_cbranch_scc1 L_a1_prod3")
    for nw in (4, 3):
        if nw == 3: a.label("L_a1_prod3")
        seq = []
        def do_issue(stg):
            issue(stg % 4, nw); seq.extend([('d', stg)]*(nw+1))
        def do_pf(j):
            pfb(j); seq.extend([('p', j)]*2)
        for stg in range(3):
            do_issue(stg)
        PFD = 4
        for e_ in EXPF:
            if e_.startswith('pfd'): PFD = int(e_[3:])
        for j in range(1, PFD+1): do_pf(j)
        nextj = PFD + 1
        for t in range(20):
            last = max(i for i, o in enumerate(seq) if o == ('d', t))
            a(f"s_waitcnt vmcnt({len(seq) - 1 - last})")
            a("s_barrier")
            if t + 3 < 20:
                do_issue(t+3)
            if t % 2 == 0 and nextj < 10:
                do_pf(nextj); nextj += 1
        a("s_endpgm")
    a.label("L_a1_cons")
    a("v_lshrrev_b32 v16, 4, v1")
    a("v_bfe_u32 v17, v1, 2, 2")
    a("v_and_b32 v18, 3, v1")
    a("v_lshl_add_u32 v13, v16, 2, v17")
    a("v_mul_u32_u24 v13, 480, v13")
    a("v_lshl_add_u32 v13, v18, 3, v13")
    a("v_lshl_add_u32 v13, v4, 5, v13")
    a("v_and_b32 v19, 15, v1")
    a("v_lshrrev_b32 v20, 1, v16")
    a("v_lshrrev_b32 v21, 2, v19")
    a("v_xor_b32 v20, v20, v21")
    a("v_xor_b32 v21, 2, v20")
    a("v_and_b32 v22, 1, v16")
    a("v_lshlrev_b32 v22, 3, v22")
    a("v_lshl_add_u32 v22, v19, 6, v22")
    a(f"v_add_u32 v22, {XOFF}, v22")
    a("v_lshl_add_u32 v14, v20, 4, v22")
    a("v_lshl_add_u32 v15, v21, 4, v22")
    a(f"v_add_u32 v2, {2*STG}, v13")
    a(f"v_add_u32 v3, {2*STG}, v14")
    a(f"v_add_u32 v5, {2*STG}, v15")
    a("s_waitcnt lgkmcnt(0)")
    srd(a, 24, 12, WS_SIZE)
    srd(a, 16, 8, 2048*640*2); srd(a, 20, 10, 640*1920*2)
    ACC = 52; F = 20
    for r in range(ACC, ACC+64):
        a(f"v_mov_b32 v{r}, 0")
    a("s_mov_b32 s31, 0")
    a.label("L_a1_loop")
    for stg in range(20 if "unroll" in EXPF else 4):
        if "unroll" in EXPF and stg % 2 == 0 and stg < 16: a(f"; STAMP {3 + stg//2}")
        a("s_barrier")
        stg = stg % 4
        base = (stg & 1) * STG
        vb, va, va2 = (13, 14, 15) if stg < 2 else (2, 3, 5)
        for ct in range(4):
            a(f"ds_read_b64_tr_b16 v[{F+4*ct}:{F+1+4*ct}], v{vb} offset:{base + ct*128}")
            a(f"ds_read_b64_tr_b16 v[{F+2+4*ct}:{F+3+4*ct}], v{vb} offset:{base + ct*128 + 7680}")
            rt = ct
            a(f"ds_read_b64 v[{F+16+4*rt}:{F+17+4*rt}], v{va} offset:{base + rt*1024}")
            a(f"ds_read_b64 v[{F+18+4*rt}:{F+19+4*rt}], v{va2} offset:{base + rt*1024}")
        for lvl in range(4):
            a(f"s_waitcnt lgkmcnt({12 - 4*lvl})")
            pairs = [(lvl, j) for j in range(lvl+1)] + [(j, lvl) for j in range(lvl)]
            for (ct, rt) in pairs:
                acc = ACC + 16*ct + 4*rt
                a(f"v_mfma_f32_16x16x32_bf16 v[{acc}:{acc+3}], v[{F+4*ct}:{F+3+4*ct}], v[{F+16+4*rt}:{F+19+4*rt}], v[{acc}:{acc+3}]")
    if "unroll" not in EXPF:
        for e in EXPF:
            if e.startswith("pr"):
                a(f"s_cmp_lg_u32 s31, {int(e[2:])}")
                a("s_cbranch_scc1 L_a1_noprio")
                a("s_setprio 3")
                a.label("L_a1_noprio")
        a("s_add_u32 s31, s31, 1")
        a("s_cmp_lt_u32 s31, 5")
        a("s_cbranch_scc1 L_a1_loop")
    a("s_barrier")
    a("; STAMP 1")
    a("s_waitcnt vmcnt(0)")
    a(f"s_mov_b32 s60, {LOG2E}")
    a("s_mov_b32 s61, 0xffff0000")
    a("s_mov_b32 s62, 0x358637bd")
    a("v_lshlrev_b32 v5, 3, v1")
    a(f"v_mul_u32_u24 v6, {KVP}, v19")
    a("v_lshl_add_u32 v6, v16, 3, v6")
    for slot in range(4):
        a(f"s_add_u32 s32, s4, {4*slot}")
        a("s_cmp_ge_u32 s32, 10")
        a(f"s_cbranch_scc1 L_a1_ep{slot}_v")
        for rt in range(4):
            acc = ACC + 16*slot + 4*rt
            phi_pair(a, acc, acc+1, 116, 20+8*slot+2*rt)
            phi_pair(a, acc+2, acc+3, 8, 21+8*slot+2*rt)
        a(f"s_branch L_a1_ep{slot}_done")
        a.label(f"L_a1_ep{slot}_v")
        for rt in range(4):
            acc = ACC + 16*slot + 4*rt
            a(f"v_cvt_pk_bf16_f32 v{20+8*slot+2*rt}, v{acc}, v{acc+1}")
            a(f"v_cvt_pk_bf16_f32 v{21+8*slot+2*rt}, v{acc+2}, v{acc+3}")
        a.label(f"L_a1_ep{slot}_done")
    for slot in range(4):
        a(f"s_add_u32 s32, s4, {4*slot}")
        a("s_cmp_ge_u32 s32, 15")
        a(f"s_cbranch_scc1 L_a1_st{slot}_done")
        a("s_cmp_ge_u32 s32, 5")
        a(f"s_cbranch_scc1 L_a1_st{slot}_lds")
        a("s_mul_i32 s35, s6, 5")
        a("s_add_u32 s35, s35, s32")
        a("s_lshl_b32 s35, s35, 9")
        a(f"s_mul_i32 s36, s5, {4*40*512}")
        a("s_add_u32 s35, s35, s36")
        for rt in range(4):
            a(f"s_add_u32 s36, s35, {WS_PQ + rt*40*512}")
            a(f"buffer_store_dwordx2 v[{20+8*slot+2*rt}:{21+8*slot+2*rt}], v5, s[24:27], s36 offen")
        a(f"s_branch L_a1_st{slot}_done")
        a.label(f"L_a1_st{slot}_lds")
        a("s_sub_u32 s35, s32, 5")
        a("s_lshl_b32 s35, s35, 5")
        a("v_add_u32 v7, s35, v6")
        for rt in range(4):
            a(f"ds_write_b64 v7, v[{20+8*slot+2*rt}:{21+8*slot+2*rt}] offset:{rt*16*KVP}")
        a.label(f"L_a1_st{slot}_done")
    a("s_waitcnt lgkmcnt(0)")
    a("s_barrier")
    a("; STAMP 2")
    a("v_lshl_add_u32 v13, v16, 2, v17")
    a(f"v_mul_u32_u24 v13, {KVP}, v13")
    a("v_lshl_add_u32 v13, v18, 3, v13")
    a("s_mul_i32 s35, s4, 40")
    a("v_add_u32 v13, s35, v13")
    for ks in range(2):
        for tl in range(2):
            a(f"ds_read_b64_tr_b16 v[{32+8*ks+4*tl}:{33+8*ks+4*tl}], v13 offset:{ks*32*KVP + tl*32}")
            a(f"ds_read_b64_tr_b16 v[{34+8*ks+4*tl}:{35+8*ks+4*tl}], v13 offset:{(ks*32+16)*KVP + tl*32}")
            a(f"ds_read_b64_tr_b16 v[{48+8*ks+4*tl}:{49+8*ks+4*tl}], v13 offset:{ks*32*KVP + 160 + tl*32}")
            a(f"ds_read_b64_tr_b16 v[{50+8*ks+4*tl}:{51+8*ks+4*tl}], v13 offset:{(ks*32+16)*KVP + 160 + tl*32}")
    a("v_cmp_eq_u32 vcc, 4, v19")
    a("v_mov_b32 v24, 0x3f803f80")
    a("s_waitcnt lgkmcnt(0)")
    for ks in range(2):
        for k in range(4):
            a(f"v_cndmask_b32 v{52+8*ks+k}, v{52+8*ks+k}, v24, vcc")
    for dtl in range(2):
        for etl in range(2):
            acc = 64 + 8*dtl + 4*etl
            a(f"v_mfma_f32_16x16x32_bf16 v[{acc}:{acc+3}], v[{32+4*dtl}:{35+4*dtl}], v[{48+4*etl}:{51+4*etl}], 0")
            a(f"v_mfma_f32_16x16x32_bf16 v[{acc}:{acc+3}], v[{40+4*dtl}:{43+4*dtl}], v[{56+4*etl}:{59+4*etl}], v[{acc}:{acc+3}]")
    a("v_mul_u32_u24 v24, 84, v16")
    a("v_add_u32 v24, v24, v19")
    a("s_mul_i32 s35, s4, 420")
    a("v_add_u32 v24, s35, v24")
    a("v_lshlrev_b32 v24, 2, v24")
    a(f"v_add_u32 v24, {L_CMP}, v24")
    a("v_cmp_gt_u32 s[36:37], 5, v19")
    a("v_cmp_gt_u32 s[38:39], 16, v1")
    a("s_and_b64 s[40:41], s[36:37], s[38:39]")
    for dtl in range(2):
        for etl in range(2):
            acc = 64 + 8*dtl + 4*etl
            m = {(0,0): None, (0,1): "s[36:37]", (1,0): "s[38:39]", (1,1): "s[40:41]"}[(dtl, etl)]
            if m: a(f"s_mov_b64 exec, {m}")
            for r in range(4):
                a(f"ds_write_b32 v24, v{acc+r} offset:{((16*dtl + r)*21 + 16*etl)*4}")
            if m: a("s_mov_b64 exec, -1")
    a("s_waitcnt lgkmcnt(0)")
    a("s_barrier")
    a("v_lshlrev_b32 v24, 4, v0")
    a("s_lshl_b32 s35, s5, 3")
    a("s_add_u32 s35, s35, s6")
    a(f"s_mul_i32 s35, s35, {PSZ}")
    a(f"s_add_u32 s35, s35, {WS_PART}")
    a(f"ds_read_b128 v[32:35], v24 offset:{L_CMP}")
    a(f"ds_read_b128 v[36:39], v24 offset:{L_CMP + 4096}")
    a("s_waitcnt lgkmcnt(0)")
    a("buffer_store_dwordx4 v[32:35], v24, s[24:27], s35 offen")
    a(f"v_cmp_gt_u32 vcc, {(PSZ - 4096)//16}, v0")
    a("s_and_saveexec_b64 s[36:37], vcc")
    a("s_add_u32 s35, s35, 4096")
    a("buffer_store_dwordx4 v[36:39], v24, s[24:27], s35 offen")
    a("s_endpgm")

WOP = 1312
L_KVT = 32 * WOP
A2R_LDS = L_KVT + 32 * 80

WOA = [8,9,10,11,12,13,14,15,60,61]
def a2r(a):
    a("s_load_dwordx2 s[8:9], s[0:1], 16")
    a("s_load_dwordx2 s[12:13], s[0:1], 96")
    a("v_and_b32 v1, 63, v0")
    a("v_lshrrev_b32 v4, 6, v0")
    a("v_readfirstlane_b32 s4, v4")
    a("s_lshr_b32 s5, s2, 2")
    a("s_and_b32 s6, s2, 3")
    a("; STAMP 0")
    a("s_waitcnt lgkmcnt(0)")
    srd(a, 16, 8, 640*640*2); srd(a, 24, 12, WS_SIZE)
    a(f"s_mul_i32 s29, s5, {PSZ}")
    a("s_mul_i32 s30, s6, 1680")
    a("s_add_u32 s29, s29, s30")
    a(f"s_add_u32 s29, s29, {WS_PART}")
    a("v_lshlrev_b32 v25, 2, v0")
    a("v_add_u32 v26, 1024, v25")
    a("v_min_u32 v26, 1676, v26")
    a("s_mov_b32 s34, s29")
    for rb in range(32):
        a(f"buffer_load_dword v{28+rb}, v25, s[24:27], s34 offen")
        a(f"buffer_load_dword v{112+rb}, v26, s[24:27], s34 offen")
        a(f"s_add_u32 s34, s34, {8*PSZ}")
    a("s_mul_i32 s28, s2, 25600")
    for i in range(10):
        a(f"v_add_u32 v16, {256*i}, v0")
        a("v_mul_u32_u24 v17, 52429, v16")
        a("v_lshrrev_b32 v17, 22, v17")
        a("v_mul_u32_u24 v18, 80, v17")
        a("v_sub_u32 v18, v16, v18")
        a("v_mul_u32_u24 v19, 1280, v17")
        a("v_lshl_add_u32 v19, v18, 4, v19")
        a("v_cmp_gt_u32 vcc, 20, v17")
        a("v_cndmask_b32 v19, -1, v19, vcc")
        a(f"v_mul_u32_u24 v{WOA[i]}, {WOP}, v17")
        a(f"v_lshl_add_u32 v{WOA[i]}, v18, 4, v{WOA[i]}")
        a(f"buffer_load_dwordx4 v[{64+4*i}:{67+4*i}], v19, s[16:19], s28 offen")
    a("v_mov_b32 v20, 0"); a("v_mov_b32 v21, 0"); a("v_mov_b32 v22, 0"); a("v_mov_b32 v23, 0")
    a("v_lshlrev_b32 v24, 4, v0")
    a("v_cmp_gt_u32 vcc, 160, v0")
    a("s_and_saveexec_b64 s[30:31], vcc")
    a(f"ds_write_b128 v24, v[20:23] offset:{L_KVT}")
    a("s_mov_b64 exec, s[30:31]")
    a("s_waitcnt lgkmcnt(0)")
    a("s_barrier")
    a("; STAMP 1")
    a("s_waitcnt vmcnt(10)")
    a("; STAMP 2")
    for rnd in range(2):
        b = 28 if rnd == 0 else 112
        for st in (16, 8, 4, 2, 1):
            for k in range(st):
                a(f"v_add_f32 v{b+k}, v{b+k}, v{b+k+st}")
        if rnd == 1:
            a("v_cmp_gt_u32 vcc, 164, v0")
            a("s_and_saveexec_b64 s[30:31], vcc")
        a(f"v_add_u32 v16, {256*rnd}, v0")
        a("v_mul_u32_u24 v17, 49933, v16")
        a("v_lshrrev_b32 v17, 20, v17")
        a("v_mul_u32_u24 v18, 21, v17")
        a("v_sub_u32 v18, v16, v18")
        a("v_cmp_eq_u32 s[32:33], 20, v18")
        a(f"v_cvt_pk_bf16_f32 v27, v{b}, v{b}")
        a("v_mul_u32_u24 v26, 80, v17")
        a("v_lshl_add_u32 v26, v18, 1, v26")
        a("s_mov_b64 s[36:37], exec")
        a("s_andn2_b64 exec, exec, s[32:33]")
        a(f"ds_write_b16 v26, v27 offset:{L_KVT}")
        a("s_and_b64 exec, s[36:37], s[32:33]")
        a("s_mul_i32 s35, s2, 40")
        a(f"s_add_u32 s35, s35, {WS_ZF}")
        a("v_lshlrev_b32 v26, 1, v17")
        a("buffer_store_short v27, v26, s[24:27], s35 offen")
        a("s_mov_b64 exec, -1")
    a("s_waitcnt vmcnt(0)")
    for i in range(10):
        a(f"ds_write_b128 v{WOA[i]}, v[{64+4*i}:{67+4*i}]")
    a("s_waitcnt lgkmcnt(0)")
    a("s_barrier")
    a("; STAMP 3")
    a("v_lshrrev_b32 v16, 4, v1")
    a("v_bfe_u32 v17, v1, 2, 2")
    a("v_and_b32 v18, 3, v1")
    a("v_and_b32 v19, 15, v1")
    a("v_mul_u32_u24 v20, 80, v19")
    a("v_lshl_add_u32 v20, v16, 3, v20")
    for dtile in range(2):
        a(f"ds_read_b64 v[{32+4*dtile}:{33+4*dtile}], v20 offset:{L_KVT + dtile*16*80}")
        a(f"ds_read_b64 v[{34+4*dtile}:{35+4*dtile}], v20 offset:{L_KVT + dtile*16*80 + 32}")
    a("v_lshl_add_u32 v21, v16, 2, v17")
    a(f"v_mul_u32_u24 v21, {WOP}, v21")
    a("v_lshl_add_u32 v21, v18, 3, v21")
    a("s_mul_i32 s35, s4, 320")
    a("v_add_u32 v21, s35, v21")
    a("s_mul_i32 s35, s2, 5")
    for dtile in range(2):
        d = 22 + dtile
        a(f"v_add_u32 v24, s35, v16")
        if dtile: a("v_add_u32 v24, 4, v24")
        a("v_lshrrev_b32 v25, 3, v24")
        a("v_and_b32 v26, 3, v24")
        a("v_bfe_u32 v27, v24, 2, 1")
        a(f"v_lshlrev_b32 v{d}, 10, v25")
        a(f"v_lshl_add_u32 v{d}, v26, 8, v{d}")
        a(f"v_lshl_add_u32 v{d}, v19, 4, v{d}")
        a(f"v_lshl_add_u32 v{d}, v27, 3, v{d}")
    a(f"s_mul_i32 s36, s4, {10*20*1024}")
    a(f"s_add_u32 s36, s36, {WS_MT}")
    a("v_cmp_gt_u32 s[38:39], 16, v1")
    for ct in range(10):
        a(f"ds_read_b64_tr_b16 v[{40+4*ct}:{41+4*ct}], v21 offset:{ct*32}")
        a(f"ds_read_b64_tr_b16 v[{42+4*ct}:{43+4*ct}], v21 offset:{ct*32 + 16*WOP}")
    for ct in range(10):
        a(f"s_waitcnt lgkmcnt({min(15, 18 - 2*ct)})")
        r0 = 80 + 8*(ct & 1)
        a(f"v_mfma_f32_16x16x32_bf16 v[{r0}:{r0+3}], v[32:35], v[{40+4*ct}:{43+4*ct}], 0")
        a(f"v_mfma_f32_16x16x32_bf16 v[{r0+4}:{r0+7}], v[36:39], v[{40+4*ct}:{43+4*ct}], 0")
        p = 96 + 4*(ct & 1)
        a(f"v_cvt_pk_bf16_f32 v{p}, v{r0}, v{r0+1}")
        a(f"v_cvt_pk_bf16_f32 v{p+1}, v{r0+2}, v{r0+3}")
        a(f"v_cvt_pk_bf16_f32 v{p+2}, v{r0+4}, v{r0+5}")
        a(f"v_cvt_pk_bf16_f32 v{p+3}, v{r0+6}, v{r0+7}")
        a(f"s_add_u32 s37, s36, {ct*20*1024}")
        a(f"buffer_store_dwordx2 v[{p}:{p+1}], v22, s[24:27], s37 offen")
        a("s_mov_b64 exec, s[38:39]")
        a(f"buffer_store_dwordx2 v[{p+2}:{p+3}], v23, s[24:27], s37 offen")
        a("s_mov_b64 exec, -1")
    a("s_endpgm")


SCL_LDS = 40960 + 1280
def scl(a, wg_base):
    a(f"s_sub_u32 s5, s2, {wg_base}")
    a("s_load_dwordx2 s[12:13], s[0:1], 96")
    a("v_and_b32 v1, 63, v0")
    a("v_lshrrev_b32 v4, 6, v0")
    a("v_readfirstlane_b32 s4, v4")
    a("v_lshlrev_b32 v5, 4, v1")
    a("v_min_u32 v6, 159, v0")
    a("v_lshlrev_b32 v6, 4, v6")
    a("s_waitcnt lgkmcnt(0)")
    srd(a, 24, 12, WS_SIZE)
    a(f"s_mov_b32 s30, {WS_ZP}")
    for rb in range(16):
        a(f"buffer_load_dwordx4 v[{16+4*rb}:{19+4*rb}], v6, s[24:27], s30 offen")
        a("s_add_u32 s30, s30, 2560")
    a("s_mul_i32 s28, s5, 40960")
    a("s_mul_i32 s29, s4, 10240")
    a("s_add_u32 s28, s28, s29")
    for i in range(10):
        a(f"s_add_u32 m0, s29, {i*1024}")
        a(f"s_add_u32 s31, s28, {WS_PQ + i*1024}")
        a("buffer_load_dwordx4 v5, s[24:27], s31 offen lds")
    for rb in range(16):
        a(f"buffer_load_dwordx4 v[{80+4*rb}:{83+4*rb}], v6, s[24:27], s30 offen")
        a("s_add_u32 s30, s30, 2560")
    a("s_waitcnt vmcnt(26)")
    for st in (8, 4, 2, 1):
        for k in range(st):
            for c in range(4):
                a(f"v_add_f32 v{16+4*k+c}, v{16+4*k+c}, v{16+4*(k+st)+c}")
    a("s_waitcnt vmcnt(0)")
    for st in (8, 4, 2, 1):
        for k in range(st):
            for c in range(4):
                a(f"v_add_f32 v{80+4*k+c}, v{80+4*k+c}, v{80+4*(k+st)+c}")
    for c in range(4):
        a(f"v_add_f32 v{16+c}, v{16+c}, v{80+c}")
    a("v_cvt_pk_bf16_f32 v16, v16, v17")
    a("v_cvt_pk_bf16_f32 v17, v18, v19")
    a("v_lshrrev_b32 v6, 1, v6")
    a("ds_write_b64 v6, v[16:17] offset:40960")
    a("s_waitcnt lgkmcnt(0)")
    a("s_barrier")
    a("s_mov_b32 s61, 0xffff0000")
    a("s_mov_b32 s62, 0x358637bd")
    a("v_and_b32 v6, 31, v0")
    a("v_lshrrev_b32 v7, 5, v0")
    a("v_lshrrev_b32 v8, 4, v6")
    a("v_mul_u32_u24 v8, 20480, v8")
    a("v_and_b32 v9, 15, v6")
    a("v_lshl_add_u32 v8, v9, 3, v8")
    a("v_mul_u32_u24 v9, 2560, v7")
    a("v_add_u32 v8, v8, v9")
    a("v_mul_u32_u24 v9, 160, v7")
    PB, ZB = 60, 80
    def rd(hd):
        P = PB + 10*(hd & 1); Z = ZB + 10*(hd & 1)
        for i in range(5):
            qd = 5*hd + i
            a(f"ds_read_b64 v[{P+2*i}:{P+2*i+1}], v8 offset:{(qd>>2)*512 + (qd&3)*128}")
            a(f"ds_read_b64 v[{Z+2*i}:{Z+2*i+1}], v9 offset:{40960 + hd*40 + 8*i}")
    rd(0)
    for hd in range(4):
        P = PB + 10*(hd & 1); Z = ZB + 10*(hd & 1)
        if hd + 1 < 4:
            rd(hd+1)
            a(f"s_waitcnt lgkmcnt({10 if hd == 0 else 15})")
        else:
            a("s_waitcnt lgkmcnt(0)")
        a(f"v_dot2_f32_bf16 v36, v{P}, v{Z}, 0")
        a(f"v_dot2_f32_bf16 v37, v{P+1}, v{Z+1}, 0")
        for i in range(2, 10, 2):
            a(f"v_dot2_f32_bf16 v36, v{P+i}, v{Z+i}, v36")
            a(f"v_dot2_f32_bf16 v37, v{P+i+1}, v{Z+i+1}, v37")
        for i in range(10):
            a(f"v_lshlrev_b32 v{16+2*i}, 16, v{P+i}")
            a(f"v_and_b32 v{17+2*i}, s61, v{P+i}")
        a("v_add_f32 v36, v36, v37")
        a("v_cvt_pk_bf16_f32 v36, v36, v36")
        a("v_lshlrev_b32 v36, 16, v36")
        a("v_add_f32 v36, s62, v36")
        a("v_cvt_pk_bf16_f32 v36, v36, v36")
        a("v_lshlrev_b32 v36, 16, v36")
        a("v_rcp_f32 v36, v36")
        for i in range(10):
            a(f"v_mul_f32 v{16+2*i}, v{16+2*i}, v36")
            a(f"v_mul_f32 v{17+2*i}, v{17+2*i}, v36")
            a(f"v_cvt_pk_bf16_f32 v{P+i}, v{16+2*i}, v{17+2*i}")
        for i in range(5):
            qd = 5*hd + i
            a(f"ds_write_b64 v8, v[{P+2*i}:{P+2*i+1}] offset:{(qd>>2)*512 + (qd&3)*128}")
    a("s_waitcnt lgkmcnt(0)")
    a("s_barrier")
    a("v_add_u32 v6, s29, v5")
    for i in range(10):
        a(f"ds_read_b128 v[{16+4*i}:{19+4*i}], v6 offset:{i*1024}")
    for i in range(10):
        a(f"s_waitcnt lgkmcnt({9-i})")
        a(f"s_add_u32 s31, s28, {WS_PQ + i*1024}")
        a(f"buffer_store_dwordx4 v[{16+4*i}:{19+4*i}], v5, s[24:27], s31 offen")
    a("s_endpgm")

L_Z = 4 * 40 * 512
A3_LDS = L_Z + 1280
OP = 272

def a3(a):
    a("s_load_dwordx2 s[8:9], s[0:1], 80")
    a("s_load_dwordx2 s[12:13], s[0:1], 96")
    a("v_and_b32 v1, 63, v0")
    a("v_lshrrev_b32 v4, 6, v0")
    a("v_readfirstlane_b32 s4, v4")
    a("s_lshr_b32 s7, s2, 3")
    a("s_mul_i32 s5, s7, 52429")
    a("s_lshr_b32 s5, s5, 18")
    a("s_mul_i32 s6, s5, 5")
    a("s_sub_u32 s6, s7, s6")
    a("s_and_b32 s7, s2, 7")
    a("s_lshl_b32 s7, s7, 2")
    a("s_add_u32 s5, s5, s7")
    a("; STAMP 0")
    a("v_lshlrev_b32 v5, 4, v1")
    a("s_waitcnt lgkmcnt(0)")
    srd(a, 16, 8, 2048*1280*2); srd(a, 24, 12, WS_SIZE)
    a("s_mul_i32 s30, s4, 160")
    a(f"s_add_u32 m0, s30, {L_Z}")
    a(f"s_add_u32 s30, s30, {WS_ZF}")
    a("v_cmp_gt_u32 vcc, 10, v1")
    a("s_and_saveexec_b64 s[32:33], vcc")
    a("buffer_load_dwordx4 v5, s[24:27], s30 offen lds")
    a("s_mov_b64 exec, s[32:33]")
    a(f"s_mul_i32 s28, s5, {4*40*512}")
    a("s_mul_i32 s29, s4, 10240")
    a("s_add_u32 s28, s28, s29")
    for i in range(10):
        a(f"s_add_u32 m0, s29, {i*1024}")
        a(f"s_add_u32 s30, s28, {WS_PQ + i*1024}")
        a("buffer_load_dwordx4 v5, s[24:27], s30 offen lds")
    a("s_lshl_b32 s29, s6, 3")
    a("s_add_u32 s29, s29, s4")
    a("s_mul_i32 s34, s29, 20480")
    a(f"s_add_u32 s34, s34, {WS_MT}")
    MT = 40
    def mtload(t):
        if t % 4 == 0 and t: a("s_add_u32 s34, s34, 4096")
        a(f"buffer_load_dwordx4 v[{MT+4*t}:{MT+4*t+3}], v5, s[24:27], s34 offen offset:{(t%4)*1024}")
    a("; STAMP 1")
    a("s_mov_b32 s61, 0xffff0000")
    a("s_mov_b32 s62, 0x358637bd")
    a("v_lshrrev_b32 v6, 4, v1")
    a("v_mul_u32_u24 v6, 20480, v6")
    a("v_and_b32 v7, 15, v1")
    a("v_lshl_add_u32 v6, v7, 3, v6")
    a("s_mul_i32 s30, s4, 2560")
    a("v_add_u32 v6, s30, v6")
    a("s_mul_i32 s30, s4, 160")
    a(f"s_add_u32 s30, s30, {L_Z}")
    a("v_mov_b32 v7, s30")
    a("s_waitcnt vmcnt(0)")
    a("s_barrier")
    a("; STAMP 2")
    a("; STAMP 3")
    PB, ZB = 120, 140
    def rd(hd):
        P = PB + 10*(hd & 1); Z = ZB + 10*(hd & 1)
        for i in range(5):
            qd = 5*hd + i
            a(f"ds_read_b64 v[{P+2*i}:{P+2*i+1}], v6 offset:{(qd>>2)*512 + (qd&3)*128}")
            a(f"ds_read_b64 v[{Z+2*i}:{Z+2*i+1}], v7 offset:{hd*40 + 8*i}")
    rd(0)
    for hd in range(4):
        P = PB + 10*(hd & 1); Z = ZB + 10*(hd & 1)
        if hd + 1 < 4:
            rd(hd+1)
            a(f"s_waitcnt lgkmcnt({10 if hd == 0 else 15})")
        else:
            a("s_waitcnt lgkmcnt(0)")
        a(f"v_dot2_f32_bf16 v32, v{P}, v{Z}, 0")
        a(f"v_dot2_f32_bf16 v33, v{P+1}, v{Z+1}, 0")
        for i in range(2, 10, 2):
            a(f"v_dot2_f32_bf16 v32, v{P+i}, v{Z+i}, v32")
            a(f"v_dot2_f32_bf16 v33, v{P+i+1}, v{Z+i+1}, v33")
        mtload(5*hd)
        for i in range(10):
            if i == 5: mtload(5*hd+1)
            a(f"v_lshlrev_b32 v{8+2*i}, 16, v{P+i}")
            a(f"v_and_b32 v{9+2*i}, s61, v{P+i}")
        a("v_add_f32 v32, v32, v33")
        a("v_cvt_pk_bf16_f32 v32, v32, v32")
        a("v_lshlrev_b32 v32, 16, v32")
        a("v_add_f32 v32, s62, v32")
        a("v_cvt_pk_bf16_f32 v32, v32, v32")
        a("v_lshlrev_b32 v32, 16, v32")
        a("v_rcp_f32 v32, v32")
        mtload(5*hd+2)
        for i in range(10):
            if i in (4, 9): mtload(5*hd+3+(i==9))
            a(f"v_mul_f32 v{8+2*i}, v{8+2*i}, v32")
            a(f"v_mul_f32 v{9+2*i}, v{9+2*i}, v32")
            a(f"v_cvt_pk_bf16_f32 v{P+i}, v{8+2*i}, v{9+2*i}")
        for i in range(5):
            qd = 5*hd + i
            a(f"ds_write_b64 v6, v[{P+2*i}:{P+2*i+1}] offset:{(qd>>2)*512 + (qd&3)*128}")
    a("s_waitcnt lgkmcnt(0)")
    a("s_barrier")
    a("; STAMP 4")
    a("v_lshlrev_b32 v6, 3, v1")
    a("v_add_u32 v7, 40960, v6")
    for r in range(8, 24):
        a(f"v_mov_b32 v{r}, 0")
    AF = [120, 136, 152]
    def lda(t):
        f = AF[t % 3]
        for rt in range(4):
            va = 6 if rt < 2 else 7
            a(f"ds_read_b64 v[{f+4*rt}:{f+4*rt+1}], v{va} offset:{(rt&1)*20480 + t*1024}")
            a(f"ds_read_b64 v[{f+4*rt+2}:{f+4*rt+3}], v{va} offset:{(rt&1)*20480 + t*1024 + 512}")
    lda(0)
    for t in range(20):
        if t + 1 < 20:
            lda(t+1)
        a(f"s_waitcnt vmcnt({19-t}) lgkmcnt({8 if t + 1 < 20 else 0})")
        f = AF[t % 3]
        for rt in range(4):
            acc = 8 + 4*rt
            a(f"v_mfma_f32_16x16x32_bf16 v[{acc}:{acc+3}], v[{MT+4*t}:{MT+4*t+3}], v[{f+4*rt}:{f+4*rt+3}], v[{acc}:{acc+3}]")
    a("; STAMP 5")
    a("s_barrier")
    a("v_lshrrev_b32 v40, 4, v1")
    a("v_and_b32 v41, 15, v1")
    a(f"v_mul_u32_u24 v42, {OP}, v41")
    a("v_lshl_add_u32 v42, v40, 3, v42")
    a("s_lshl_b32 s30, s4, 5")
    a("v_add_u32 v42, s30, v42")
    for rt in range(4):
        acc = 8 + 4*rt
        a(f"v_cvt_pk_bf16_f32 v{acc}, v{acc}, v{acc+1}")
        a(f"v_cvt_pk_bf16_f32 v{acc+1}, v{acc+2}, v{acc+3}")
        a(f"ds_write_b64 v42, v[{acc}:{acc+1}] offset:{rt*16*OP}")
    a("s_waitcnt lgkmcnt(0)")
    a("s_barrier")
    a("v_lshrrev_b32 v40, 4, v0")
    a("v_and_b32 v41, 15, v0")
    a(f"v_mul_u32_u24 v42, {OP}, v40")
    a("v_lshl_add_u32 v42, v41, 4, v42")
    a("ds_read_b128 v[8:11], v42")
    a(f"ds_read_b128 v[12:15], v42 offset:{32*OP}")
    a("s_lshl_b32 s7, s5, 6")
    a("v_add_u32 v40, s7, v40")
    a("v_mul_u32_u24 v40, 2560, v40")
    a("v_lshl_add_u32 v40, v41, 4, v40")
    a("s_lshl_b32 s30, s6, 8")
    a(f"s_add_u32 s31, s30, {32*2560}")
    a("s_waitcnt lgkmcnt(0)")
    a("buffer_store_dwordx4 v[8:11], v40, s[16:19], s30 offen")
    a("buffer_store_dwordx4 v[12:15], v40, s[16:19], s31 offen")
    a("s_endpgm")
```

```python
from asmlib import *
from partb import srd, WS_PQ, WS_PART, WS_MT, WS_ZF, WS_SIZE, LOG2E

WS_ZP = 0xB10000
STG = 19456
XOFF = 15360
NST = 4
A1_LDS = STG * NST
KVP = 352
L_CMP = 64 * KVP
PSZ = 4 * 420 * 4

def phi_pair(a, x0, x1, t, dst):
    a(f"v_cvt_pk_bf16_f32 v{t}, v{x0}, v{x1}")
    a(f"v_lshlrev_b32 v{t+1}, 16, v{t}")
    a(f"v_and_b32 v{t+2}, s61, v{t}")
    a(f"v_mul_f32 v{t+3}, s60, v{t+1}")
    a(f"v_mul_f32 v{t+4}, s60, v{t+2}")
    a(f"v_exp_f32 v{t+3}, v{t+3}")
    a(f"v_exp_f32 v{t+4}, v{t+4}")
    a(f"v_add_f32 v{t+5}, 1.0, v{t+1}")
    a(f"v_add_f32 v{t+6}, 1.0, v{t+2}")
    a(f"v_cmp_lt_f32 vcc, 0, v{t+1}")
    a(f"v_cmp_lt_f32 s[44:45], 0, v{t+2}")
    a(f"v_cndmask_b32 v{t+3}, v{t+3}, v{t+5}, vcc")
    a(f"v_cndmask_b32 v{t+4}, v{t+4}, v{t+6}, s[44:45]")
    a(f"v_cvt_pk_bf16_f32 v{t}, v{t+3}, v{t+4}")
    a(f"v_lshlrev_b32 v{t+1}, 16, v{t}")
    a(f"v_and_b32 v{t+2}, s61, v{t}")
    a(f"v_add_f32 v{t+1}, s62, v{t+1}")
    a(f"v_add_f32 v{t+2}, s62, v{t+2}")
    a(f"v_cvt_pk_bf16_f32 v{dst}, v{t+1}, v{t+2}")

EXPF = set()
def a1(a):
    a("s_load_dwordx4 s[8:11], s[0:1], 0")
    a("s_load_dwordx2 s[12:13], s[0:1], 96")
    a("s_and_b32 s5, s2, 1")
    a("s_lshl_b32 s5, s5, 4")
    a("s_lshr_b32 s46, s2, 4")
    a("s_add_u32 s5, s5, s46")
    a("s_and_b32 s6, s2, 6")
    a("s_bfe_u32 s47, s2, 0x10003")
    a("s_add_u32 s6, s6, s47")
    a("v_and_b32 v1, 63, v0")
    a("v_lshrrev_b32 v4, 6, v0")
    a("v_readfirstlane_b32 s4, v4")
    a("; STAMP 0")
    if "prio" in EXPF: a("s_setprio 3")
    a("s_cmp_lt_u32 s4, 4")
    a("s_cbranch_scc1 L_a1_cons")
    a("v_and_b32 v4, 3, v4")
    a("s_and_b32 s4, s4, 3")
    a("s_mul_i32 s7, s6, 160")
    for jj in range(4):
        g = 16; r = 17; c = 18; sg = 19
        a(f"v_lshl_add_u32 v{g}, v4, 6, v1")
        a(f"v_add_u32 v{g}, {256*jj}, v{g}")
        a(f"v_min_u32 v{g}, 959, v{g}")
        a(f"v_mul_u32_u24 v{r}, 2185, v{g}")
        a(f"v_lshrrev_b32 v{r}, 16, v{r}")
        a(f"v_mul_u32_u24 v{c}, 30, v{r}")
        a(f"v_sub_u32 v{c}, v{g}, v{c}")
        a(f"v_mul_u32_u24 v{sg}, 6554, v{c}")
        a(f"v_lshrrev_b32 v{sg}, 16, v{sg}")
        a(f"v_mul_u32_u24 v20, 10, v{sg}")
        a(f"v_sub_u32 v{c}, v{c}, v20")
        a(f"v_mul_u32_u24 v{r}, 3840, v{r}")
        a(f"v_mul_u32_u24 v{sg}, 1280, v{sg}")
        a(f"v_lshl_add_u32 v{r}, v{c}, 4, v{r}")
        a(f"v_add3_u32 v{8+jj}, v{r}, v{sg}, s7")
    a("v_lshrrev_b32 v16, 2, v1")
    a("v_and_b32 v17, 3, v1")
    a("v_bfe_u32 v18, v1, 4, 2")
    a("v_xor_b32 v17, v17, v18")
    a("s_lshl_b32 s7, s5, 6")
    a("v_lshl_add_u32 v16, v4, 4, v16")
    a("v_add_u32 v16, s7, v16")
    a("v_mul_u32_u24 v12, 1280, v16")
    a("v_lshl_add_u32 v12, v17, 4, v12")
    a("s_waitcnt lgkmcnt(0)")
    srd(a, 16, 8, 2048*640*2); srd(a, 20, 10, 640*1920*2)
    a("s_lshl_b32 s28, s4, 10")
    a("s_mov_b32 s29, 0")
    a("s_mov_b32 s30, 0")
    def issue(slot, nw):
        for jj in range(nw):
            a(f"s_add_u32 m0, s28, {slot*STG + jj*4096}")
            a(f"buffer_load_dwordx4 v{8+jj}, s[20:23], s29 offen lds")
        a(f"s_add_u32 m0, s28, {slot*STG + XOFF}")
        a(f"buffer_load_dwordx4 v12, s[16:19], s30 offen lds")
        a("s_add_u32 s29, s29, 122880")
        a("s_add_u32 s30, s30, 64")
    a("v_lshrrev_b32 v23, 3, v1")
    a("v_lshl_add_u32 v23, v4, 3, v23")
    a("s_lshl_b32 s32, s5, 6")
    a("s_lshl_b32 s33, s47, 5")
    a("s_add_u32 s32, s32, s33")
    a("v_add_u32 v23, s32, v23")
    a("v_mul_u32_u24 v23, 1280, v23")
    a("v_and_b32 v24, 7, v1")
    a("v_lshl_add_u32 v23, v24, 4, v23")
    a("v_min_u32 v24, 29, v1")
    a("v_mul_u32_u24 v27, 6554, v24")
    a("v_lshrrev_b32 v27, 16, v27")
    a("v_mul_u32_u24 v28, 10, v27")
    a("v_sub_u32 v26, v24, v28")
    a("v_mul_u32_u24 v27, 1280, v27")
    a("v_lshl_add_u32 v25, v26, 4, v27")
    a("s_lshl_b32 s32, s46, 2")
    a("s_add_u32 s32, s32, s4")
    a("s_mul_i32 s32, s32, 3840")
    a("s_mul_i32 s33, s6, 160")
    a("s_add_u32 s32, s32, s33")
    def pfb(j):
        a(f"s_add_u32 s33, s32, {j*64*3840}")
        a(f"buffer_load_dwordx4 v[32:35], v25, s[20:23], s33 offen")
        a(f"buffer_load_dwordx4 v[36:39], v23, s[16:19], 0 offen offset:{128*j}")
    a("s_cmp_eq_u32 s4, 3")
    a("s_cbranch_scc1 L_a1_prod3")
    for nw in (4, 3):
        if nw == 3: a.label("L_a1_prod3")
        seq = []
        def do_issue(stg):
            issue(stg % 4, nw); seq.extend([('d', stg)]*(nw+1))
        def do_pf(j):
            pfb(j); seq.extend([('p', j)]*2)
        for stg in range(3):
            do_issue(stg)
        PFD = 4
        for j in range(1, PFD+1): do_pf(j)
        nextj = PFD + 1
        for t in range(20):
            last = max(i for i, o in enumerate(seq) if o == ('d', t))
            a(f"s_waitcnt vmcnt({len(seq) - 1 - last})")
            a("s_barrier")
            if t + 3 < 20:
                do_issue(t+3)
            if t % 2 == 0 and nextj < 10:
                do_pf(nextj); nextj += 1
        a("s_endpgm")
    a.label("L_a1_cons")
    a("v_lshrrev_b32 v16, 4, v1")
    a("v_bfe_u32 v17, v1, 2, 2")
    a("v_and_b32 v18, 3, v1")
    a("v_lshl_add_u32 v13, v16, 2, v17")
    a("v_mul_u32_u24 v13, 480, v13")
    a("v_lshl_add_u32 v13, v18, 3, v13")
    a("v_lshl_add_u32 v13, v4, 5, v13")
    a("v_and_b32 v19, 15, v1")
    a("v_lshrrev_b32 v20, 1, v16")
    a("v_lshrrev_b32 v21, 2, v19")
    a("v_xor_b32 v20, v20, v21")
    a("v_xor_b32 v21, 2, v20")
    a("v_and_b32 v22, 1, v16")
    a("v_lshlrev_b32 v22, 3, v22")
    a("v_lshl_add_u32 v22, v19, 6, v22")
    a(f"v_add_u32 v22, {XOFF}, v22")
    a("v_lshl_add_u32 v14, v20, 4, v22")
    a("v_lshl_add_u32 v15, v21, 4, v22")
    a(f"v_add_u32 v2, {2*STG}, v13")
    a(f"v_add_u32 v3, {2*STG}, v14")
    a(f"v_add_u32 v5, {2*STG}, v15")
    a("s_waitcnt lgkmcnt(0)")
    srd(a, 24, 12, WS_SIZE)
    srd(a, 16, 8, 2048*640*2); srd(a, 20, 10, 640*1920*2)
    ACC = 52; F = 20
    for r in range(ACC, ACC+64):
        a(f"v_mov_b32 v{r}, 0")
    a("s_mov_b32 s31, 0")
    a.label("L_a1_loop")
    for stg in range(20 if "unroll" in EXPF else 4):
        if "unroll" in EXPF and stg % 2 == 0 and stg < 16: a(f"; STAMP {3 + stg//2}")
        a("s_barrier")
        stg = stg % 4
        base = (stg & 1) * STG
        vb, va, va2 = (13, 14, 15) if stg < 2 else (2, 3, 5)
        for ct in range(4):
            a(f"ds_read_b64_tr_b16 v[{F+4*ct}:{F+1+4*ct}], v{vb} offset:{base + ct*128}")
            a(f"ds_read_b64_tr_b16 v[{F+2+4*ct}:{F+3+4*ct}], v{vb} offset:{base + ct*128 + 7680}")
            rt = ct
            a(f"ds_read_b64 v[{F+16+4*rt}:{F+17+4*rt}], v{va} offset:{base + rt*1024}")
            a(f"ds_read_b64 v[{F+18+4*rt}:{F+19+4*rt}], v{va2} offset:{base + rt*1024}")
        for lvl in range(4):
            a(f"s_waitcnt lgkmcnt({12 - 4*lvl})")
            pairs = [(lvl, j) for j in range(lvl+1)] + [(j, lvl) for j in range(lvl)]
            for (ct, rt) in pairs:
                acc = ACC + 16*ct + 4*rt
                a(f"v_mfma_f32_16x16x32_bf16 v[{acc}:{acc+3}], v[{F+4*ct}:{F+3+4*ct}], v[{F+16+4*rt}:{F+19+4*rt}], v[{acc}:{acc+3}]")
    if "unroll" not in EXPF:
        a("s_add_u32 s31, s31, 1")
        a("s_cmp_lt_u32 s31, 5")
        a("s_cbranch_scc1 L_a1_loop")
    a("s_barrier")
    a("; STAMP 1")
    a("s_waitcnt vmcnt(0)")
    a(f"s_mov_b32 s60, {LOG2E}")
    a("s_mov_b32 s61, 0xffff0000")
    a("s_mov_b32 s62, 0x358637bd")
    a("v_lshlrev_b32 v5, 3, v1")
    a(f"v_mul_u32_u24 v6, {KVP}, v19")
    a("v_lshl_add_u32 v6, v16, 3, v6")
    for slot in range(4):
        a(f"s_add_u32 s32, s4, {4*slot}")
        a("s_cmp_ge_u32 s32, 10")
        a(f"s_cbranch_scc1 L_a1_ep{slot}_v")
        for rt in range(4):
            acc = ACC + 16*slot + 4*rt
            phi_pair(a, acc, acc+1, 116, 20+8*slot+2*rt)
            phi_pair(a, acc+2, acc+3, 8, 21+8*slot+2*rt)
        a(f"s_branch L_a1_ep{slot}_done")
        a.label(f"L_a1_ep{slot}_v")
        for rt in range(4):
            acc = ACC + 16*slot + 4*rt
            a(f"v_cvt_pk_bf16_f32 v{20+8*slot+2*rt}, v{acc}, v{acc+1}")
            a(f"v_cvt_pk_bf16_f32 v{21+8*slot+2*rt}, v{acc+2}, v{acc+3}")
        a.label(f"L_a1_ep{slot}_done")
    for slot in range(4):
        a(f"s_add_u32 s32, s4, {4*slot}")
        a("s_cmp_ge_u32 s32, 15")
        a(f"s_cbranch_scc1 L_a1_st{slot}_done")
        a("s_cmp_ge_u32 s32, 5")
        a(f"s_cbranch_scc1 L_a1_st{slot}_lds")
        a("s_mul_i32 s35, s6, 5")
        a("s_add_u32 s35, s35, s32")
        a("s_lshl_b32 s35, s35, 9")
        a(f"s_mul_i32 s36, s5, {4*40*512}")
        a("s_add_u32 s35, s35, s36")
        for rt in range(4):
            a(f"s_add_u32 s36, s35, {WS_PQ + rt*40*512}")
            a(f"buffer_store_dwordx2 v[{20+8*slot+2*rt}:{21+8*slot+2*rt}], v5, s[24:27], s36 offen")
        a(f"s_branch L_a1_st{slot}_done")
        a.label(f"L_a1_st{slot}_lds")
        a("s_sub_u32 s35, s32, 5")
        a("s_lshl_b32 s35, s35, 5")
        a("v_add_u32 v7, s35, v6")
        for rt in range(4):
            a(f"ds_write_b64 v7, v[{20+8*slot+2*rt}:{21+8*slot+2*rt}] offset:{rt*16*KVP}")
        a.label(f"L_a1_st{slot}_done")
    a("s_waitcnt lgkmcnt(0)")
    a("s_barrier")
    a("; STAMP 2")
    a("v_lshl_add_u32 v13, v16, 2, v17")
    a(f"v_mul_u32_u24 v13, {KVP}, v13")
    a("v_lshl_add_u32 v13, v18, 3, v13")
    a("s_mul_i32 s35, s4, 40")
    a("v_add_u32 v13, s35, v13")
    for ks in range(2):
        for tl in range(2):
            a(f"ds_read_b64_tr_b16 v[{32+8*ks+4*tl}:{33+8*ks+4*tl}], v13 offset:{ks*32*KVP + tl*32}")
            a(f"ds_read_b64_tr_b16 v[{34+8*ks+4*tl}:{35+8*ks+4*tl}], v13 offset:{(ks*32+16)*KVP + tl*32}")
            a(f"ds_read_b64_tr_b16 v[{48+8*ks+4*tl}:{49+8*ks+4*tl}], v13 offset:{ks*32*KVP + 160 + tl*32}")
            a(f"ds_read_b64_tr_b16 v[{50+8*ks+4*tl}:{51+8*ks+4*tl}], v13 offset:{(ks*32+16)*KVP + 160 + tl*32}")
    a("v_cmp_eq_u32 vcc, 4, v19")
    a("v_mov_b32 v24, 0x3f803f80")
    a("s_waitcnt lgkmcnt(0)")
    for ks in range(2):
        for k in range(4):
            a(f"v_cndmask_b32 v{52+8*ks+k}, v{52+8*ks+k}, v24, vcc")
    for dtl in range(2):
        for etl in range(2):
            acc = 64 + 8*dtl + 4*etl
            a(f"v_mfma_f32_16x16x32_bf16 v[{acc}:{acc+3}], v[{32+4*dtl}:{35+4*dtl}], v[{48+4*etl}:{51+4*etl}], 0")
            a(f"v_mfma_f32_16x16x32_bf16 v[{acc}:{acc+3}], v[{40+4*dtl}:{43+4*dtl}], v[{56+4*etl}:{59+4*etl}], v[{acc}:{acc+3}]")
    a("v_mul_u32_u24 v24, 84, v16")
    a("v_add_u32 v24, v24, v19")
    a("s_mul_i32 s35, s4, 420")
    a("v_add_u32 v24, s35, v24")
    a("v_lshlrev_b32 v24, 2, v24")
    a(f"v_add_u32 v24, {L_CMP}, v24")
    a("v_cmp_gt_u32 s[36:37], 5, v19")
    a("v_cmp_gt_u32 s[38:39], 16, v1")
    a("s_and_b64 s[40:41], s[36:37], s[38:39]")
    for dtl in range(2):
        for etl in range(2):
            acc = 64 + 8*dtl + 4*etl
            m = {(0,0): None, (0,1): "s[36:37]", (1,0): "s[38:39]", (1,1): "s[40:41]"}[(dtl, etl)]
            if m: a(f"s_mov_b64 exec, {m}")
            for r in range(4):
                a(f"ds_write_b32 v24, v{acc+r} offset:{((16*dtl + r)*21 + 16*etl)*4}")
            if m: a("s_mov_b64 exec, -1")
    a("s_waitcnt lgkmcnt(0)")
    a("s_barrier")
    a("v_lshlrev_b32 v24, 4, v0")
    a("s_lshl_b32 s35, s5, 3")
    a("s_add_u32 s35, s35, s6")
    a(f"s_mul_i32 s35, s35, {PSZ}")
    a(f"s_add_u32 s35, s35, {WS_PART}")
    a(f"ds_read_b128 v[32:35], v24 offset:{L_CMP}")
    a(f"ds_read_b128 v[36:39], v24 offset:{L_CMP + 4096}")
    a("v_min_u32 v25, 79, v0")
    a("v_mul_u32_u24 v26, 84, v25")
    a(f"ds_read_b32 v40, v26 offset:{L_CMP + 80}")
    a("s_mul_i32 s36, s5, 2560")
    a("s_mul_i32 s37, s6, 320")
    a("s_add_u32 s36, s36, s37")
    a(f"s_add_u32 s36, s36, {WS_ZP}")
    a("v_lshlrev_b32 v25, 2, v25")
    a("s_waitcnt lgkmcnt(0)")
    a("buffer_store_dword v40, v25, s[24:27], s36 offen")
    a("buffer_store_dwordx4 v[32:35], v24, s[24:27], s35 offen")
    a(f"v_cmp_gt_u32 vcc, {(PSZ - 4096)//16}, v0")
    a("s_and_saveexec_b64 s[36:37], vcc")
    a("s_add_u32 s35, s35, 4096")
    a("buffer_store_dwordx4 v[36:39], v24, s[24:27], s35 offen")
    a("s_endpgm")

WOP = 1312
L_KVT = 32 * WOP
A2R_LDS = L_KVT + 32 * 80

WOA = [8,9,10,11,12,13,14,15,60,61]
def a2r(a):
    a("s_load_dwordx2 s[8:9], s[0:1], 16")
    a("s_load_dwordx2 s[12:13], s[0:1], 96")
    a("v_and_b32 v1, 63, v0")
    a("v_lshrrev_b32 v4, 6, v0")
    a("v_readfirstlane_b32 s4, v4")
    a("s_lshr_b32 s5, s2, 2")
    a("s_and_b32 s6, s2, 3")
    a("; STAMP 0")
    a("s_waitcnt lgkmcnt(0)")
    srd(a, 16, 8, 640*640*2); srd(a, 24, 12, WS_SIZE)
    a(f"s_mul_i32 s29, s5, {PSZ}")
    a("s_mul_i32 s30, s6, 1680")
    a("s_add_u32 s29, s29, s30")
    a(f"s_add_u32 s29, s29, {WS_PART}")
    a("v_lshlrev_b32 v25, 2, v0")
    a("v_add_u32 v26, 1024, v25")
    a("v_min_u32 v26, 1676, v26")
    a("s_mov_b32 s34, s29")
    for rb in range(32):
        a(f"buffer_load_dword v{28+rb}, v25, s[24:27], s34 offen")
        a(f"buffer_load_dword v{112+rb}, v26, s[24:27], s34 offen")
        a(f"s_add_u32 s34, s34, {8*PSZ}")
    a("s_mul_i32 s28, s2, 25600")
    for i in range(10):
        a(f"v_add_u32 v16, {256*i}, v0")
        a("v_mul_u32_u24 v17, 52429, v16")
        a("v_lshrrev_b32 v17, 22, v17")
        a("v_mul_u32_u24 v18, 80, v17")
        a("v_sub_u32 v18, v16, v18")
        a("v_mul_u32_u24 v19, 1280, v17")
        a("v_lshl_add_u32 v19, v18, 4, v19")
        a("v_cmp_gt_u32 vcc, 20, v17")
        a("v_cndmask_b32 v19, -1, v19, vcc")
        a(f"v_mul_u32_u24 v{WOA[i]}, {WOP}, v17")
        a(f"v_lshl_add_u32 v{WOA[i]}, v18, 4, v{WOA[i]}")
        a(f"buffer_load_dwordx4 v[{64+4*i}:{67+4*i}], v19, s[16:19], s28 offen")
    a("v_mov_b32 v20, 0"); a("v_mov_b32 v21, 0"); a("v_mov_b32 v22, 0"); a("v_mov_b32 v23, 0")
    a("v_lshlrev_b32 v24, 4, v0")
    a("v_cmp_gt_u32 vcc, 160, v0")
    a("s_and_saveexec_b64 s[30:31], vcc")
    a(f"ds_write_b128 v24, v[20:23] offset:{L_KVT}")
    a("s_mov_b64 exec, s[30:31]")
    a("s_waitcnt lgkmcnt(0)")
    a("s_barrier")
    a("; STAMP 1")
    a("s_waitcnt vmcnt(10)")
    a("; STAMP 2")
    for rnd in range(2):
        b = 28 if rnd == 0 else 112
        for st in (16, 8, 4, 2, 1):
            for k in range(st):
                a(f"v_add_f32 v{b+k}, v{b+k}, v{b+k+st}")
        if rnd == 1:
            a("v_cmp_gt_u32 vcc, 164, v0")
            a("s_and_saveexec_b64 s[30:31], vcc")
        a(f"v_add_u32 v16, {256*rnd}, v0")
        a("v_mul_u32_u24 v17, 49933, v16")
        a("v_lshrrev_b32 v17, 20, v17")
        a("v_mul_u32_u24 v18, 21, v17")
        a("v_sub_u32 v18, v16, v18")
        a("v_cmp_eq_u32 s[32:33], 20, v18")
        a(f"v_cvt_pk_bf16_f32 v27, v{b}, v{b}")
        a("v_mul_u32_u24 v26, 80, v17")
        a("v_lshl_add_u32 v26, v18, 1, v26")
        a("s_mov_b64 s[36:37], exec")
        a("s_andn2_b64 exec, exec, s[32:33]")
        a(f"ds_write_b16 v26, v27 offset:{L_KVT}")
        a("s_and_b64 exec, s[36:37], s[32:33]")
        a("s_mul_i32 s35, s2, 40")
        a(f"s_add_u32 s35, s35, {WS_ZF}")
        a("v_lshlrev_b32 v26, 1, v17")
        a("buffer_store_short v27, v26, s[24:27], s35 offen")
        a("s_mov_b64 exec, -1")
    a("s_waitcnt vmcnt(0)")
    for i in range(10):
        a(f"ds_write_b128 v{WOA[i]}, v[{64+4*i}:{67+4*i}]")
    a("s_waitcnt lgkmcnt(0)")
    a("s_barrier")
    a("; STAMP 3")
    a("v_lshrrev_b32 v16, 4, v1")
    a("v_bfe_u32 v17, v1, 2, 2")
    a("v_and_b32 v18, 3, v1")
    a("v_and_b32 v19, 15, v1")
    a("v_mul_u32_u24 v20, 80, v19")
    a("v_lshl_add_u32 v20, v16, 3, v20")
    for dtile in range(2):
        a(f"ds_read_b64 v[{32+4*dtile}:{33+4*dtile}], v20 offset:{L_KVT + dtile*16*80}")
        a(f"ds_read_b64 v[{34+4*dtile}:{35+4*dtile}], v20 offset:{L_KVT + dtile*16*80 + 32}")
    a("v_lshl_add_u32 v21, v16, 2, v17")
    a(f"v_mul_u32_u24 v21, {WOP}, v21")
    a("v_lshl_add_u32 v21, v18, 3, v21")
    a("s_mul_i32 s35, s4, 320")
    a("v_add_u32 v21, s35, v21")
    a("s_mul_i32 s35, s2, 5")
    for dtile in range(2):
        d = 22 + dtile
        a(f"v_add_u32 v24, s35, v16")
        if dtile: a("v_add_u32 v24, 4, v24")
        a("v_lshrrev_b32 v25, 3, v24")
        a("v_and_b32 v26, 3, v24")
        a("v_bfe_u32 v27, v24, 2, 1")
        a(f"v_lshlrev_b32 v{d}, 10, v25")
        a(f"v_lshl_add_u32 v{d}, v26, 8, v{d}")
        a(f"v_lshl_add_u32 v{d}, v19, 4, v{d}")
        a(f"v_lshl_add_u32 v{d}, v27, 3, v{d}")
    a(f"s_mul_i32 s36, s4, {10*20*1024}")
    a(f"s_add_u32 s36, s36, {WS_MT}")
    a("v_cmp_gt_u32 s[38:39], 16, v1")
    for ct in range(10):
        a(f"ds_read_b64_tr_b16 v[{40+4*ct}:{41+4*ct}], v21 offset:{ct*32}")
        a(f"ds_read_b64_tr_b16 v[{42+4*ct}:{43+4*ct}], v21 offset:{ct*32 + 16*WOP}")
    for ct in range(10):
        a(f"s_waitcnt lgkmcnt({min(15, 18 - 2*ct)})")
        r0 = 80 + 8*(ct & 1)
        a(f"v_mfma_f32_16x16x32_bf16 v[{r0}:{r0+3}], v[32:35], v[{40+4*ct}:{43+4*ct}], 0")
        a(f"v_mfma_f32_16x16x32_bf16 v[{r0+4}:{r0+7}], v[36:39], v[{40+4*ct}:{43+4*ct}], 0")
        p = 96 + 4*(ct & 1)
        a(f"v_cvt_pk_bf16_f32 v{p}, v{r0}, v{r0+1}")
        a(f"v_cvt_pk_bf16_f32 v{p+1}, v{r0+2}, v{r0+3}")
        a(f"v_cvt_pk_bf16_f32 v{p+2}, v{r0+4}, v{r0+5}")
        a(f"v_cvt_pk_bf16_f32 v{p+3}, v{r0+6}, v{r0+7}")
        a(f"s_add_u32 s37, s36, {ct*20*1024}")
        a(f"buffer_store_dwordx2 v[{p}:{p+1}], v22, s[24:27], s37 offen")
        a("s_mov_b64 exec, s[38:39]")
        a(f"buffer_store_dwordx2 v[{p+2}:{p+3}], v23, s[24:27], s37 offen")
        a("s_mov_b64 exec, -1")
    a("s_endpgm")


SCL_LDS = 40960 + 1280
def scl(a, wg_base):
    a(f"s_sub_u32 s5, s2, {wg_base}")
    a("s_load_dwordx2 s[12:13], s[0:1], 96")
    a("v_and_b32 v1, 63, v0")
    a("v_lshrrev_b32 v4, 6, v0")
    a("v_readfirstlane_b32 s4, v4")
    a("v_lshlrev_b32 v5, 4, v1")
    a("v_min_u32 v6, 159, v0")
    a("v_lshlrev_b32 v6, 4, v6")
    a("s_waitcnt lgkmcnt(0)")
    srd(a, 24, 12, WS_SIZE)
    a(f"s_mov_b32 s30, {WS_ZP}")
    for rb in range(16):
        a(f"buffer_load_dwordx4 v[{16+4*rb}:{19+4*rb}], v6, s[24:27], s30 offen")
        a("s_add_u32 s30, s30, 2560")
    a("s_mul_i32 s28, s5, 40960")
    a("s_mul_i32 s29, s4, 10240")
    a("s_add_u32 s28, s28, s29")
    for i in range(10):
        a(f"s_add_u32 m0, s29, {i*1024}")
        a(f"s_add_u32 s31, s28, {WS_PQ + i*1024}")
        a("buffer_load_dwordx4 v5, s[24:27], s31 offen lds")
    for rb in range(16):
        a(f"buffer_load_dwordx4 v[{80+4*rb}:{83+4*rb}], v6, s[24:27], s30 offen")
        a("s_add_u32 s30, s30, 2560")
    a("s_waitcnt vmcnt(26)")
    for st in (8, 4, 2, 1):
        for k in range(st):
            for c in range(4):
                a(f"v_add_f32 v{16+4*k+c}, v{16+4*k+c}, v{16+4*(k+st)+c}")
    a("s_waitcnt vmcnt(0)")
    for st in (8, 4, 2, 1):
        for k in range(st):
            for c in range(4):
                a(f"v_add_f32 v{80+4*k+c}, v{80+4*k+c}, v{80+4*(k+st)+c}")
    for c in range(4):
        a(f"v_add_f32 v{16+c}, v{16+c}, v{80+c}")
    a("v_cvt_pk_bf16_f32 v16, v16, v17")
    a("v_cvt_pk_bf16_f32 v17, v18, v19")
    a("v_lshrrev_b32 v6, 1, v6")
    a("ds_write_b64 v6, v[16:17] offset:40960")
    a("s_waitcnt lgkmcnt(0)")
    a("s_barrier")
    a("s_mov_b32 s61, 0xffff0000")
    a("s_mov_b32 s62, 0x358637bd")
    a("v_and_b32 v6, 31, v0")
    a("v_lshrrev_b32 v7, 5, v0")
    a("v_lshrrev_b32 v8, 4, v6")
    a("v_mul_u32_u24 v8, 20480, v8")
    a("v_and_b32 v9, 15, v6")
    a("v_lshl_add_u32 v8, v9, 3, v8")
    a("v_mul_u32_u24 v9, 2560, v7")
    a("v_add_u32 v8, v8, v9")
    a("v_mul_u32_u24 v9, 160, v7")
    PB, ZB = 60, 80
    def rd(hd):
        P = PB + 10*(hd & 1); Z = ZB + 10*(hd & 1)
        for i in range(5):
            qd = 5*hd + i
            a(f"ds_read_b64 v[{P+2*i}:{P+2*i+1}], v8 offset:{(qd>>2)*512 + (qd&3)*128}")
            a(f"ds_read_b64 v[{Z+2*i}:{Z+2*i+1}], v9 offset:{40960 + hd*40 + 8*i}")
    rd(0)
    for hd in range(4):
        P = PB + 10*(hd & 1); Z = ZB + 10*(hd & 1)
        if hd + 1 < 4:
            rd(hd+1)
            a(f"s_waitcnt lgkmcnt({10 if hd == 0 else 15})")
        else:
            a("s_waitcnt lgkmcnt(0)")
        a(f"v_dot2_f32_bf16 v36, v{P}, v{Z}, 0")
        a(f"v_dot2_f32_bf16 v37, v{P+1}, v{Z+1}, 0")
        for i in range(2, 10, 2):
            a(f"v_dot2_f32_bf16 v36, v{P+i}, v{Z+i}, v36")
            a(f"v_dot2_f32_bf16 v37, v{P+i+1}, v{Z+i+1}, v37")
        for i in range(10):
            a(f"v_lshlrev_b32 v{16+2*i}, 16, v{P+i}")
            a(f"v_and_b32 v{17+2*i}, s61, v{P+i}")
        a("v_add_f32 v36, v36, v37")
        a("v_cvt_pk_bf16_f32 v36, v36, v36")
        a("v_lshlrev_b32 v36, 16, v36")
        a("v_add_f32 v36, s62, v36")
        a("v_cvt_pk_bf16_f32 v36, v36, v36")
        a("v_lshlrev_b32 v36, 16, v36")
        a("v_rcp_f32 v36, v36")
        for i in range(10):
            a(f"v_mul_f32 v{16+2*i}, v{16+2*i}, v36")
            a(f"v_mul_f32 v{17+2*i}, v{17+2*i}, v36")
            a(f"v_cvt_pk_bf16_f32 v{P+i}, v{16+2*i}, v{17+2*i}")
        for i in range(5):
            qd = 5*hd + i
            a(f"ds_write_b64 v8, v[{P+2*i}:{P+2*i+1}] offset:{(qd>>2)*512 + (qd&3)*128}")
    a("s_waitcnt lgkmcnt(0)")
    a("s_barrier")
    a("v_add_u32 v6, s29, v5")
    for i in range(10):
        a(f"ds_read_b128 v[{16+4*i}:{19+4*i}], v6 offset:{i*1024}")
    for i in range(10):
        a(f"s_waitcnt lgkmcnt({9-i})")
        a(f"s_add_u32 s31, s28, {WS_PQ + i*1024}")
        a(f"buffer_store_dwordx4 v[{16+4*i}:{19+4*i}], v5, s[24:27], s31 offen")
    a("s_endpgm")

L_Z = 4 * 40 * 512
A3_LDS = L_Z
OP = 272

def a3(a):
    a("s_load_dwordx2 s[8:9], s[0:1], 80")
    a("s_load_dwordx2 s[12:13], s[0:1], 96")
    a("v_and_b32 v1, 63, v0")
    a("v_lshrrev_b32 v4, 6, v0")
    a("v_readfirstlane_b32 s4, v4")
    a("s_lshr_b32 s7, s2, 3")
    a("s_mul_i32 s5, s7, 52429")
    a("s_lshr_b32 s5, s5, 18")
    a("s_mul_i32 s6, s5, 5")
    a("s_sub_u32 s6, s7, s6")
    a("s_and_b32 s7, s2, 7")
    a("s_lshl_b32 s7, s7, 2")
    a("s_add_u32 s5, s5, s7")
    a("; STAMP 0")
    a("v_lshlrev_b32 v5, 4, v1")
    a("s_waitcnt lgkmcnt(0)")
    srd(a, 16, 8, 2048*1280*2); srd(a, 24, 12, WS_SIZE)
    a(f"s_mul_i32 s28, s5, {4*40*512}")
    a("s_mul_i32 s29, s4, 10240")
    a("s_add_u32 s28, s28, s29")
    for i in range(10):
        a(f"s_add_u32 m0, s29, {i*1024}")
        a(f"s_add_u32 s30, s28, {WS_PQ + i*1024}")
        a("buffer_load_dwordx4 v5, s[24:27], s30 offen lds")
    a("s_lshl_b32 s29, s6, 3")
    a("s_add_u32 s29, s29, s4")
    a("s_mul_i32 s34, s29, 20480")
    a(f"s_add_u32 s34, s34, {WS_MT}")
    MT = 40
    def mtload(t):
        if t % 4 == 0 and t: a("s_add_u32 s34, s34, 4096")
        a(f"buffer_load_dwordx4 v[{MT+4*t}:{MT+4*t+3}], v5, s[24:27], s34 offen offset:{(t%4)*1024}")
    for t_ in range(20): mtload(t_)
    a("; STAMP 1")
    a("s_waitcnt vmcnt(20)")
    a("s_barrier")
    a("; STAMP 4")
    a("v_lshlrev_b32 v6, 3, v1")
    a("v_add_u32 v7, 40960, v6")
    for r in range(8, 24):
        a(f"v_mov_b32 v{r}, 0")
    AF = [120, 136, 152]
    def lda(t):
        f = AF[t % 3]
        for rt in range(4):
            va = 6 if rt < 2 else 7
            a(f"ds_read_b64 v[{f+4*rt}:{f+4*rt+1}], v{va} offset:{(rt&1)*20480 + t*1024}")
            a(f"ds_read_b64 v[{f+4*rt+2}:{f+4*rt+3}], v{va} offset:{(rt&1)*20480 + t*1024 + 512}")
    lda(0)
    for t in range(20):
        if t + 1 < 20:
            lda(t+1)
        a(f"s_waitcnt vmcnt({19-t}) lgkmcnt({8 if t + 1 < 20 else 0})")
        f = AF[t % 3]
        for rt in range(4):
            acc = 8 + 4*rt
            a(f"v_mfma_f32_16x16x32_bf16 v[{acc}:{acc+3}], v[{MT+4*t}:{MT+4*t+3}], v[{f+4*rt}:{f+4*rt+3}], v[{acc}:{acc+3}]")
    a("; STAMP 5")
    a("s_barrier")
    a("v_lshrrev_b32 v40, 4, v1")
    a("v_and_b32 v41, 15, v1")
    a(f"v_mul_u32_u24 v42, {OP}, v41")
    a("v_lshl_add_u32 v42, v40, 3, v42")
    a("s_lshl_b32 s30, s4, 5")
    a("v_add_u32 v42, s30, v42")
    for rt in range(4):
        acc = 8 + 4*rt
        a(f"v_cvt_pk_bf16_f32 v{acc}, v{acc}, v{acc+1}")
        a(f"v_cvt_pk_bf16_f32 v{acc+1}, v{acc+2}, v{acc+3}")
        a(f"ds_write_b64 v42, v[{acc}:{acc+1}] offset:{rt*16*OP}")
    a("s_waitcnt lgkmcnt(0)")
    a("s_barrier")
    a("v_lshrrev_b32 v40, 4, v0")
    a("v_and_b32 v41, 15, v0")
    a(f"v_mul_u32_u24 v42, {OP}, v40")
    a("v_lshl_add_u32 v42, v41, 4, v42")
    a("ds_read_b128 v[8:11], v42")
    a(f"ds_read_b128 v[12:15], v42 offset:{32*OP}")
    a("s_lshl_b32 s7, s5, 6")
    a("v_add_u32 v40, s7, v40")
    a("v_mul_u32_u24 v40, 2560, v40")
    a("v_lshl_add_u32 v40, v41, 4, v40")
    a("s_lshl_b32 s30, s6, 8")
    a(f"s_add_u32 s31, s30, {32*2560}")
    a("s_waitcnt lgkmcnt(0)")
    a("buffer_store_dwordx4 v[8:11], v40, s[16:19], s30 offen")
    a("buffer_store_dwordx4 v[12:15], v40, s[16:19], s31 offen")
    a("s_endpgm")
```

```python
from asmlib import *

DEBUG_DUMP = False
WS_PQ = 0
WS_PART = 0x280000
PSZ = 18 * 1024
WS_KX = 0x700000
KXP = 4416
WS_MT = 0xA00000
WS_ZF = 0xB00000
WS_SIZE = 0x1000000
WS_SIZE2 = 0x2000000
LOG2E = "0x3fb8aa3b"
NLOG2E = "0xbfb8aa3b"

def srd(a, d, base, nbytes):
    a(f"s_mov_b32 s{d}, s{base}")
    a(f"s_mov_b32 s{d+1}, s{base+1}")
    a(f"s_mov_b32 s{d+2}, {nbytes}")
    a(f"s_mov_b32 s{d+3}, 0x00020000")

def emit_p0(a, vi, d0, d1, d2, t0, t1):
    a(f"v_and_b32 v{d0}, 7, v{vi}")
    a(f"v_and_b32 v{t0}, 8, v{vi}")
    a(f"v_lshlrev_b32 v{t0}, 4, v{t0}")
    a(f"v_or_b32 v{d0}, v{d0}, v{t0}")
    a(f"v_and_b32 v{t0}, 4, v{vi}")
    a(f"v_lshlrev_b32 v{t0}, 5, v{t0}")
    a(f"v_and_b32 v{t1}, 3, v{vi}")
    a(f"v_lshlrev_b32 v{t1}, 1, v{t1}")
    a(f"v_add3_u32 v{d1}, v{t0}, v{t1}, 0")
    a(f"v_add_u32 v{d1}, 0x100, v{d1}")
    a(f"v_and_b32 v{t0}, 6, v{vi}")
    a(f"v_lshlrev_b32 v{t0}, 6, v{t0}")
    a(f"v_and_b32 v{t1}, 1, v{vi}")
    a(f"v_lshlrev_b32 v{t1}, 2, v{t1}")
    a(f"v_add_u32 v{t0}, v{t0}, v{t1}")
    a(f"v_add_u32 v{t0}, 0x200, v{t0}")
    a(f"v_cmp_gt_u32 vcc, 8, v{vi}")
    a(f"v_cndmask_b32 v{d1}, v{t0}, v{d1}, vcc")
    a(f"v_lshlrev_b32 v{t0}, 7, v{vi}")
    a(f"v_add_u32 v{t0}, 0x400, v{t0}")
    a(f"v_mov_b32 v{t1}, 0x800")
    a(f"v_cndmask_b32 v{d2}, v{t1}, v{t0}, vcc")

KG_LDS = 3 * 12288
ATC = ['0x3e22f982', '0xbd594a64', '0x3d022dde', '0xbcb6bf74', '0x3c8127ca', '0xbc1ace2a', '0x3b7c1000', '0xba42c9cd']
def kgen(a, wg_base):
    a(f"s_sub_u32 s3, s2, {wg_base}")
    a("s_load_dwordx8 s[8:15], s[0:1], 32")
    a("s_load_dwordx2 s[16:17], s[0:1], 64")
    a("s_load_dwordx2 s[18:19], s[0:1], 96")
    a("v_lshrrev_b32 v4, 6, v0")
    a("v_readfirstlane_b32 s4, v4")
    a("v_and_b32 v1, 63, v0")
    a("v_and_b32 v2, 15, v0")
    a("v_bfe_u32 v3, v0, 4, 2")
    a("s_lshr_b32 s5, s4, 1")
    a("s_and_b32 s4, s4, 1")
    a("s_lshl_b32 s6, s5, 8")
    a("s_add_u32 s3, s3, s6")
    a("s_cmp_ge_u32 s3, 640")
    a("s_cbranch_scc1 L_kgen_exit")
    a("s_mul_i32 s5, s5, 12288")
    a("s_mul_i32 s44, s3, 384")
    a("s_mul_i32 s6, s4, 192")
    a("s_add_u32 s44, s44, s6")
    a("s_lshl_b32 s45, s3, 1")
    a("s_and_b32 s45, s45, 0xfffffffc")
    a("v_lshlrev_b32 v5, 2, v1")
    a("v_min_u32 v5, 188, v5")
    a("s_waitcnt lgkmcnt(0)")
    srd(a, 20, 8, 640*192*2); srd(a, 24, 10, 640*192*2); srd(a, 28, 12, 640*192*2); srd(a, 32, 14, 640*192*2)
    srd(a, 40, 18, WS_SIZE)
    for k, sr in enumerate((20, 24, 28, 32)):
        a(f"buffer_load_dword v{16+k}, v5, s[{sr}:{sr+3}], s44 offen")
    a("s_load_dword s51, s[16:17], s45")
    a("; KSTAMP 0")
    emit_p0(a, 2, 35, 36, 37, 52, 53)
    a("v_lshlrev_b32 v34, 3, v2")
    for r in (34, 35, 36, 37):
        a(f"v_cvt_f32_u32 v{r}, v{r}")
    for r in range(40, 52):
        a(f"v_mov_b32 v{r}, 0")
    a("v_mov_b32 v52, 0")
    a("v_mov_b32 v53, s5")
    a("ds_write_b16 v53, v52 offset:4400")
    a(f"s_mov_b32 s46, {LOG2E}")
    a(f"s_mov_b32 s47, {NLOG2E}")
    a("s_mov_b32 s48, 0xffff0000")
    a("s_mul_i32 s6, s4, 1536")
    a("s_add_u32 s6, s6, s5")
    a("v_lshlrev_b32 v13, 5, v1")
    a("v_add_u32 v13, s6, v13")
    a("v_mul_u32_u24 v12, 384, v3")
    a("v_add_u32 v12, s6, v12")
    a("s_waitcnt lgkmcnt(0)")
    a("s_and_b32 s7, s3, 1")
    a("s_lshl_b32 s7, s7, 4")
    a("s_lshr_b32 s51, s51, s7")
    a("s_lshl_b32 s51, s51, 16")
    a("v_mov_b32 v32, s51")
    a("v_mul_f32 v32, s46, v32")
    a("v_exp_f32 v32, v32")
    a("v_cvt_pk_bf16_f32 v32, v32, v32")
    a("v_lshlrev_b32 v32, 16, v32")
    a("v_add_f32 v33, v32, v32")
    a("s_waitcnt vmcnt(0)")
    a("; KSTAMP 1")
    seqs = []
    for q in range(2):
        B = 56 + 16*q
        l = []
        for k in range(4):
            l.append(f"v_lshlrev_b32 v{B+k}, 16, v{16+k}" if q == 0 else f"v_and_b32 v{B+k}, s48, v{16+k}")
        l += [f"v_mul_f32 v{B}, s46, v{B}", f"v_exp_f32 v{B}, v{B}", f"v_mul_f32 v{B+1}, v{B+1}, v32",
              f"v_mul_f32 v{B+2}, v{B+2}, v33", f"v_cvt_pk_bf16_f32 v{B}, v{B}, v{B}", f"v_mul_f32 v{B+3}, v{B+3}, v33",
              f"v_lshlrev_b32 v{B}, 16, v{B}", f"v_mul_f32 v{B+1}, 0.15915494, v{B+1}", f"v_mul_f32 v{B}, v{B}, v32",
              f"v_mul_f32 v{B}, s47, v{B}",
              f"v_mul_f32 v{B+4}, v{B+2}, v{B+2}", f"v_fma_f32 v{B+4}, v{B+3}, v{B+3}, v{B+4}", f"v_log_f32 v{B+4}, v{B+4}",
              f"v_max_f32 v{B+6}, abs(v{B+2}), abs(v{B+3})", f"v_min_f32 v{B+7}, abs(v{B+2}), abs(v{B+3})",
              f"v_max_f32 v{B+6}, 0x00800000, v{B+6}", f"v_rcp_f32 v{B+6}, v{B+6}", f"v_mul_f32 v{B+4}, 0.5, v{B+4}",
              f"v_mul_f32 v{B+7}, v{B+7}, v{B+6}", f"v_mul_f32 v{B+6}, v{B+7}, v{B+7}", f"v_mov_b32 v{B+5}, {ATC[7]}"]
        for c in range(6, -1, -1):
            l.append(f"v_fma_f32 v{B+5}, v{B+5}, v{B+6}, s{52+c}")
        cc = f"s[{60+2*q}:{61+2*q}]"
        l += [f"v_mul_f32 v{B+5}, v{B+5}, v{B+7}", f"v_sub_f32 v{B+6}, 0.25, v{B+5}",
              f"v_cmp_gt_f32 {cc}, abs(v{B+3}), abs(v{B+2})", f"v_cndmask_b32 v{B+5}, v{B+5}, v{B+6}, {cc}",
              f"v_sub_f32 v{B+6}, 0.5, v{B+5}", f"v_cmp_gt_f32 {cc}, 0, v{B+2}", f"v_cndmask_b32 v{B+5}, v{B+5}, v{B+6}, {cc}",
              f"v_cmp_gt_f32 {cc}, 0, v{B+3}", f"v_cndmask_b32 v{B+3}, v{B+5}, -v{B+5}, {cc}", f"v_mov_b32 v{B+2}, v{B+4}"]
        seqs.append(l)
    for c in range(7):
        a(f"s_mov_b32 s{52+c}, {ATC[c]}")
    for x, y in zip(*seqs):
        a(x); a(y)
    a("v_cmp_gt_u32 vcc, 48, v1")
    a("s_and_saveexec_b64 s[22:23], vcc")
    a("ds_write_b128 v13, v[56:59] offset:4608")
    a("ds_write_b128 v13, v[72:75] offset:4624")
    a("s_mov_b64 exec, s[22:23]")
    a("; KSTAMP 2")
    a("s_mov_b32 s49, 0")
    a.label("L_kgen_cl")
    for n in range(8):
        a(f"ds_read_b128 v[{96+4*n}:{99+4*n}], v12 offset:{4608 + n*16}")
    a("v_add_u32 v12, 128, v12")
    for b in range(2):
        a(f"s_waitcnt lgkmcnt({4 if b == 0 else 0})")
        for n2 in range(0, 4, 2):
            seq = []
            for q in range(2):
                m = n2 + q; P = 96 + 16*b + 4*m; T = 52 + 16*q
                l = []
                l.append(f"v_mul_f32 v{T}, v{P}, v34")
                l.append(f"v_mul_f32 v{T+1}, v{P+1}, v34")
                for g in range(3):
                    l.append(f"v_fma_f32 v{T+4+4*g}, v{P}, v{35+g}, v{P+2}")
                    l.append(f"v_fma_f32 v{T+5+4*g}, v{P+1}, v{35+g}, v{P+3}")
                for k in range(4):
                    l.append(f"v_exp_f32 v{T+4*k}, v{T+4*k}")
                    l.append(f"v_fract_f32 v{T+4*k+1}, v{T+4*k+1}")
                for k in range(4):
                    l.append(f"v_cos_f32 v{T+4*k+2}, v{T+4*k+1}")
                    l.append(f"v_sin_f32 v{T+4*k+3}, v{T+4*k+1}")
                for k in range(4):
                    l.append(f"v_mul_f32 v{T+4*k+2}, v{T+4*k}, v{T+4*k+2}")
                    l.append(f"v_mul_f32 v{T+4*k+3}, v{T+4*k}, v{T+4*k+3}")
                l.append(f"v_cvt_pk_bf16_f32 v{28+m}, v{T+2}, -v{T+3}")
                for g in range(3):
                    l.append(f"v_cvt_pk_bf16_f32 v{16+4*g+m}, v{T+6+4*g}, v{T+7+4*g}")
                seq.append(l)
            for x, y in zip(*seq):
                a(x); a(y)
        for g in range(3):
            a(f"v_mfma_f32_16x16x32_bf16 v[{40+4*g}:{43+4*g}], v[{16+4*g}:{19+4*g}], v[28:31], v[{40+4*g}:{43+4*g}]")
    a("s_add_u32 s49, s49, 1")
    a("s_cmp_lt_u32 s49, 3")
    a("s_cbranch_scc1 L_kgen_cl")
    a("s_nop 7")
    a("; KSTAMP 3")
    a("v_lshlrev_b32 v52, 4, v1")
    a("v_add_u32 v52, s5, v52")
    a("s_cmp_eq_u32 s4, 0")
    a("s_cbranch_scc1 L_kgen_h0a")
    for g in range(3):
        a(f"ds_write_b128 v52, v[{40+4*g}:{43+4*g}] offset:{8192 + g*1024}")
    a.label("L_kgen_h0a")
    a("s_waitcnt lgkmcnt(0)")
    a("s_barrier")
    a("s_cmp_eq_u32 s4, 1")
    a("s_cbranch_scc1 L_kgen_h1b")
    for g in range(3):
        a(f"ds_read_b128 v[{56+4*g}:{59+4*g}], v52 offset:{8192 + g*1024}")
    a("v_lshlrev_b32 v54, 3, v2")
    for r in range(4):
        a(f"v_lshl_add_u32 v53, v3, 2, {r}")
        emit_p0(a, 53, 72+r, 76+r, 80+r, 84, 85)
        for g in range(3):
            a(f"v_add_lshl_u32 v{72+4*g+r}, v{72+4*g+r}, v54, 1")
            a(f"v_add_u32 v{72+4*g+r}, s5, v{72+4*g+r}")
    a("s_waitcnt lgkmcnt(0)")
    for k in range(12):
        a(f"v_add_f32 v{40+k}, v{40+k}, v{56+k}")
        a(f"v_cvt_pk_bf16_f32 v{40+k}, v{40+k}, v{40+k}")
        a(f"ds_write_b16 v{72+k}, v{40+k}")
    a.label("L_kgen_h1b")
    a("s_waitcnt lgkmcnt(0)")
    a("s_barrier")
    a("; KSTAMP 4")
    a(f"s_mul_i32 s24, s3, {KXP}")
    a(f"s_add_u32 s24, s24, {WS_KX}")
    a("s_movk_i32 s25, 0x800")
    a("v_mov_b32 v86, 4400")
    a("v_and_b32 v6, 127, v0")
    for it in range(3):
        if it == 2:
            a("v_cmp_gt_u32 vcc, 20, v6")
            a("s_and_saveexec_b64 s[28:29], vcc")
            a("s_cbranch_execz L_kgen_exit")
        a(f"v_add_u32 v52, {128*it}, v6")
        a("v_lshlrev_b32 v53, 3, v52")
        for i in range(8):
            a(f"v_add_u32 v{54+i}, {i}, v53")
            a(f"v_sub_u32 v{62+i}, s25, v{54+i}")
            a(f"v_cvt_f32_i32 v{62+i}, v{62+i}")
        for i in range(0, 8, 2):
            a(f"v_cvt_pk_bf16_f32 v70, v{62+i}, v{63+i}")
            a(f"v_lshlrev_b32 v{62+i}, 16, v70")
            a(f"v_and_b32 v{63+i}, s48, v70")
        for i in range(8):
            a(f"v_cvt_u32_f32 v{62+i}, v{62+i}")
            a(f"v_lshlrev_b32 v{62+i}, 1, v{62+i}")
            a(f"v_add_u32 v{54+i}, -1, v{54+i}")
            a(f"v_cmp_gt_u32 vcc, s25, v{54+i}")
            a(f"v_cndmask_b32 v{62+i}, v86, v{62+i}, vcc")
            a(f"v_add_u32 v{62+i}, s5, v{62+i}")
        for i in range(8):
            a(f"ds_read_u16 v{54+i}, v{62+i}")
        a("v_lshlrev_b32 v53, 4, v52")
        a("s_waitcnt lgkmcnt(0)")
        for i in range(0, 8, 2):
            a(f"v_lshl_or_b32 v{72+4*(it&1)+i//2}, v{55+i}, 16, v{54+i}")
        a(f"buffer_store_dwordx4 v[{72+4*(it&1)}:{75+4*(it&1)}], v53, s[40:43], s24 offen")
    a.label("L_kgen_exit")
    a("; KEND")
    a("s_endpgm")

WS_UT = 0xC00000
WS_YT = 0xF00000

def transp(a, wg_base, nthreads, direction, nwg=None):
    nh = nthreads // 256
    tag = direction
    a(f"s_sub_u32 s3, s2, {wg_base}")
    a("s_load_dwordx2 s[8:9], s[0:1], 24")
    a("s_load_dwordx2 s[10:11], s[0:1], 72")
    a("s_load_dwordx2 s[12:13], s[0:1], 80")
    a("s_load_dwordx2 s[14:15], s[0:1], 96")
    a("v_lshrrev_b32 v4, 8, v0")
    a("v_readfirstlane_b32 s4, v4")
    a("v_and_b32 v0, 255, v0")
    a("v_and_b32 v1, 63, v0")
    a("v_lshrrev_b32 v4, 6, v0")
    a(f"s_mul_i32 s3, s3, {nh}")
    a("s_add_u32 s3, s3, s4")
    a("s_mul_i32 s5, s4, 9216")
    a("s_waitcnt lgkmcnt(0)")
    srd(a, 16, 8, 2048*640*2); srd(a, 20, 10, 1280); srd(a, 24, 12, 2048*1280*2); srd(a, 28, 14, WS_SIZE2)
    a.label(f"L_tr{tag}_loop")
    a("s_mul_i32 s6, s3, 6554")
    a("s_lshr_b32 s6, s6, 16")
    a("s_mul_i32 s7, s6, 10")
    a("s_sub_u32 s7, s3, s7")
    a("v_lshrrev_b32 v5, 3, v0")
    a("v_and_b32 v6, 7, v0")
    if direction == 'u':
        a("v_mul_u32_u24 v7, 1280, v5")
        a("v_lshl_add_u32 v7, v6, 4, v7")
        a("s_mul_i32 s32, s6, 81920")
        a("s_lshl_b32 s33, s7, 7")
        a("s_add_u32 s32, s32, s33")
        a("s_add_u32 s33, s32, 40960")
        a("buffer_load_dwordx4 v[8:11], v7, s[16:19], s32 offen")
        a("buffer_load_dwordx4 v[12:15], v7, s[16:19], s33 offen")
    else:
        a("v_lshlrev_b32 v7, 12, v5")
        a("v_lshl_add_u32 v7, v6, 4, v7")
        a("s_lshl_b32 s32, s7, 18")
        a("s_lshl_b32 s33, s6, 7")
        a("s_add_u32 s32, s32, s33")
        a(f"s_add_u32 s32, s32, {WS_YT}")
        a("s_add_u32 s33, s32, 131072")
        a("buffer_load_dwordx4 v[8:11], v7, s[28:31], s32 offen")
        a("buffer_load_dwordx4 v[12:15], v7, s[28:31], s33 offen")
    a("v_mul_u32_u24 v16, 144, v5")
    a("v_lshl_add_u32 v16, v6, 4, v16")
    a("v_add_u32 v16, s5, v16")
    a("v_lshrrev_b32 v17, 4, v1")
    a("v_bfe_u32 v18, v1, 2, 2")
    a("v_and_b32 v19, 3, v1")
    a("v_and_b32 v20, 15, v1")
    a("v_lshl_add_u32 v21, v17, 3, v18")
    a("v_mul_u32_u24 v21, 144, v21")
    a("v_lshl_add_u32 v21, v19, 3, v21")
    a("v_lshl_add_u32 v21, v4, 5, v21")
    a("v_add_u32 v21, s5, v21")
    a("v_lshl_add_u32 v22, v4, 4, v20")
    if direction == 'u':
        a("v_lshlrev_b32 v23, 12, v22")
        a("v_lshl_add_u32 v23, v17, 4, v23")
        a("s_lshl_b32 s34, s7, 18")
        a("s_lshl_b32 s35, s6, 7")
        a("s_add_u32 s34, s34, s35")
        a(f"s_add_u32 s34, s34, {WS_UT}")
    else:
        a("v_mul_u32_u24 v23, 2560, v22")
        a("v_lshl_add_u32 v23, v17, 4, v23")
        a("s_mul_i32 s34, s6, 163840")
        a("s_lshl_b32 s35, s7, 7")
        a("s_add_u32 s34, s34, s35")
        a("s_add_u32 s34, s34, 1280")
        a("v_mul_u32_u24 v24, 1280, v22")
        a("v_lshl_add_u32 v24, v17, 4, v24")
        a("s_mul_i32 s36, s6, 81920")
        a("s_add_u32 s36, s36, s35")
        a("buffer_load_dwordx4 v[32:35], v24, s[16:19], s36 offen")
        a("buffer_load_dwordx4 v[36:39], v24, s[16:19], s36 offen offset:64")
        a("v_lshlrev_b32 v24, 4, v17")
        a("buffer_load_dwordx4 v[40:43], v24, s[20:23], s35 offen")
        a("buffer_load_dwordx4 v[44:47], v24, s[20:23], s35 offen offset:64")
        a("s_waitcnt vmcnt(4)")
    if direction == 'u': a("s_waitcnt vmcnt(0)")
    a("ds_write_b128 v16, v[8:11]")
    a(f"ds_write_b128 v16, v[12:15] offset:{32*144}")
    a("s_waitcnt lgkmcnt(0)")
    a("s_barrier")
    for i in range(2):
        a(f"ds_read_b64_tr_b16 v[{8+4*i}:{9+4*i}], v21 offset:{i*32*144}")
        a(f"ds_read_b64_tr_b16 v[{10+4*i}:{11+4*i}], v21 offset:{i*32*144 + 4*144}")
    a("s_waitcnt lgkmcnt(0)")
    if direction == 'u':
        a("buffer_store_dwordx4 v[8:11], v23, s[28:31], s34 offen")
        a("buffer_store_dwordx4 v[12:15], v23, s[28:31], s34 offen offset:64")
    else:
        a("s_mov_b32 s38, 0xffff0000")
        a("s_waitcnt vmcnt(0)")
        for i in range(2):
            for k in range(4):
                y, u, d = 8+4*i+k, 32+4*i+k, 40+4*i+k
                a(f"v_lshlrev_b32 v48, 16, v{u}")
                a(f"v_and_b32 v49, s38, v{u}")
                a(f"v_lshlrev_b32 v50, 16, v{d}")
                a(f"v_and_b32 v51, s38, v{d}")
                a("v_mul_f32 v48, v48, v50")
                a("v_mul_f32 v49, v49, v51")
                a("v_cvt_pk_bf16_f32 v48, v48, v49")
                a("v_and_b32 v49, s38, v48")
                a("v_lshlrev_b32 v48, 16, v48")
                a(f"v_lshlrev_b32 v50, 16, v{y}")
                a(f"v_and_b32 v51, s38, v{y}")
                a("v_add_f32 v48, v48, v50")
                a("v_add_f32 v49, v49, v51")
                a(f"v_cvt_pk_bf16_f32 v{y}, v48, v49")
            a(f"buffer_store_dwordx4 v[{8+4*i}:{11+4*i}], v23, s[24:27], s34 offen offset:{64*i}")
    if nwg:
        a(f"s_add_u32 s3, s3, {nwg*nh}")
        a("s_cmp_ge_u32 s3, 320")
        a(f"s_cbranch_scc1 L_tr{tag}_end")
        a("s_barrier")
        a(f"s_branch L_tr{tag}_loop")
        a.label(f"L_tr{tag}_end")
    a("s_endpgm")

KCP = 4416
L_UD = 4 * KCP
CONV_LDS = L_UD + 96 * 80 + 256
L_Y = 24576
CONV_LDS = L_Y + 4096

def conv(a, wg_base):
    a(f"s_sub_u32 s3, s2, {wg_base}")
    a("; STAMP 0")
    a("s_load_dwordx2 s[14:15], s[0:1], 96")
    a("v_and_b32 v1, 63, v0")
    a("v_lshrrev_b32 v4, 6, v0")
    a("v_readfirstlane_b32 s4, v4")
    a("v_lshlrev_b32 v6, 4, v0")
    a(f"s_mul_i32 s34, s3, {KXP}")
    a(f"s_add_u32 s34, s34, {WS_KX - 8}")
    a("s_add_u32 s40, s34, 4096")
    a("s_lshl_b32 s32, s3, 12")
    a(f"s_add_u32 s33, s32, {WS_UT}")
    a("s_waitcnt lgkmcnt(0)")
    srd(a, 28, 14, WS_SIZE2)
    a("buffer_load_dwordx4 v[8:11], v6, s[28:31], s33 offen")
    for i in range(2):
        so = "s34" if i == 0 else "s40"
        a(f"buffer_load_dwordx2 v[{24+6*i}:{25+6*i}], v6, s[28:31], {so} offen")
        a(f"buffer_load_dwordx4 v[{26+6*i}:{29+6*i}], v6, s[28:31], {so} offen offset:8")
    a("v_mov_b32 v60, 0"); a("v_mov_b32 v61, 0"); a("v_mov_b32 v62, 0"); a("v_mov_b32 v63, 0")
    a("v_cmp_gt_u32 vcc, 160, v0")
    a("s_and_saveexec_b64 s[36:37], vcc")
    a(f"ds_write_b128 v6, v[60:63] offset:{L_UD}")
    a("s_mov_b64 exec, s[36:37]")
    a("v_lshrrev_b32 v7, 2, v0")
    a("v_mul_u32_u24 v7, 80, v7")
    a("v_and_b32 v12, 3, v0")
    a("v_lshl_add_u32 v7, v12, 4, v7")
    a("; STAMP 3")
    a("s_waitcnt vmcnt(4)")
    a("; STAMP 4")
    a(f"ds_write_b128 v7, v[8:11] offset:{L_UD + 32*80}")
    for i in range(2):
        a(f"s_waitcnt vmcnt({2 - 2*i})")
        d = 24 + 6*i
        if i == 1:
            a("v_cmp_gt_u32 vcc, 20, v0")
            a("s_and_saveexec_b64 s[36:37], vcc")
        if i == 0:
            a("v_cmp_eq_u32 vcc, 0, v0")
            a(f"v_cndmask_b32 v{d}, v{d}, 0, vcc")
            a(f"v_cndmask_b32 v{d+1}, v{d+1}, 0, vcc")
        a(f"ds_write_b128 v6, v[{d+2}:{d+5}] offset:{i*4096}")
        for j in range(4):
            a(f"v_alignbit_b32 v{64+j}, v{d+2+j}, v{d+1+j}, 16")
        a(f"ds_write_b128 v6, v[64:67] offset:{i*4096 + KCP}")
        for j in range(4):
            a(f"v_mov_b32 v{68+j}, v{d+1+j}")
        a(f"ds_write_b128 v6, v[68:71] offset:{i*4096 + 2*KCP}")
        for j in range(4):
            a(f"v_alignbit_b32 v{72+j}, v{d+1+j}, v{d+j}, 16")
        a(f"ds_write_b128 v6, v[72:75] offset:{i*4096 + 3*KCP}")
        if i == 1:
            a("s_mov_b64 exec, s[36:37]")
    a("; STAMP 5")
    a("v_and_b32 v8, 31, v1")
    a("v_lshrrev_b32 v9, 5, v1")
    a("v_and_b32 v10, 3, v8")
    a(f"v_mul_u32_u24 v10, {KCP}, v10")
    a("v_and_b32 v11, 28, v8")
    a("v_sub_u32 v11, 32, v11")
    a("v_lshl_add_u32 v11, v9, 3, v11")
    a("v_lshl_add_u32 v10, v11, 1, v10")
    a("s_and_b32 s5, s4, 1")
    a("s_lshr_b32 s6, s4, 1")
    a("s_lshl_b32 s6, s6, 5")
    a("s_xor_b32 s5, s5, 1")
    a("s_lshl_b32 s7, s5, 6")
    a("s_add_u32 s7, s7, s6")
    a("v_add_u32 v10, s7, v10")
    a("v_mul_u32_u24 v11, 80, v8")
    a("v_lshl_add_u32 v11, v9, 4, v11")
    a("s_mul_i32 s7, s5, 80")
    a("s_add_u32 s7, s7, s6")
    a(f"s_add_u32 s7, s7, {L_UD + 80}")
    a("v_add_u32 v11, s7, v11")
    ACC0, ACC1 = 64, 80
    for r in range(32):
        a(f"v_mov_b32 v{64+r}, 0")
    a("s_waitcnt lgkmcnt(0)")
    a("s_barrier")
    a("; STAMP 1")
    steps = list(range(1, 32, 2))
    FR = [96, 112, 128]
    def loads(si):
        d = steps[si]; f = FR[si % 3]
        oa = 64*(63-d); oa2 = 64*(63-(d+32))
        a(f"ds_read_b64 v[{f}:{f+1}], v10 offset:{oa}")
        a(f"ds_read_b64 v[{f+2}:{f+3}], v10 offset:{oa+8}")
        a(f"ds_read_b128 v[{f+8}:{f+11}], v11 offset:{(31-d)*80}")
        a(f"ds_read_b128 v[{f+12}:{f+15}], v11 offset:{(63-d)*80}")
        a(f"ds_read_b64 v[{f+4}:{f+5}], v10 offset:{oa2}")
        a(f"ds_read_b64 v[{f+6}:{f+7}], v10 offset:{oa2+8}")
    loads(0); loads(1)
    n = len(steps)
    for si in range(n):
        if si + 2 < n:
            loads(si + 2)
            a("s_waitcnt lgkmcnt(12)")
        elif si + 1 < n:
            a("s_waitcnt lgkmcnt(6)")
        else:
            a("s_waitcnt lgkmcnt(0)")
        f = FR[si % 3]
        a(f"v_mfma_f32_32x32x16_bf16 v[{ACC0}:{ACC0+15}], v[{f}:{f+3}], v[{f+8}:{f+11}], v[{ACC0}:{ACC0+15}]")
        a(f"v_mfma_f32_32x32x16_bf16 v[{ACC1}:{ACC1+15}], v[{f}:{f+3}], v[{f+12}:{f+15}], v[{ACC1}:{ACC1+15}]")
        a(f"v_mfma_f32_32x32x16_bf16 v[{ACC1}:{ACC1+15}], v[{f+4}:{f+7}], v[{f+8}:{f+11}], v[{ACC1}:{ACC1+15}]")
    a("; STAMP 2")
    a("s_barrier")
    a("v_lshlrev_b32 v12, 4, v1")
    for w in range(4):
        a(f"s_cmp_eq_u32 s4, {w}")
        a(f"s_cbranch_scc0 L_cv_w{w}")
        for dw in range(4):
            if dw == w: continue
            slot = w if w < dw else w - 1
            for q in range(2):
                r = 64 + 4*(2*dw + q)
                a(f"ds_write_b128 v12, v[{r}:{r+3}] offset:{(dw*3 + slot)*2048 + q*1024}")
        for q in range(2):
            for k in range(4):
                a(f"v_mov_b32 v{96+4*q+k}, v{64+4*(2*w+q)+k}")
        a.label(f"L_cv_w{w}")
    a("s_waitcnt lgkmcnt(0)")
    a("s_barrier")
    a("s_mul_i32 s5, s4, 6144")
    a("v_add_u32 v13, s5, v12")
    for sl in range(3):
        for q in range(2):
            a(f"ds_read_b128 v[{104+8*sl+4*q}:{107+8*sl+4*q}], v13 offset:{sl*2048 + q*1024}")
    a("s_waitcnt lgkmcnt(0)")
    for k in range(8):
        a(f"v_add_f32 v{104+k}, v{104+k}, v{112+k}")
        a(f"v_add_f32 v{96+k}, v{96+k}, v{120+k}")
        a(f"v_add_f32 v{96+k}, v{96+k}, v{104+k}")
    a("v_lshlrev_b32 v12, 6, v8")
    a("v_lshl_add_u32 v12, v9, 3, v12")
    a("s_lshr_b32 s5, s4, 1")
    a("s_lshl_b32 s5, s5, 11")
    a("s_and_b32 s6, s4, 1")
    a("s_lshl_b32 s6, s6, 5")
    a("s_add_u32 s5, s5, s6")
    a("v_add_u32 v12, s5, v12")
    for q in range(2):
        a(f"v_cvt_pk_bf16_f32 v{104+2*q}, v{96+4*q}, v{97+4*q}")
        a(f"v_cvt_pk_bf16_f32 v{105+2*q}, v{98+4*q}, v{99+4*q}")
        a(f"ds_write_b64 v12, v[{104+2*q}:{105+2*q}] offset:{L_Y + q*16}")
    a("s_waitcnt lgkmcnt(0)")
    a("s_barrier")
    a(f"ds_read_b128 v[96:99], v6 offset:{L_Y}")
    a(f"s_add_u32 s33, s32, {WS_YT}")
    a("s_waitcnt lgkmcnt(0)")
    a("buffer_store_dwordx4 v[96:99], v6, s[28:31], s33 offen")
    a("s_endpgm")
```

```python
from asmlib import *
from partb import srd, WS_PQ, WS_PART, WS_MT, WS_ZF, WS_SIZE, LOG2E

WS_ZP = 0xB10000
STG = 19456
XOFF = 15360
NST = 4
A1_LDS = STG * NST
KVP = 352
L_CMP = 64 * KVP
PSZ = 4 * 420 * 4

def phi_pair(a, x0, x1, t, dst):
    a(f"v_cvt_pk_bf16_f32 v{t}, v{x0}, v{x1}")
    a(f"v_lshlrev_b32 v{t+1}, 16, v{t}")
    a(f"v_and_b32 v{t+2}, s61, v{t}")
    a(f"v_mul_f32 v{t+3}, s60, v{t+1}")
    a(f"v_mul_f32 v{t+4}, s60, v{t+2}")
    a(f"v_exp_f32 v{t+3}, v{t+3}")
    a(f"v_exp_f32 v{t+4}, v{t+4}")
    a(f"v_add_f32 v{t+5}, 1.0, v{t+1}")
    a(f"v_add_f32 v{t+6}, 1.0, v{t+2}")
    a(f"v_cmp_lt_f32 vcc, 0, v{t+1}")
    a(f"v_cmp_lt_f32 s[44:45], 0, v{t+2}")
    a(f"v_cndmask_b32 v{t+3}, v{t+3}, v{t+5}, vcc")
    a(f"v_cndmask_b32 v{t+4}, v{t+4}, v{t+6}, s[44:45]")
    a(f"v_cvt_pk_bf16_f32 v{t}, v{t+3}, v{t+4}")
    a(f"v_lshlrev_b32 v{t+1}, 16, v{t}")
    a(f"v_and_b32 v{t+2}, s61, v{t}")
    a(f"v_add_f32 v{t+1}, s62, v{t+1}")
    a(f"v_add_f32 v{t+2}, s62, v{t+2}")
    a(f"v_cvt_pk_bf16_f32 v{dst}, v{t+1}, v{t+2}")

EXPF = set()
def a1(a):
    a("s_load_dwordx4 s[8:11], s[0:1], 0")
    a("s_load_dwordx2 s[12:13], s[0:1], 96")
    a("s_and_b32 s5, s2, 1")
    a("s_lshl_b32 s5, s5, 4")
    a("s_lshr_b32 s46, s2, 4")
    a("s_add_u32 s5, s5, s46")
    a("s_and_b32 s6, s2, 6")
    a("s_bfe_u32 s47, s2, 0x10003")
    a("s_add_u32 s6, s6, s47")
    a("v_and_b32 v1, 63, v0")
    a("v_lshrrev_b32 v4, 6, v0")
    a("v_readfirstlane_b32 s4, v4")
    a("; STAMP 0")
    if "prio" in EXPF: a("s_setprio 3")
    a("s_cmp_lt_u32 s4, 4")
    a("s_cbranch_scc1 L_a1_cons")
    a("v_and_b32 v4, 3, v4")
    a("s_and_b32 s4, s4, 3")
    a("s_mul_i32 s7, s6, 160")
    for jj in range(4):
        g = 16; r = 17; c = 18; sg = 19
        a(f"v_lshl_add_u32 v{g}, v4, 6, v1")
        a(f"v_add_u32 v{g}, {256*jj}, v{g}")
        a(f"v_min_u32 v{g}, 959, v{g}")
        a(f"v_mul_u32_u24 v{r}, 2185, v{g}")
        a(f"v_lshrrev_b32 v{r}, 16, v{r}")
        a(f"v_mul_u32_u24 v{c}, 30, v{r}")
        a(f"v_sub_u32 v{c}, v{g}, v{c}")
        a(f"v_mul_u32_u24 v{sg}, 6554, v{c}")
        a(f"v_lshrrev_b32 v{sg}, 16, v{sg}")
        a(f"v_mul_u32_u24 v20, 10, v{sg}")
        a(f"v_sub_u32 v{c}, v{c}, v20")
        a(f"v_mul_u32_u24 v{r}, 3840, v{r}")
        a(f"v_mul_u32_u24 v{sg}, 1280, v{sg}")
        a(f"v_lshl_add_u32 v{r}, v{c}, 4, v{r}")
        a(f"v_add3_u32 v{8+jj}, v{r}, v{sg}, s7")
    a("v_lshrrev_b32 v16, 2, v1")
    a("v_and_b32 v17, 3, v1")
    a("v_bfe_u32 v18, v1, 4, 2")
    a("v_xor_b32 v17, v17, v18")
    a("s_lshl_b32 s7, s5, 6")
    a("v_lshl_add_u32 v16, v4, 4, v16")
    a("v_add_u32 v16, s7, v16")
    a("v_mul_u32_u24 v12, 1280, v16")
    a("v_lshl_add_u32 v12, v17, 4, v12")
    a("s_waitcnt lgkmcnt(0)")
    srd(a, 16, 8, 2048*640*2); srd(a, 20, 10, 640*1920*2)
    a("s_lshl_b32 s28, s4, 10")
    a("s_mov_b32 s29, 0")
    a("s_mov_b32 s30, 0")
    def issue(slot, nw):
        for jj in range(nw):
            a(f"s_add_u32 m0, s28, {slot*STG + jj*4096}")
            a(f"buffer_load_dwordx4 v{8+jj}, s[20:23], s29 offen lds")
        a(f"s_add_u32 m0, s28, {slot*STG + XOFF}")
        a(f"buffer_load_dwordx4 v12, s[16:19], s30 offen lds")
        a("s_add_u32 s29, s29, 122880")
        a("s_add_u32 s30, s30, 64")
    a("v_lshrrev_b32 v23, 3, v1")
    a("v_lshl_add_u32 v23, v4, 3, v23")
    a("s_lshl_b32 s32, s5, 6")
    a("s_lshl_b32 s33, s47, 5")
    a("s_add_u32 s32, s32, s33")
    a("v_add_u32 v23, s32, v23")
    a("v_mul_u32_u24 v23, 1280, v23")
    a("v_and_b32 v24, 7, v1")
    a("v_lshl_add_u32 v23, v24, 4, v23")
    a("v_min_u32 v24, 29, v1")
    a("v_mul_u32_u24 v27, 6554, v24")
    a("v_lshrrev_b32 v27, 16, v27")
    a("v_mul_u32_u24 v28, 10, v27")
    a("v_sub_u32 v26, v24, v28")
    a("v_mul_u32_u24 v27, 1280, v27")
    a("v_lshl_add_u32 v25, v26, 4, v27")
    a("s_lshl_b32 s32, s46, 2")
    a("s_add_u32 s32, s32, s4")
    a("s_mul_i32 s32, s32, 3840")
    a("s_mul_i32 s33, s6, 160")
    a("s_add_u32 s32, s32, s33")
    def pfb(j):
        a(f"s_add_u32 s33, s32, {j*64*3840}")
        a(f"buffer_load_dwordx4 v[32:35], v25, s[20:23], s33 offen")
        a(f"buffer_load_dwordx4 v[36:39], v23, s[16:19], 0 offen offset:{128*j}")
    a("s_cmp_eq_u32 s4, 3")
    a("s_cbranch_scc1 L_a1_prod3")
    for nw in (4, 3):
        if nw == 3: a.label("L_a1_prod3")
        for stg in range(3):
            issue(stg, nw)
        for j in range(1, 10): pfb(j)
        for t in range(3):
            a(f"s_waitcnt vmcnt({2*(nw+1) + 18})")
            a("s_barrier")
            issue((t+3) % 4, nw)
        a(f"s_mov_b32 s34, {2*STG}")
        a("s_mov_b32 s35, 3")
        a.label(f"L_a1_pl{nw}")
        a(f"s_waitcnt vmcnt({2*(nw+1)})")
        a("s_barrier")
        a("s_add_u32 s36, s28, s34")
        for jj in range(nw):
            a(f"s_add_u32 m0, s36, {jj*4096}")
            a(f"buffer_load_dwordx4 v{8+jj}, s[20:23], s29 offen lds")
        a(f"s_add_u32 m0, s36, {XOFF}")
        a(f"buffer_load_dwordx4 v12, s[16:19], s30 offen lds")
        a("s_add_u32 s29, s29, 122880")
        a("s_add_u32 s30, s30, 64")
        a(f"s_add_u32 s34, s34, {STG}")
        a(f"s_cmp_ge_u32 s34, {4*STG}")
        a("s_cselect_b32 s34, 0, s34")
        a("s_add_u32 s35, s35, 1")
        a("s_cmp_lt_u32 s35, 17")
        a(f"s_cbranch_scc1 L_a1_pl{nw}")
        a(f"s_waitcnt vmcnt({2*(nw+1)})")
        a("s_barrier")
        a(f"s_waitcnt vmcnt({nw+1})")
        a("s_barrier")
        a("s_waitcnt vmcnt(0)")
        a("s_barrier")
        a("s_endpgm")
    a.label("L_a1_cons")
    a("v_lshrrev_b32 v16, 4, v1")
    a("v_bfe_u32 v17, v1, 2, 2")
    a("v_and_b32 v18, 3, v1")
    a("v_lshl_add_u32 v13, v16, 2, v17")
    a("v_mul_u32_u24 v13, 480, v13")
    a("v_lshl_add_u32 v13, v18, 3, v13")
    a("v_lshl_add_u32 v13, v4, 5, v13")
    a("v_and_b32 v19, 15, v1")
    a("v_lshrrev_b32 v20, 1, v16")
    a("v_lshrrev_b32 v21, 2, v19")
    a("v_xor_b32 v20, v20, v21")
    a("v_xor_b32 v21, 2, v20")
    a("v_and_b32 v22, 1, v16")
    a("v_lshlrev_b32 v22, 3, v22")
    a("v_lshl_add_u32 v22, v19, 6, v22")
    a(f"v_add_u32 v22, {XOFF}, v22")
    a("v_lshl_add_u32 v14, v20, 4, v22")
    a("v_lshl_add_u32 v15, v21, 4, v22")
    a(f"v_add_u32 v2, {2*STG}, v13")
    a(f"v_add_u32 v3, {2*STG}, v14")
    a(f"v_add_u32 v5, {2*STG}, v15")
    a("s_waitcnt lgkmcnt(0)")
    srd(a, 24, 12, WS_SIZE)
    srd(a, 16, 8, 2048*640*2); srd(a, 20, 10, 640*1920*2)
    ACC = 52; F = 20
    for r in range(ACC, ACC+64):
        a(f"v_mov_b32 v{r}, 0")
    a("s_mov_b32 s31, 0")
    a.label("L_a1_loop")
    for stg in range(20 if "unroll" in EXPF else 4):
        if "unroll" in EXPF and stg % 2 == 0 and stg < 16: a(f"; STAMP {3 + stg//2}")
        a("s_barrier")
        stg = stg % 4
        base = (stg & 1) * STG
        vb, va, va2 = (13, 14, 15) if stg < 2 else (2, 3, 5)
        for ct in range(4):
            a(f"ds_read_b64_tr_b16 v[{F+4*ct}:{F+1+4*ct}], v{vb} offset:{base + ct*128}")
            a(f"ds_read_b64_tr_b16 v[{F+2+4*ct}:{F+3+4*ct}], v{vb} offset:{base + ct*128 + 7680}")
            rt = ct
            a(f"ds_read_b64 v[{F+16+4*rt}:{F+17+4*rt}], v{va} offset:{base + rt*1024}")
            a(f"ds_read_b64 v[{F+18+4*rt}:{F+19+4*rt}], v{va2} offset:{base + rt*1024}")
        for lvl in range(4):
            a(f"s_waitcnt lgkmcnt({12 - 4*lvl})")
            pairs = [(lvl, j) for j in range(lvl+1)] + [(j, lvl) for j in range(lvl)]
            for (ct, rt) in pairs:
                acc = ACC + 16*ct + 4*rt
                a(f"v_mfma_f32_16x16x32_bf16 v[{acc}:{acc+3}], v[{F+4*ct}:{F+3+4*ct}], v[{F+16+4*rt}:{F+19+4*rt}], v[{acc}:{acc+3}]")
    if "unroll" not in EXPF:
        for e in EXPF:
            if e.startswith("pr"):
                a(f"s_cmp_lg_u32 s31, {int(e[2:])}")
                a("s_cbranch_scc1 L_a1_noprio")
                a("s_setprio 3")
                a.label("L_a1_noprio")
        a("s_add_u32 s31, s31, 1")
        a("s_cmp_lt_u32 s31, 5")
        a("s_cbranch_scc1 L_a1_loop")
    a("s_barrier")
    a("; STAMP 1")
    a("s_waitcnt vmcnt(0)")
    a(f"s_mov_b32 s60, {LOG2E}")
    a("s_mov_b32 s61, 0xffff0000")
    a("s_mov_b32 s62, 0x358637bd")
    a("v_lshlrev_b32 v5, 3, v1")
    a(f"v_mul_u32_u24 v6, {KVP}, v19")
    a("v_lshl_add_u32 v6, v16, 3, v6")
    for slot in range(4):
        a(f"s_add_u32 s32, s4, {4*slot}")
        a("s_cmp_ge_u32 s32, 10")
        a(f"s_cbranch_scc1 L_a1_ep{slot}_v")
        for rt in range(4):
            acc = ACC + 16*slot + 4*rt
            phi_pair(a, acc, acc+1, 116, 20+8*slot+2*rt)
            phi_pair(a, acc+2, acc+3, 8, 21+8*slot+2*rt)
        a(f"s_branch L_a1_ep{slot}_done")
        a.label(f"L_a1_ep{slot}_v")
        for rt in range(4):
            acc = ACC + 16*slot + 4*rt
            a(f"v_cvt_pk_bf16_f32 v{20+8*slot+2*rt}, v{acc}, v{acc+1}")
            a(f"v_cvt_pk_bf16_f32 v{21+8*slot+2*rt}, v{acc+2}, v{acc+3}")
        a.label(f"L_a1_ep{slot}_done")
    for slot in range(4):
        a(f"s_add_u32 s32, s4, {4*slot}")
        a("s_cmp_ge_u32 s32, 15")
        a(f"s_cbranch_scc1 L_a1_st{slot}_done")
        a("s_cmp_ge_u32 s32, 5")
        a(f"s_cbranch_scc1 L_a1_st{slot}_lds")
        a("s_mul_i32 s35, s6, 5")
        a("s_add_u32 s35, s35, s32")
        a("s_lshl_b32 s35, s35, 9")
        a(f"s_mul_i32 s36, s5, {4*40*512}")
        a("s_add_u32 s35, s35, s36")
        for rt in range(4):
            a(f"s_add_u32 s36, s35, {WS_PQ + rt*40*512}")
            a(f"buffer_store_dwordx2 v[{20+8*slot+2*rt}:{21+8*slot+2*rt}], v5, s[24:27], s36 offen")
        a(f"s_branch L_a1_st{slot}_done")
        a.label(f"L_a1_st{slot}_lds")
        a("s_sub_u32 s35, s32, 5")
        a("s_lshl_b32 s35, s35, 5")
        a("v_add_u32 v7, s35, v6")
        for rt in range(4):
            a(f"ds_write_b64 v7, v[{20+8*slot+2*rt}:{21+8*slot+2*rt}] offset:{rt*16*KVP}")
        a.label(f"L_a1_st{slot}_done")
    a("s_waitcnt lgkmcnt(0)")
    a("s_barrier")
    a("; STAMP 2")
    a("v_lshl_add_u32 v13, v16, 2, v17")
    a(f"v_mul_u32_u24 v13, {KVP}, v13")
    a("v_lshl_add_u32 v13, v18, 3, v13")
    a("s_mul_i32 s35, s4, 40")
    a("v_add_u32 v13, s35, v13")
    for ks in range(2):
        for tl in range(2):
            a(f"ds_read_b64_tr_b16 v[{32+8*ks+4*tl}:{33+8*ks+4*tl}], v13 offset:{ks*32*KVP + tl*32}")
            a(f"ds_read_b64_tr_b16 v[{34+8*ks+4*tl}:{35+8*ks+4*tl}], v13 offset:{(ks*32+16)*KVP + tl*32}")
            a(f"ds_read_b64_tr_b16 v[{48+8*ks+4*tl}:{49+8*ks+4*tl}], v13 offset:{ks*32*KVP + 160 + tl*32}")
            a(f"ds_read_b64_tr_b16 v[{50+8*ks+4*tl}:{51+8*ks+4*tl}], v13 offset:{(ks*32+16)*KVP + 160 + tl*32}")
    a("v_cmp_eq_u32 vcc, 4, v19")
    a("v_mov_b32 v24, 0x3f803f80")
    a("s_waitcnt lgkmcnt(0)")
    for ks in range(2):
        for k in range(4):
            a(f"v_cndmask_b32 v{52+8*ks+k}, v{52+8*ks+k}, v24, vcc")
    for dtl in range(2):
        for etl in range(2):
            acc = 64 + 8*dtl + 4*etl
            a(f"v_mfma_f32_16x16x32_bf16 v[{acc}:{acc+3}], v[{32+4*dtl}:{35+4*dtl}], v[{48+4*etl}:{51+4*etl}], 0")
            a(f"v_mfma_f32_16x16x32_bf16 v[{acc}:{acc+3}], v[{40+4*dtl}:{43+4*dtl}], v[{56+4*etl}:{59+4*etl}], v[{acc}:{acc+3}]")
    a("v_mul_u32_u24 v24, 84, v16")
    a("v_add_u32 v24, v24, v19")
    a("s_mul_i32 s35, s4, 420")
    a("v_add_u32 v24, s35, v24")
    a("v_lshlrev_b32 v24, 2, v24")
    a(f"v_add_u32 v24, {L_CMP}, v24")
    a("v_cmp_gt_u32 s[36:37], 5, v19")
    a("v_cmp_gt_u32 s[38:39], 16, v1")
    a("s_and_b64 s[40:41], s[36:37], s[38:39]")
    for dtl in range(2):
        for etl in range(2):
            acc = 64 + 8*dtl + 4*etl
            m = {(0,0): None, (0,1): "s[36:37]", (1,0): "s[38:39]", (1,1): "s[40:41]"}[(dtl, etl)]
            if m: a(f"s_mov_b64 exec, {m}")
            for r in range(4):
                a(f"ds_write_b32 v24, v{acc+r} offset:{((16*dtl + r)*21 + 16*etl)*4}")
            if m: a("s_mov_b64 exec, -1")
    a("s_waitcnt lgkmcnt(0)")
    a("s_barrier")
    a("v_lshlrev_b32 v24, 4, v0")
    a("s_lshl_b32 s35, s5, 3")
    a("s_add_u32 s35, s35, s6")
    a(f"s_mul_i32 s35, s35, {PSZ}")
    a(f"s_add_u32 s35, s35, {WS_PART}")
    a(f"ds_read_b128 v[32:35], v24 offset:{L_CMP}")
    a(f"ds_read_b128 v[36:39], v24 offset:{L_CMP + 4096}")
    a("s_waitcnt lgkmcnt(0)")
    a("buffer_store_dwordx4 v[32:35], v24, s[24:27], s35 offen")
    a(f"v_cmp_gt_u32 vcc, {(PSZ - 4096)//16}, v0")
    a("s_and_saveexec_b64 s[36:37], vcc")
    a("s_add_u32 s35, s35, 4096")
    a("buffer_store_dwordx4 v[36:39], v24, s[24:27], s35 offen")
    a("s_endpgm")

WOP = 1312
L_KVT = 32 * WOP
A2R_LDS = L_KVT + 32 * 80

WOA = [8,9,10,11,12,13,14,15,60,61]
def a2r(a):
    a("s_load_dwordx2 s[8:9], s[0:1], 16")
    a("s_load_dwordx2 s[12:13], s[0:1], 96")
    a("v_and_b32 v1, 63, v0")
    a("v_lshrrev_b32 v4, 6, v0")
    a("v_readfirstlane_b32 s4, v4")
    a("s_lshr_b32 s5, s2, 2")
    a("s_and_b32 s6, s2, 3")
    a("; STAMP 0")
    a("s_waitcnt lgkmcnt(0)")
    srd(a, 16, 8, 640*640*2); srd(a, 24, 12, WS_SIZE)
    a(f"s_mul_i32 s29, s5, {PSZ}")
    a("s_mul_i32 s30, s6, 1680")
    a("s_add_u32 s29, s29, s30")
    a(f"s_add_u32 s29, s29, {WS_PART}")
    a("v_lshlrev_b32 v25, 2, v0")
    a("v_add_u32 v26, 1024, v25")
    a("v_min_u32 v26, 1676, v26")
    a("s_mov_b32 s34, s29")
    for rb in range(32):
        a(f"buffer_load_dword v{28+rb}, v25, s[24:27], s34 offen")
        a(f"buffer_load_dword v{112+rb}, v26, s[24:27], s34 offen")
        a(f"s_add_u32 s34, s34, {8*PSZ}")
    a("s_mul_i32 s28, s2, 25600")
    for i in range(10):
        a(f"v_add_u32 v16, {256*i}, v0")
        a("v_mul_u32_u24 v17, 52429, v16")
        a("v_lshrrev_b32 v17, 22, v17")
        a("v_mul_u32_u24 v18, 80, v17")
        a("v_sub_u32 v18, v16, v18")
        a("v_mul_u32_u24 v19, 1280, v17")
        a("v_lshl_add_u32 v19, v18, 4, v19")
        a("v_cmp_gt_u32 vcc, 20, v17")
        a("v_cndmask_b32 v19, -1, v19, vcc")
        a(f"v_mul_u32_u24 v{WOA[i]}, {WOP}, v17")
        a(f"v_lshl_add_u32 v{WOA[i]}, v18, 4, v{WOA[i]}")
        a(f"buffer_load_dwordx4 v[{64+4*i}:{67+4*i}], v19, s[16:19], s28 offen")
    a("v_mov_b32 v20, 0"); a("v_mov_b32 v21, 0"); a("v_mov_b32 v22, 0"); a("v_mov_b32 v23, 0")
    a("v_lshlrev_b32 v24, 4, v0")
    a("v_cmp_gt_u32 vcc, 160, v0")
    a("s_and_saveexec_b64 s[30:31], vcc")
    a(f"ds_write_b128 v24, v[20:23] offset:{L_KVT}")
    a("s_mov_b64 exec, s[30:31]")
    a("s_waitcnt lgkmcnt(0)")
    a("s_barrier")
    a("; STAMP 1")
    a("s_waitcnt vmcnt(10)")
    a("; STAMP 2")
    for rnd in range(2):
        b = 28 if rnd == 0 else 112
        for st in (16, 8, 4, 2, 1):
            for k in range(st):
                a(f"v_add_f32 v{b+k}, v{b+k}, v{b+k+st}")
        if rnd == 1:
            a("v_cmp_gt_u32 vcc, 164, v0")
            a("s_and_saveexec_b64 s[30:31], vcc")
        a(f"v_add_u32 v16, {256*rnd}, v0")
        a("v_mul_u32_u24 v17, 49933, v16")
        a("v_lshrrev_b32 v17, 20, v17")
        a("v_mul_u32_u24 v18, 21, v17")
        a("v_sub_u32 v18, v16, v18")
        a("v_cmp_eq_u32 s[32:33], 20, v18")
        a(f"v_cvt_pk_bf16_f32 v27, v{b}, v{b}")
        a("v_mul_u32_u24 v26, 80, v17")
        a("v_lshl_add_u32 v26, v18, 1, v26")
        a("s_mov_b64 s[36:37], exec")
        a("s_andn2_b64 exec, exec, s[32:33]")
        a(f"ds_write_b16 v26, v27 offset:{L_KVT}")
        a("s_and_b64 exec, s[36:37], s[32:33]")
        a("s_mul_i32 s35, s2, 40")
        a(f"s_add_u32 s35, s35, {WS_ZF}")
        a("v_lshlrev_b32 v26, 1, v17")
        a("buffer_store_short v27, v26, s[24:27], s35 offen")
        a("s_mov_b64 exec, -1")
    a("s_waitcnt vmcnt(0)")
    for i in range(10):
        a(f"ds_write_b128 v{WOA[i]}, v[{64+4*i}:{67+4*i}]")
    a("s_waitcnt lgkmcnt(0)")
    a("s_barrier")
    a("; STAMP 3")
    a("v_lshrrev_b32 v16, 4, v1")
    a("v_bfe_u32 v17, v1, 2, 2")
    a("v_and_b32 v18, 3, v1")
    a("v_and_b32 v19, 15, v1")
    a("v_mul_u32_u24 v20, 80, v19")
    a("v_lshl_add_u32 v20, v16, 3, v20")
    for dtile in range(2):
        a(f"ds_read_b64 v[{32+4*dtile}:{33+4*dtile}], v20 offset:{L_KVT + dtile*16*80}")
        a(f"ds_read_b64 v[{34+4*dtile}:{35+4*dtile}], v20 offset:{L_KVT + dtile*16*80 + 32}")
    a("v_lshl_add_u32 v21, v16, 2, v17")
    a(f"v_mul_u32_u24 v21, {WOP}, v21")
    a("v_lshl_add_u32 v21, v18, 3, v21")
    a("s_mul_i32 s35, s4, 320")
    a("v_add_u32 v21, s35, v21")
    a("s_mul_i32 s35, s2, 5")
    for dtile in range(2):
        d = 22 + dtile
        a(f"v_add_u32 v24, s35, v16")
        if dtile: a("v_add_u32 v24, 4, v24")
        a("v_lshrrev_b32 v25, 3, v24")
        a("v_and_b32 v26, 3, v24")
        a("v_bfe_u32 v27, v24, 2, 1")
        a(f"v_lshlrev_b32 v{d}, 10, v25")
        a(f"v_lshl_add_u32 v{d}, v26, 8, v{d}")
        a(f"v_lshl_add_u32 v{d}, v19, 4, v{d}")
        a(f"v_lshl_add_u32 v{d}, v27, 3, v{d}")
    a(f"s_mul_i32 s36, s4, {10*20*1024}")
    a(f"s_add_u32 s36, s36, {WS_MT}")
    a("v_cmp_gt_u32 s[38:39], 16, v1")
    for ct in range(10):
        a(f"ds_read_b64_tr_b16 v[{40+4*ct}:{41+4*ct}], v21 offset:{ct*32}")
        a(f"ds_read_b64_tr_b16 v[{42+4*ct}:{43+4*ct}], v21 offset:{ct*32 + 16*WOP}")
    for ct in range(10):
        a(f"s_waitcnt lgkmcnt({min(15, 18 - 2*ct)})")
        r0 = 80 + 8*(ct & 1)
        a(f"v_mfma_f32_16x16x32_bf16 v[{r0}:{r0+3}], v[32:35], v[{40+4*ct}:{43+4*ct}], 0")
        a(f"v_mfma_f32_16x16x32_bf16 v[{r0+4}:{r0+7}], v[36:39], v[{40+4*ct}:{43+4*ct}], 0")
        p = 96 + 4*(ct & 1)
        a(f"v_cvt_pk_bf16_f32 v{p}, v{r0}, v{r0+1}")
        a(f"v_cvt_pk_bf16_f32 v{p+1}, v{r0+2}, v{r0+3}")
        a(f"v_cvt_pk_bf16_f32 v{p+2}, v{r0+4}, v{r0+5}")
        a(f"v_cvt_pk_bf16_f32 v{p+3}, v{r0+6}, v{r0+7}")
        a(f"s_add_u32 s37, s36, {ct*20*1024}")
        a(f"buffer_store_dwordx2 v[{p}:{p+1}], v22, s[24:27], s37 offen")
        a("s_mov_b64 exec, s[38:39]")
        a(f"buffer_store_dwordx2 v[{p+2}:{p+3}], v23, s[24:27], s37 offen")
        a("s_mov_b64 exec, -1")
    a("s_endpgm")


SCL_LDS = 40960 + 1280
def scl(a, wg_base):
    a(f"s_sub_u32 s5, s2, {wg_base}")
    a("s_load_dwordx2 s[12:13], s[0:1], 96")
    a("v_and_b32 v1, 63, v0")
    a("v_lshrrev_b32 v4, 6, v0")
    a("v_readfirstlane_b32 s4, v4")
    a("v_lshlrev_b32 v5, 4, v1")
    a("v_min_u32 v6, 159, v0")
    a("v_lshlrev_b32 v6, 4, v6")
    a("s_waitcnt lgkmcnt(0)")
    srd(a, 24, 12, WS_SIZE)
    a(f"s_mov_b32 s30, {WS_ZP}")
    for rb in range(16):
        a(f"buffer_load_dwordx4 v[{16+4*rb}:{19+4*rb}], v6, s[24:27], s30 offen")
        a("s_add_u32 s30, s30, 2560")
    a("s_mul_i32 s28, s5, 40960")
    a("s_mul_i32 s29, s4, 10240")
    a("s_add_u32 s28, s28, s29")
    for i in range(10):
        a(f"s_add_u32 m0, s29, {i*1024}")
        a(f"s_add_u32 s31, s28, {WS_PQ + i*1024}")
        a("buffer_load_dwordx4 v5, s[24:27], s31 offen lds")
    for rb in range(16):
        a(f"buffer_load_dwordx4 v[{80+4*rb}:{83+4*rb}], v6, s[24:27], s30 offen")
        a("s_add_u32 s30, s30, 2560")
    a("s_waitcnt vmcnt(26)")
    for st in (8, 4, 2, 1):
        for k in range(st):
            for c in range(4):
                a(f"v_add_f32 v{16+4*k+c}, v{16+4*k+c}, v{16+4*(k+st)+c}")
    a("s_waitcnt vmcnt(0)")
    for st in (8, 4, 2, 1):
        for k in range(st):
            for c in range(4):
                a(f"v_add_f32 v{80+4*k+c}, v{80+4*k+c}, v{80+4*(k+st)+c}")
    for c in range(4):
        a(f"v_add_f32 v{16+c}, v{16+c}, v{80+c}")
    a("v_cvt_pk_bf16_f32 v16, v16, v17")
    a("v_cvt_pk_bf16_f32 v17, v18, v19")
    a("v_lshrrev_b32 v6, 1, v6")
    a("ds_write_b64 v6, v[16:17] offset:40960")
    a("s_waitcnt lgkmcnt(0)")
    a("s_barrier")
    a("s_mov_b32 s61, 0xffff0000")
    a("s_mov_b32 s62, 0x358637bd")
    a("v_and_b32 v6, 31, v0")
    a("v_lshrrev_b32 v7, 5, v0")
    a("v_lshrrev_b32 v8, 4, v6")
    a("v_mul_u32_u24 v8, 20480, v8")
    a("v_and_b32 v9, 15, v6")
    a("v_lshl_add_u32 v8, v9, 3, v8")
    a("v_mul_u32_u24 v9, 2560, v7")
    a("v_add_u32 v8, v8, v9")
    a("v_mul_u32_u24 v9, 160, v7")
    PB, ZB = 60, 80
    def rd(hd):
        P = PB + 10*(hd & 1); Z = ZB + 10*(hd & 1)
        for i in range(5):
            qd = 5*hd + i
            a(f"ds_read_b64 v[{P+2*i}:{P+2*i+1}], v8 offset:{(qd>>2)*512 + (qd&3)*128}")
            a(f"ds_read_b64 v[{Z+2*i}:{Z+2*i+1}], v9 offset:{40960 + hd*40 + 8*i}")
    rd(0)
    for hd in range(4):
        P = PB + 10*(hd & 1); Z = ZB + 10*(hd & 1)
        if hd + 1 < 4:
            rd(hd+1)
            a(f"s_waitcnt lgkmcnt({10 if hd == 0 else 15})")
        else:
            a("s_waitcnt lgkmcnt(0)")
        a(f"v_dot2_f32_bf16 v36, v{P}, v{Z}, 0")
        a(f"v_dot2_f32_bf16 v37, v{P+1}, v{Z+1}, 0")
        for i in range(2, 10, 2):
            a(f"v_dot2_f32_bf16 v36, v{P+i}, v{Z+i}, v36")
            a(f"v_dot2_f32_bf16 v37, v{P+i+1}, v{Z+i+1}, v37")
        for i in range(10):
            a(f"v_lshlrev_b32 v{16+2*i}, 16, v{P+i}")
            a(f"v_and_b32 v{17+2*i}, s61, v{P+i}")
        a("v_add_f32 v36, v36, v37")
        a("v_cvt_pk_bf16_f32 v36, v36, v36")
        a("v_lshlrev_b32 v36, 16, v36")
        a("v_add_f32 v36, s62, v36")
        a("v_cvt_pk_bf16_f32 v36, v36, v36")
        a("v_lshlrev_b32 v36, 16, v36")
        a("v_rcp_f32 v36, v36")
        for i in range(10):
            a(f"v_mul_f32 v{16+2*i}, v{16+2*i}, v36")
            a(f"v_mul_f32 v{17+2*i}, v{17+2*i}, v36")
            a(f"v_cvt_pk_bf16_f32 v{P+i}, v{16+2*i}, v{17+2*i}")
        for i in range(5):
            qd = 5*hd + i
            a(f"ds_write_b64 v8, v[{P+2*i}:{P+2*i+1}] offset:{(qd>>2)*512 + (qd&3)*128}")
    a("s_waitcnt lgkmcnt(0)")
    a("s_barrier")
    a("v_add_u32 v6, s29, v5")
    for i in range(10):
        a(f"ds_read_b128 v[{16+4*i}:{19+4*i}], v6 offset:{i*1024}")
    for i in range(10):
        a(f"s_waitcnt lgkmcnt({9-i})")
        a(f"s_add_u32 s31, s28, {WS_PQ + i*1024}")
        a(f"buffer_store_dwordx4 v[{16+4*i}:{19+4*i}], v5, s[24:27], s31 offen")
    a("s_endpgm")

L_Z = 4 * 40 * 512
A3_LDS = L_Z + 1280
OP = 272

def a3(a):
    a("s_load_dwordx2 s[8:9], s[0:1], 80")
    a("s_load_dwordx2 s[12:13], s[0:1], 96")
    a("v_and_b32 v1, 63, v0")
    a("v_lshrrev_b32 v4, 6, v0")
    a("v_readfirstlane_b32 s4, v4")
    a("s_lshr_b32 s7, s2, 3")
    a("s_mul_i32 s5, s7, 52429")
    a("s_lshr_b32 s5, s5, 18")
    a("s_mul_i32 s6, s5, 5")
    a("s_sub_u32 s6, s7, s6")
    a("s_and_b32 s7, s2, 7")
    a("s_lshl_b32 s7, s7, 2")
    a("s_add_u32 s5, s5, s7")
    a("; STAMP 0")
    a("v_lshlrev_b32 v5, 4, v1")
    a("s_waitcnt lgkmcnt(0)")
    srd(a, 16, 8, 2048*1280*2); srd(a, 24, 12, WS_SIZE)
    a("s_mul_i32 s30, s4, 160")
    a(f"s_add_u32 m0, s30, {L_Z}")
    a(f"s_add_u32 s30, s30, {WS_ZF}")
    a("v_cmp_gt_u32 vcc, 10, v1")
    a("s_and_saveexec_b64 s[32:33], vcc")
    a("buffer_load_dwordx4 v5, s[24:27], s30 offen lds")
    a("s_mov_b64 exec, s[32:33]")
    a(f"s_mul_i32 s28, s5, {4*40*512}")
    a("s_mul_i32 s29, s4, 10240")
    a("s_add_u32 s28, s28, s29")
    for i in range(10):
        a(f"s_add_u32 m0, s29, {i*1024}")
        a(f"s_add_u32 s30, s28, {WS_PQ + i*1024}")
        a("buffer_load_dwordx4 v5, s[24:27], s30 offen lds")
    a("s_lshl_b32 s29, s6, 3")
    a("s_add_u32 s29, s29, s4")
    a("s_mul_i32 s34, s29, 20480")
    a(f"s_add_u32 s34, s34, {WS_MT}")
    MT = 40
    def mtload(t):
        if t % 4 == 0 and t: a("s_add_u32 s34, s34, 4096")
        a(f"buffer_load_dwordx4 v[{MT+4*t}:{MT+4*t+3}], v5, s[24:27], s34 offen offset:{(t%4)*1024}")
    a("; STAMP 1")
    a("s_mov_b32 s61, 0xffff0000")
    a("s_mov_b32 s62, 0x358637bd")
    a("v_lshrrev_b32 v6, 4, v1")
    a("v_mul_u32_u24 v6, 20480, v6")
    a("v_and_b32 v7, 15, v1")
    a("v_lshl_add_u32 v6, v7, 3, v6")
    a("s_mul_i32 s30, s4, 2560")
    a("v_add_u32 v6, s30, v6")
    a("s_mul_i32 s30, s4, 160")
    a(f"s_add_u32 s30, s30, {L_Z}")
    a("v_mov_b32 v7, s30")
    a("s_waitcnt vmcnt(0)")
    a("s_barrier")
    a("; STAMP 2")
    a("; STAMP 3")
    PB, ZB = 120, 140
    def rd(hd):
        P = PB + 10*(hd & 1); Z = ZB + 10*(hd & 1)
        for i in range(5):
            qd = 5*hd + i
            a(f"ds_read_b64 v[{P+2*i}:{P+2*i+1}], v6 offset:{(qd>>2)*512 + (qd&3)*128}")
            a(f"ds_read_b64 v[{Z+2*i}:{Z+2*i+1}], v7 offset:{hd*40 + 8*i}")
    rd(0)
    for hd in range(4):
        P = PB + 10*(hd & 1); Z = ZB + 10*(hd & 1)
        if hd + 1 < 4:
            rd(hd+1)
            a(f"s_waitcnt lgkmcnt({10 if hd == 0 else 15})")
        else:
            a("s_waitcnt lgkmcnt(0)")
        a(f"v_dot2_f32_bf16 v32, v{P}, v{Z}, 0")
        a(f"v_dot2_f32_bf16 v33, v{P+1}, v{Z+1}, 0")
        for i in range(2, 10, 2):
            a(f"v_dot2_f32_bf16 v32, v{P+i}, v{Z+i}, v32")
            a(f"v_dot2_f32_bf16 v33, v{P+i+1}, v{Z+i+1}, v33")
        mtload(5*hd)
        for i in range(10):
            if i == 5: mtload(5*hd+1)
            a(f"v_lshlrev_b32 v{8+2*i}, 16, v{P+i}")
            a(f"v_and_b32 v{9+2*i}, s61, v{P+i}")
        a("v_add_f32 v32, v32, v33")
        a("v_cvt_pk_bf16_f32 v32, v32, v32")
        a("v_lshlrev_b32 v32, 16, v32")
        a("v_add_f32 v32, s62, v32")
        a("v_cvt_pk_bf16_f32 v32, v32, v32")
        a("v_lshlrev_b32 v32, 16, v32")
        a("v_rcp_f32 v32, v32")
        mtload(5*hd+2)
        for i in range(10):
            if i in (4, 9): mtload(5*hd+3+(i==9))
            a(f"v_mul_f32 v{8+2*i}, v{8+2*i}, v32")
            a(f"v_mul_f32 v{9+2*i}, v{9+2*i}, v32")
            a(f"v_cvt_pk_bf16_f32 v{P+i}, v{8+2*i}, v{9+2*i}")
        for i in range(5):
            qd = 5*hd + i
            a(f"ds_write_b64 v6, v[{P+2*i}:{P+2*i+1}] offset:{(qd>>2)*512 + (qd&3)*128}")
    a("s_waitcnt lgkmcnt(0)")
    a("s_barrier")
    a("; STAMP 4")
    a("v_lshlrev_b32 v6, 3, v1")
    a("v_add_u32 v7, 40960, v6")
    for r in range(8, 24):
        a(f"v_mov_b32 v{r}, 0")
    AF = [120, 136, 152]
    def lda(t):
        f = AF[t % 3]
        for rt in range(4):
            va = 6 if rt < 2 else 7
            a(f"ds_read_b64 v[{f+4*rt}:{f+4*rt+1}], v{va} offset:{(rt&1)*20480 + t*1024}")
            a(f"ds_read_b64 v[{f+4*rt+2}:{f+4*rt+3}], v{va} offset:{(rt&1)*20480 + t*1024 + 512}")
    lda(0)
    for t in range(20):
        if t + 1 < 20:
            lda(t+1)
        a(f"s_waitcnt vmcnt({19-t}) lgkmcnt({8 if t + 1 < 20 else 0})")
        f = AF[t % 3]
        for rt in range(4):
            acc = 8 + 4*rt
            a(f"v_mfma_f32_16x16x32_bf16 v[{acc}:{acc+3}], v[{MT+4*t}:{MT+4*t+3}], v[{f+4*rt}:{f+4*rt+3}], v[{acc}:{acc+3}]")
    a("; STAMP 5")
    a("s_barrier")
    a("v_lshrrev_b32 v40, 4, v1")
    a("v_and_b32 v41, 15, v1")
    a(f"v_mul_u32_u24 v42, {OP}, v41")
    a("v_lshl_add_u32 v42, v40, 3, v42")
    a("s_lshl_b32 s30, s4, 5")
    a("v_add_u32 v42, s30, v42")
    for rt in range(4):
        acc = 8 + 4*rt
        a(f"v_cvt_pk_bf16_f32 v{acc}, v{acc}, v{acc+1}")
        a(f"v_cvt_pk_bf16_f32 v{acc+1}, v{acc+2}, v{acc+3}")
        a(f"ds_write_b64 v42, v[{acc}:{acc+1}] offset:{rt*16*OP}")
    a("s_waitcnt lgkmcnt(0)")
    a("s_barrier")
    a("v_lshrrev_b32 v40, 4, v0")
    a("v_and_b32 v41, 15, v0")
    a(f"v_mul_u32_u24 v42, {OP}, v40")
    a("v_lshl_add_u32 v42, v41, 4, v42")
    a("ds_read_b128 v[8:11], v42")
    a(f"ds_read_b128 v[12:15], v42 offset:{32*OP}")
    a("s_lshl_b32 s7, s5, 6")
    a("v_add_u32 v40, s7, v40")
    a("v_mul_u32_u24 v40, 2560, v40")
    a("v_lshl_add_u32 v40, v41, 4, v40")
    a("s_lshl_b32 s30, s6, 8")
    a(f"s_add_u32 s31, s30, {32*2560}")
    a("s_waitcnt lgkmcnt(0)")
    a("buffer_store_dwordx4 v[8:11], v40, s[16:19], s30 offen")
    a("buffer_store_dwordx4 v[12:15], v40, s[16:19], s31 offen")
    a("s_endpgm")
```

```python
from asmlib import *

DEBUG_DUMP = False
WS_PQ = 0
WS_PART = 0x280000
PSZ = 18 * 1024
WS_KX = 0x700000
KXP = 4416
WS_MT = 0xA00000
WS_ZF = 0xB00000
WS_SIZE = 0x1000000
WS_SIZE2 = 0x2000000
LOG2E = "0x3fb8aa3b"
NLOG2E = "0xbfb8aa3b"

def srd(a, d, base, nbytes):
    a(f"s_mov_b32 s{d}, s{base}")
    a(f"s_mov_b32 s{d+1}, s{base+1}")
    a(f"s_mov_b32 s{d+2}, {nbytes}")
    a(f"s_mov_b32 s{d+3}, 0x00020000")

def emit_p0(a, vi, d0, d1, d2, t0, t1):
    a(f"v_and_b32 v{d0}, 7, v{vi}")
    a(f"v_and_b32 v{t0}, 8, v{vi}")
    a(f"v_lshlrev_b32 v{t0}, 4, v{t0}")
    a(f"v_or_b32 v{d0}, v{d0}, v{t0}")
    a(f"v_and_b32 v{t0}, 4, v{vi}")
    a(f"v_lshlrev_b32 v{t0}, 5, v{t0}")
    a(f"v_and_b32 v{t1}, 3, v{vi}")
    a(f"v_lshlrev_b32 v{t1}, 1, v{t1}")
    a(f"v_add3_u32 v{d1}, v{t0}, v{t1}, 0")
    a(f"v_add_u32 v{d1}, 0x100, v{d1}")
    a(f"v_and_b32 v{t0}, 6, v{vi}")
    a(f"v_lshlrev_b32 v{t0}, 6, v{t0}")
    a(f"v_and_b32 v{t1}, 1, v{vi}")
    a(f"v_lshlrev_b32 v{t1}, 2, v{t1}")
    a(f"v_add_u32 v{t0}, v{t0}, v{t1}")
    a(f"v_add_u32 v{t0}, 0x200, v{t0}")
    a(f"v_cmp_gt_u32 vcc, 8, v{vi}")
    a(f"v_cndmask_b32 v{d1}, v{t0}, v{d1}, vcc")
    a(f"v_lshlrev_b32 v{t0}, 7, v{vi}")
    a(f"v_add_u32 v{t0}, 0x400, v{t0}")
    a(f"v_mov_b32 v{t1}, 0x800")
    a(f"v_cndmask_b32 v{d2}, v{t1}, v{t0}, vcc")

KG_LDS = 3 * 12288
ATC = ['0x3e22f982', '0xbd594a64', '0x3d022dde', '0xbcb6bf74', '0x3c8127ca', '0xbc1ace2a', '0x3b7c1000', '0xba42c9cd']
def kgen(a, wg_base):
    a(f"s_sub_u32 s3, s2, {wg_base}")
    a("s_load_dwordx8 s[8:15], s[0:1], 32")
    a("s_load_dwordx2 s[16:17], s[0:1], 64")
    a("s_load_dwordx2 s[18:19], s[0:1], 96")
    a("v_lshrrev_b32 v4, 6, v0")
    a("v_readfirstlane_b32 s4, v4")
    a("v_and_b32 v1, 63, v0")
    a("v_and_b32 v2, 15, v0")
    a("v_bfe_u32 v3, v0, 4, 2")
    a("s_lshr_b32 s5, s4, 1")
    a("s_and_b32 s4, s4, 1")
    a("s_lshl_b32 s6, s5, 8")
    a("s_add_u32 s3, s3, s6")
    a("s_cmp_ge_u32 s3, 640")
    a("s_cbranch_scc1 L_kgen_exit")
    a("s_mul_i32 s5, s5, 12288")
    a("s_mul_i32 s44, s3, 384")
    a("s_mul_i32 s6, s4, 192")
    a("s_add_u32 s44, s44, s6")
    a("s_lshl_b32 s45, s3, 1")
    a("s_and_b32 s45, s45, 0xfffffffc")
    a("v_lshlrev_b32 v5, 2, v1")
    a("v_min_u32 v5, 188, v5")
    a("s_waitcnt lgkmcnt(0)")
    srd(a, 20, 8, 640*192*2); srd(a, 24, 10, 640*192*2); srd(a, 28, 12, 640*192*2); srd(a, 32, 14, 640*192*2)
    srd(a, 40, 18, WS_SIZE)
    for k, sr in enumerate((20, 24, 28, 32)):
        a(f"buffer_load_dword v{16+k}, v5, s[{sr}:{sr+3}], s44 offen")
    a("s_load_dword s51, s[16:17], s45")
    a("; KSTAMP 0")
    emit_p0(a, 2, 35, 36, 37, 52, 53)
    a("v_lshlrev_b32 v34, 3, v2")
    for r in (34, 35, 36, 37):
        a(f"v_cvt_f32_u32 v{r}, v{r}")
    for r in range(40, 52):
        a(f"v_mov_b32 v{r}, 0")
    a("v_mov_b32 v52, 0")
    a("v_mov_b32 v53, s5")
    a("ds_write_b16 v53, v52 offset:4400")
    a(f"s_mov_b32 s46, {LOG2E}")
    a(f"s_mov_b32 s47, {NLOG2E}")
    a("s_mov_b32 s48, 0xffff0000")
    a("s_mul_i32 s6, s4, 1536")
    a("s_add_u32 s6, s6, s5")
    a("v_lshlrev_b32 v13, 5, v1")
    a("v_add_u32 v13, s6, v13")
    a("v_mul_u32_u24 v12, 384, v3")
    a("v_add_u32 v12, s6, v12")
    a("s_waitcnt lgkmcnt(0)")
    a("s_and_b32 s7, s3, 1")
    a("s_lshl_b32 s7, s7, 4")
    a("s_lshr_b32 s51, s51, s7")
    a("s_lshl_b32 s51, s51, 16")
    a("v_mov_b32 v32, s51")
    a("v_mul_f32 v32, s46, v32")
    a("v_exp_f32 v32, v32")
    a("v_cvt_pk_bf16_f32 v32, v32, v32")
    a("v_lshlrev_b32 v32, 16, v32")
    a("v_add_f32 v33, v32, v32")
    a("s_waitcnt vmcnt(0)")
    a("; KSTAMP 1")
    seqs = []
    for q in range(2):
        B = 56 + 16*q
        l = []
        for k in range(4):
            l.append(f"v_lshlrev_b32 v{B+k}, 16, v{16+k}" if q == 0 else f"v_and_b32 v{B+k}, s48, v{16+k}")
        l += [f"v_mul_f32 v{B}, s46, v{B}", f"v_exp_f32 v{B}, v{B}", f"v_mul_f32 v{B+1}, v{B+1}, v32",
              f"v_mul_f32 v{B+2}, v{B+2}, v33", f"v_cvt_pk_bf16_f32 v{B}, v{B}, v{B}", f"v_mul_f32 v{B+3}, v{B+3}, v33",
              f"v_lshlrev_b32 v{B}, 16, v{B}", f"v_mul_f32 v{B+1}, 0.15915494, v{B+1}", f"v_mul_f32 v{B}, v{B}, v32",
              f"v_mul_f32 v{B}, s47, v{B}",
              f"v_mul_f32 v{B+4}, v{B+2}, v{B+2}", f"v_fma_f32 v{B+4}, v{B+3}, v{B+3}, v{B+4}", f"v_log_f32 v{B+4}, v{B+4}",
              f"v_max_f32 v{B+6}, abs(v{B+2}), abs(v{B+3})", f"v_min_f32 v{B+7}, abs(v{B+2}), abs(v{B+3})",
              f"v_max_f32 v{B+6}, 0x00800000, v{B+6}", f"v_rcp_f32 v{B+6}, v{B+6}", f"v_mul_f32 v{B+4}, 0.5, v{B+4}",
              f"v_mul_f32 v{B+7}, v{B+7}, v{B+6}", f"v_mul_f32 v{B+6}, v{B+7}, v{B+7}", f"v_mov_b32 v{B+5}, {ATC[7]}"]
        for c in range(6, -1, -1):
            l.append(f"v_fma_f32 v{B+5}, v{B+5}, v{B+6}, s{52+c}")
        cc = f"s[{60+2*q}:{61+2*q}]"
        l += [f"v_mul_f32 v{B+5}, v{B+5}, v{B+7}", f"v_sub_f32 v{B+6}, 0.25, v{B+5}",
              f"v_cmp_gt_f32 {cc}, abs(v{B+3}), abs(v{B+2})", f"v_cndmask_b32 v{B+5}, v{B+5}, v{B+6}, {cc}",
              f"v_sub_f32 v{B+6}, 0.5, v{B+5}", f"v_cmp_gt_f32 {cc}, 0, v{B+2}", f"v_cndmask_b32 v{B+5}, v{B+5}, v{B+6}, {cc}",
              f"v_cmp_gt_f32 {cc}, 0, v{B+3}", f"v_cndmask_b32 v{B+3}, v{B+5}, -v{B+5}, {cc}", f"v_mov_b32 v{B+2}, v{B+4}"]
        seqs.append(l)
    for c in range(7):
        a(f"s_mov_b32 s{52+c}, {ATC[c]}")
    for x, y in zip(*seqs):
        a(x); a(y)
    a("v_cmp_gt_u32 vcc, 48, v1")
    a("s_and_saveexec_b64 s[22:23], vcc")
    a("ds_write_b128 v13, v[56:59] offset:4608")
    a("ds_write_b128 v13, v[72:75] offset:4624")
    a("s_mov_b64 exec, s[22:23]")
    a("; KSTAMP 2")
    a("s_mov_b32 s49, 0")
    a.label("L_kgen_cl")
    for n in range(8):
        a(f"ds_read_b128 v[{96+4*n}:{99+4*n}], v12 offset:{4608 + n*16}")
    a("v_add_u32 v12, 128, v12")
    for b in range(2):
        a(f"s_waitcnt lgkmcnt({4 if b == 0 else 0})")
        for n2 in range(0, 4, 2):
            seq = []
            for q in range(2):
                m = n2 + q; P = 96 + 16*b + 4*m; T = 52 + 16*q
                l = []
                l.append(f"v_mul_f32 v{T}, v{P}, v34")
                l.append(f"v_mul_f32 v{T+1}, v{P+1}, v34")
                for g in range(3):
                    l.append(f"v_fma_f32 v{T+4+4*g}, v{P}, v{35+g}, v{P+2}")
                    l.append(f"v_fma_f32 v{T+5+4*g}, v{P+1}, v{35+g}, v{P+3}")
                for k in range(4):
                    l.append(f"v_exp_f32 v{T+4*k}, v{T+4*k}")
                    l.append(f"v_fract_f32 v{T+4*k+1}, v{T+4*k+1}")
                for k in range(4):
                    l.append(f"v_cos_f32 v{T+4*k+2}, v{T+4*k+1}")
                    l.append(f"v_sin_f32 v{T+4*k+3}, v{T+4*k+1}")
                for k in range(4):
                    l.append(f"v_mul_f32 v{T+4*k+2}, v{T+4*k}, v{T+4*k+2}")
                    l.append(f"v_mul_f32 v{T+4*k+3}, v{T+4*k}, v{T+4*k+3}")
                l.append(f"v_cvt_pk_bf16_f32 v{28+m}, v{T+2}, -v{T+3}")
                for g in range(3):
                    l.append(f"v_cvt_pk_bf16_f32 v{16+4*g+m}, v{T+6+4*g}, v{T+7+4*g}")
                seq.append(l)
            for x, y in zip(*seq):
                a(x); a(y)
        for g in range(3):
            a(f"v_mfma_f32_16x16x32_bf16 v[{40+4*g}:{43+4*g}], v[{16+4*g}:{19+4*g}], v[28:31], v[{40+4*g}:{43+4*g}]")
    a("s_add_u32 s49, s49, 1")
    a("s_cmp_lt_u32 s49, 3")
    a("s_cbranch_scc1 L_kgen_cl")
    a("s_nop 7")
    a("; KSTAMP 3")
    a("v_lshlrev_b32 v52, 4, v1")
    a("v_add_u32 v52, s5, v52")
    a("s_cmp_eq_u32 s4, 0")
    a("s_cbranch_scc1 L_kgen_h0a")
    for g in range(3):
        a(f"ds_write_b128 v52, v[{40+4*g}:{43+4*g}] offset:{8192 + g*1024}")
    a.label("L_kgen_h0a")
    a("s_waitcnt lgkmcnt(0)")
    a("s_barrier")
    a("s_cmp_eq_u32 s4, 1")
    a("s_cbranch_scc1 L_kgen_h1b")
    for g in range(3):
        a(f"ds_read_b128 v[{56+4*g}:{59+4*g}], v52 offset:{8192 + g*1024}")
    a("v_lshlrev_b32 v54, 3, v2")
    for r in range(4):
        a(f"v_lshl_add_u32 v53, v3, 2, {r}")
        emit_p0(a, 53, 72+r, 76+r, 80+r, 84, 85)
        for g in range(3):
            a(f"v_add_lshl_u32 v{72+4*g+r}, v{72+4*g+r}, v54, 1")
            a(f"v_add_u32 v{72+4*g+r}, s5, v{72+4*g+r}")
    a("s_waitcnt lgkmcnt(0)")
    for k in range(12):
        a(f"v_add_f32 v{40+k}, v{40+k}, v{56+k}")
        a(f"v_cvt_pk_bf16_f32 v{40+k}, v{40+k}, v{40+k}")
        a(f"ds_write_b16 v{72+k}, v{40+k}")
    a.label("L_kgen_h1b")
    a("s_waitcnt lgkmcnt(0)")
    a("s_barrier")
    a("; KSTAMP 4")
    a(f"s_mul_i32 s24, s3, {KXP}")
    a(f"s_add_u32 s24, s24, {WS_KX}")
    a("s_movk_i32 s25, 0x800")
    a("v_mov_b32 v86, 4400")
    a("v_and_b32 v6, 127, v0")
    for it in range(3):
        if it == 2:
            a("v_cmp_gt_u32 vcc, 20, v6")
            a("s_and_saveexec_b64 s[28:29], vcc")
            a("s_cbranch_execz L_kgen_exit")
        a(f"v_add_u32 v52, {128*it}, v6")
        a("v_lshlrev_b32 v53, 3, v52")
        for i in range(8):
            a(f"v_add_u32 v{54+i}, {i}, v53")
            a(f"v_sub_u32 v{62+i}, s25, v{54+i}")
            a(f"v_cvt_f32_i32 v{62+i}, v{62+i}")
        for i in range(0, 8, 2):
            a(f"v_cvt_pk_bf16_f32 v70, v{62+i}, v{63+i}")
            a(f"v_lshlrev_b32 v{62+i}, 16, v70")
            a(f"v_and_b32 v{63+i}, s48, v70")
        for i in range(8):
            a(f"v_cvt_u32_f32 v{62+i}, v{62+i}")
            a(f"v_lshlrev_b32 v{62+i}, 1, v{62+i}")
            a(f"v_add_u32 v{54+i}, -1, v{54+i}")
            a(f"v_cmp_gt_u32 vcc, s25, v{54+i}")
            a(f"v_cndmask_b32 v{62+i}, v86, v{62+i}, vcc")
            a(f"v_add_u32 v{62+i}, s5, v{62+i}")
        for i in range(8):
            a(f"ds_read_u16 v{54+i}, v{62+i}")
        a("v_lshlrev_b32 v53, 4, v52")
        a("s_waitcnt lgkmcnt(0)")
        for i in range(0, 8, 2):
            a(f"v_lshl_or_b32 v{72+4*(it&1)+i//2}, v{55+i}, 16, v{54+i}")
        a(f"buffer_store_dwordx4 v[{72+4*(it&1)}:{75+4*(it&1)}], v53, s[40:43], s24 offen")
    a.label("L_kgen_exit")
    a("; KEND")
    a("s_endpgm")

WS_UT = 0xC00000
WS_YT = 0xF00000

def transp(a, wg_base, nthreads, direction, nwg=None):
    nh = nthreads // 256
    tag = direction
    a(f"s_sub_u32 s3, s2, {wg_base}")
    a("s_load_dwordx2 s[8:9], s[0:1], 24")
    a("s_load_dwordx2 s[10:11], s[0:1], 72")
    a("s_load_dwordx2 s[12:13], s[0:1], 80")
    a("s_load_dwordx2 s[14:15], s[0:1], 96")
    a("v_lshrrev_b32 v4, 8, v0")
    a("v_readfirstlane_b32 s4, v4")
    a("v_and_b32 v0, 255, v0")
    a("v_and_b32 v1, 63, v0")
    a("v_lshrrev_b32 v4, 6, v0")
    a(f"s_mul_i32 s3, s3, {nh}")
    a("s_add_u32 s3, s3, s4")
    a("s_mul_i32 s5, s4, 9216")
    a("s_waitcnt lgkmcnt(0)")
    srd(a, 16, 8, 2048*640*2); srd(a, 20, 10, 1280); srd(a, 24, 12, 2048*1280*2); srd(a, 28, 14, WS_SIZE2)
    a.label(f"L_tr{tag}_loop")
    a("s_mul_i32 s6, s3, 6554")
    a("s_lshr_b32 s6, s6, 16")
    a("s_mul_i32 s7, s6, 10")
    a("s_sub_u32 s7, s3, s7")
    a("v_lshrrev_b32 v5, 3, v0")
    a("v_and_b32 v6, 7, v0")
    if direction == 'u':
        a("v_mul_u32_u24 v7, 1280, v5")
        a("v_lshl_add_u32 v7, v6, 4, v7")
        a("s_mul_i32 s32, s6, 81920")
        a("s_lshl_b32 s33, s7, 7")
        a("s_add_u32 s32, s32, s33")
        a("s_add_u32 s33, s32, 40960")
        a("buffer_load_dwordx4 v[8:11], v7, s[16:19], s32 offen")
        a("buffer_load_dwordx4 v[12:15], v7, s[16:19], s33 offen")
    else:
        a("v_lshlrev_b32 v7, 12, v5")
        a("v_lshl_add_u32 v7, v6, 4, v7")
        a("s_lshl_b32 s32, s7, 18")
        a("s_lshl_b32 s33, s6, 7")
        a("s_add_u32 s32, s32, s33")
        a(f"s_add_u32 s32, s32, {WS_YT}")
        a("s_add_u32 s33, s32, 131072")
        a("buffer_load_dwordx4 v[8:11], v7, s[28:31], s32 offen")
        a("buffer_load_dwordx4 v[12:15], v7, s[28:31], s33 offen")
    a("v_mul_u32_u24 v16, 144, v5")
    a("v_lshl_add_u32 v16, v6, 4, v16")
    a("v_add_u32 v16, s5, v16")
    a("v_lshrrev_b32 v17, 4, v1")
    a("v_bfe_u32 v18, v1, 2, 2")
    a("v_and_b32 v19, 3, v1")
    a("v_and_b32 v20, 15, v1")
    a("v_lshl_add_u32 v21, v17, 3, v18")
    a("v_mul_u32_u24 v21, 144, v21")
    a("v_lshl_add_u32 v21, v19, 3, v21")
    a("v_lshl_add_u32 v21, v4, 5, v21")
    a("v_add_u32 v21, s5, v21")
    a("v_lshl_add_u32 v22, v4, 4, v20")
    if direction == 'u':
        a("v_lshlrev_b32 v23, 12, v22")
        a("v_lshl_add_u32 v23, v17, 4, v23")
        a("s_lshl_b32 s34, s7, 18")
        a("s_lshl_b32 s35, s6, 7")
        a("s_add_u32 s34, s34, s35")
        a(f"s_add_u32 s34, s34, {WS_UT}")
    else:
        a("v_mul_u32_u24 v23, 2560, v22")
        a("v_lshl_add_u32 v23, v17, 4, v23")
        a("s_mul_i32 s34, s6, 163840")
        a("s_lshl_b32 s35, s7, 7")
        a("s_add_u32 s34, s34, s35")
        a("s_add_u32 s34, s34, 1280")
        a("v_mul_u32_u24 v24, 1280, v22")
        a("v_lshl_add_u32 v24, v17, 4, v24")
        a("s_mul_i32 s36, s6, 81920")
        a("s_add_u32 s36, s36, s35")
        a("buffer_load_dwordx4 v[32:35], v24, s[16:19], s36 offen")
        a("buffer_load_dwordx4 v[36:39], v24, s[16:19], s36 offen offset:64")
        a("v_lshlrev_b32 v24, 4, v17")
        a("buffer_load_dwordx4 v[40:43], v24, s[20:23], s35 offen")
        a("buffer_load_dwordx4 v[44:47], v24, s[20:23], s35 offen offset:64")
        a("s_waitcnt vmcnt(4)")
    if direction == 'u': a("s_waitcnt vmcnt(0)")
    a("ds_write_b128 v16, v[8:11]")
    a(f"ds_write_b128 v16, v[12:15] offset:{32*144}")
    a("s_waitcnt lgkmcnt(0)")
    a("s_barrier")
    for i in range(2):
        a(f"ds_read_b64_tr_b16 v[{8+4*i}:{9+4*i}], v21 offset:{i*32*144}")
        a(f"ds_read_b64_tr_b16 v[{10+4*i}:{11+4*i}], v21 offset:{i*32*144 + 4*144}")
    a("s_waitcnt lgkmcnt(0)")
    if direction == 'u':
        a("buffer_store_dwordx4 v[8:11], v23, s[28:31], s34 offen")
        a("buffer_store_dwordx4 v[12:15], v23, s[28:31], s34 offen offset:64")
    else:
        a("s_mov_b32 s38, 0xffff0000")
        a("s_waitcnt vmcnt(0)")
        for i in range(2):
            for k in range(4):
                y, u, d = 8+4*i+k, 32+4*i+k, 40+4*i+k
                a(f"v_lshlrev_b32 v48, 16, v{u}")
                a(f"v_and_b32 v49, s38, v{u}")
                a(f"v_lshlrev_b32 v50, 16, v{d}")
                a(f"v_and_b32 v51, s38, v{d}")
                a("v_mul_f32 v48, v48, v50")
                a("v_mul_f32 v49, v49, v51")
                a("v_cvt_pk_bf16_f32 v48, v48, v49")
                a("v_and_b32 v49, s38, v48")
                a("v_lshlrev_b32 v48, 16, v48")
                a(f"v_lshlrev_b32 v50, 16, v{y}")
                a(f"v_and_b32 v51, s38, v{y}")
                a("v_add_f32 v48, v48, v50")
                a("v_add_f32 v49, v49, v51")
                a(f"v_cvt_pk_bf16_f32 v{y}, v48, v49")
            a(f"buffer_store_dwordx4 v[{8+4*i}:{11+4*i}], v23, s[24:27], s34 offen offset:{64*i}")
    if nwg:
        a(f"s_add_u32 s3, s3, {nwg*nh}")
        a("s_cmp_ge_u32 s3, 320")
        a(f"s_cbranch_scc1 L_tr{tag}_end")
        a("s_barrier")
        a(f"s_branch L_tr{tag}_loop")
        a.label(f"L_tr{tag}_end")
    a("s_endpgm")

KCP = 4416
L_UD = 4 * KCP
CONV_LDS = L_UD + 96 * 80 + 256
L_Y = 24576
CONV_LDS = L_Y + 4096

def conv(a, wg_base):
    a(f"s_sub_u32 s3, s2, {wg_base}")
    a("; STAMP 0")
    a("s_load_dwordx2 s[14:15], s[0:1], 96")
    a("v_and_b32 v1, 63, v0")
    a("v_lshrrev_b32 v4, 6, v0")
    a("v_readfirstlane_b32 s4, v4")
    a("v_lshlrev_b32 v6, 4, v0")
    a(f"s_mul_i32 s34, s3, {KXP}")
    a(f"s_add_u32 s34, s34, {WS_KX - 8}")
    a("s_add_u32 s40, s34, 4096")
    a("s_lshl_b32 s32, s3, 12")
    a(f"s_add_u32 s33, s32, {WS_UT}")
    a("s_waitcnt lgkmcnt(0)")
    srd(a, 28, 14, WS_SIZE2)
    a("buffer_load_dwordx4 v[8:11], v6, s[28:31], s33 offen")
    for i in range(2):
        so = "s34" if i == 0 else "s40"
        a(f"buffer_load_dwordx2 v[{24+6*i}:{25+6*i}], v6, s[28:31], {so} offen")
        a(f"buffer_load_dwordx4 v[{26+6*i}:{29+6*i}], v6, s[28:31], {so} offen offset:8")
    a("v_mov_b32 v60, 0"); a("v_mov_b32 v61, 0"); a("v_mov_b32 v62, 0"); a("v_mov_b32 v63, 0")
    a("v_cmp_gt_u32 vcc, 160, v0")
    a("s_and_saveexec_b64 s[36:37], vcc")
    a(f"ds_write_b128 v6, v[60:63] offset:{L_UD}")
    a("s_mov_b64 exec, s[36:37]")
    a("v_lshrrev_b32 v7, 2, v0")
    a("v_mul_u32_u24 v7, 80, v7")
    a("v_and_b32 v12, 3, v0")
    a("v_lshl_add_u32 v7, v12, 4, v7")
    a("; STAMP 3")
    a("s_waitcnt vmcnt(4)")
    a("; STAMP 4")
    a(f"ds_write_b128 v7, v[8:11] offset:{L_UD + 32*80}")
    for i in range(2):
        a(f"s_waitcnt vmcnt({2 - 2*i})")
        d = 24 + 6*i
        if i == 1:
            a("v_cmp_gt_u32 vcc, 20, v0")
            a("s_and_saveexec_b64 s[36:37], vcc")
        if i == 0:
            a("v_cmp_eq_u32 vcc, 0, v0")
            a(f"v_cndmask_b32 v{d}, v{d}, 0, vcc")
            a(f"v_cndmask_b32 v{d+1}, v{d+1}, 0, vcc")
        a(f"ds_write_b128 v6, v[{d+2}:{d+5}] offset:{i*4096}")
        for j in range(4):
            a(f"v_alignbit_b32 v{64+j}, v{d+2+j}, v{d+1+j}, 16")
        a(f"ds_write_b128 v6, v[64:67] offset:{i*4096 + KCP}")
        for j in range(4):
            a(f"v_mov_b32 v{68+j}, v{d+1+j}")
        a(f"ds_write_b128 v6, v[68:71] offset:{i*4096 + 2*KCP}")
        for j in range(4):
            a(f"v_alignbit_b32 v{72+j}, v{d+1+j}, v{d+j}, 16")
        a(f"ds_write_b128 v6, v[72:75] offset:{i*4096 + 3*KCP}")
        if i == 1:
            a("s_mov_b64 exec, s[36:37]")
    a("; STAMP 5")
    a("v_and_b32 v8, 31, v1")
    a("v_lshrrev_b32 v9, 5, v1")
    a("v_and_b32 v10, 3, v8")
    a(f"v_mul_u32_u24 v10, {KCP}, v10")
    a("v_and_b32 v11, 28, v8")
    a("v_sub_u32 v11, 32, v11")
    a("v_lshl_add_u32 v11, v9, 3, v11")
    a("v_lshl_add_u32 v10, v11, 1, v10")
    a("s_and_b32 s5, s4, 1")
    a("s_lshr_b32 s6, s4, 1")
    a("s_lshl_b32 s6, s6, 5")
    a("s_xor_b32 s5, s5, 1")
    a("s_lshl_b32 s7, s5, 6")
    a("s_add_u32 s7, s7, s6")
    a("v_add_u32 v10, s7, v10")
    a("v_mul_u32_u24 v11, 80, v8")
    a("v_lshl_add_u32 v11, v9, 4, v11")
    a("s_mul_i32 s7, s5, 80")
    a("s_add_u32 s7, s7, s6")
    a(f"s_add_u32 s7, s7, {L_UD + 80}")
    a("v_add_u32 v11, s7, v11")
    ACC0, ACC1 = 64, 80
    for r in range(32):
        a(f"v_mov_b32 v{64+r}, 0")
    a("s_waitcnt lgkmcnt(0)")
    a("s_barrier")
    a("; STAMP 1")
    a(f"v_add_u32 v10, {64*30 - 128}, v10")
    a(f"v_add_u32 v11, {30*80 - 160}, v11")
    def loads(f, back):
        oa = 128 - 128*back; ob = 160 - 160*back
        a(f"ds_read_b64 v[{f}:{f+1}], v10 offset:{oa + 2048}")
        a(f"ds_read_b64 v[{f+2}:{f+3}], v10 offset:{oa + 2056}")
        a(f"ds_read_b128 v[{f+8}:{f+11}], v11 offset:{ob}")
        a(f"ds_read_b128 v[{f+12}:{f+15}], v11 offset:{ob + 2560}")
        a(f"ds_read_b64 v[{f+4}:{f+5}], v10 offset:{oa}")
        a(f"ds_read_b64 v[{f+6}:{f+7}], v10 offset:{oa + 8}")
    def mf(f):
        a(f"v_mfma_f32_32x32x16_bf16 v[{ACC0}:{ACC0+15}], v[{f}:{f+3}], v[{f+8}:{f+11}], v[{ACC0}:{ACC0+15}]")
        a(f"v_mfma_f32_32x32x16_bf16 v[{ACC1}:{ACC1+15}], v[{f}:{f+3}], v[{f+12}:{f+15}], v[{ACC1}:{ACC1+15}]")
        a(f"v_mfma_f32_32x32x16_bf16 v[{ACC1}:{ACC1+15}], v[{f+4}:{f+7}], v[{f+8}:{f+11}], v[{ACC1}:{ACC1+15}]")
    loads(96, 0)
    a("s_mov_b32 s5, 0")
    a.label("L_cv_ml")
    loads(112, 1)
    a("s_waitcnt lgkmcnt(6)")
    mf(96)
    a("s_add_u32 s5, s5, 1")
    a("s_cmp_ge_u32 s5, 8")
    a("s_cbranch_scc1 L_cv_mlend")
    a("v_subrev_u32 v10, 256, v10")
    a("v_subrev_u32 v11, 320, v11")
    loads(96, 0)
    a("s_waitcnt lgkmcnt(6)")
    mf(112)
    a("s_branch L_cv_ml")
    a.label("L_cv_mlend")
    a("s_waitcnt lgkmcnt(0)")
    mf(112)
    a("s_nop 15")
    a("; STAMP 2")
    a("s_barrier")
    a("v_lshlrev_b32 v12, 4, v1")
    for w in range(4):
        a(f"s_cmp_eq_u32 s4, {w}")
        a(f"s_cbranch_scc0 L_cv_w{w}")
        for dw in range(4):
            if dw == w: continue
            slot = w if w < dw else w - 1
            for q in range(2):
                r = 64 + 4*(2*dw + q)
                a(f"ds_write_b128 v12, v[{r}:{r+3}] offset:{(dw*3 + slot)*2048 + q*1024}")
        for q in range(2):
            for k in range(4):
                a(f"v_mov_b32 v{96+4*q+k}, v{64+4*(2*w+q)+k}")
        a.label(f"L_cv_w{w}")
    a("s_waitcnt lgkmcnt(0)")
    a("s_barrier")
    a("s_mul_i32 s5, s4, 6144")
    a("v_add_u32 v13, s5, v12")
    for sl in range(3):
        for q in range(2):
            a(f"ds_read_b128 v[{104+8*sl+4*q}:{107+8*sl+4*q}], v13 offset:{sl*2048 + q*1024}")
    a("s_waitcnt lgkmcnt(0)")
    for k in range(8):
        a(f"v_add_f32 v{104+k}, v{104+k}, v{112+k}")
        a(f"v_add_f32 v{96+k}, v{96+k}, v{120+k}")
        a(f"v_add_f32 v{96+k}, v{96+k}, v{104+k}")
    a("v_lshlrev_b32 v12, 6, v8")
    a("v_lshl_add_u32 v12, v9, 3, v12")
    a("s_lshr_b32 s5, s4, 1")
    a("s_lshl_b32 s5, s5, 11")
    a("s_and_b32 s6, s4, 1")
    a("s_lshl_b32 s6, s6, 5")
    a("s_add_u32 s5, s5, s6")
    a("v_add_u32 v12, s5, v12")
    for q in range(2):
        a(f"v_cvt_pk_bf16_f32 v{104+2*q}, v{96+4*q}, v{97+4*q}")
        a(f"v_cvt_pk_bf16_f32 v{105+2*q}, v{98+4*q}, v{99+4*q}")
        a(f"ds_write_b64 v12, v[{104+2*q}:{105+2*q}] offset:{L_Y + q*16}")
    a("s_waitcnt lgkmcnt(0)")
    a("s_barrier")
    a(f"ds_read_b128 v[96:99], v6 offset:{L_Y}")
    a(f"s_add_u32 s33, s32, {WS_YT}")
    a("s_waitcnt lgkmcnt(0)")
    a("buffer_store_dwordx4 v[96:99], v6, s[28:31], s33 offen")
    a("s_endpgm")
```
